```python
import torch

def _softmax(x, axis=-1):
    return torch.softmax(x, dim=axis)
def _gelu(x):
    return torch.nn.functional.gelu(x, approximate="tanh")
def _silu(x):
    return torch.nn.functional.silu(x)
def _sigmoid(x):
    return torch.sigmoid(x)
def _layernorm(x, axis=-1, eps=1e-5):
    m = x.mean(dim=axis, keepdim=True)
    v = x.var(dim=axis, keepdim=True, unbiased=False)
    return (x - m) / torch.sqrt(v + eps)
def _scatter_add(tgt, idx, src, axis=0):
    return tgt.clone().index_add_(axis, idx, src)
def _segment_sum(src, seg, n):
    out = torch.zeros((n,) + src.shape[1:], dtype=src.dtype)
    return out.index_add_(0, seg, src)
def _pad(x, pw):
    flat = tuple(v for pair in reversed(pw) for v in pair)
    return torch.nn.functional.pad(x, flat)

kernel_name = 'recurrent_scan__spectral_gfnet__dense_activation_silu__prompt'

def setup_inputs():

    _w = (lambda a: (lambda t: t.to(torch.bfloat16) if t.is_floating_point() else t)(torch.as_tensor(a)))
    def _A_setup():
        B, S, D = 1, 2048, 1024
        Df = D // 2 + 1
        return {
            "x": _w((lambda *s: torch.randn(*s, dtype=torch.bfloat16) * 0.05)(B, S, D)),
            "w_r": _w((lambda *s: torch.randn(*s, dtype=torch.bfloat16) * 3.2)(S, Df) * 0.02),
            "w_i": _w((lambda *s: torch.randn(*s, dtype=torch.bfloat16) * 3.2)(S, Df) * 0.02),
        }
    _A_in = _A_setup()

    def _B_setup():
        B, S, D, F = 1, 2048, 1024, 3584
        return {
            "x": _w((lambda *s: torch.randn(*s, dtype=torch.bfloat16) * 0.05)(B, S, D)),
            "w1": _w((lambda *s: torch.randn(*s, dtype=torch.bfloat16) * 3.2)(D, F) * (D ** -0.5)),
            "w2": _w((lambda *s: torch.randn(*s, dtype=torch.bfloat16) * 0.4)(F, D) * (F ** -0.5)),
        }
    _B_in = _B_setup()

    return {
        "A_x": _A_in["x"],
        "A_w_r": _A_in["w_r"],
        "A_w_i": _A_in["w_i"],
        "B_x": _B_in["x"],
        "B_w1": _B_in["w1"],
        "B_w2": _B_in["w2"],
    }

def reference(A_x, A_w_r, A_w_i, B_x, B_w1, B_w2):
    def _A_ref(x, w_r, w_i):
        B, S, D = x.shape
        X = (lambda x, axes=(-2,-1): torch.fft.rfft2(x.float(), dim=axes))(x, axes=(-2, -1))
        W = w_r + 1j * w_i
        X = X * W
        y = (lambda x, s, axes=(-2,-1): torch.fft.irfft2(x, s=s, dim=axes).to(torch.bfloat16))(X, (S, D), axes=(-2, -1))
        return y

    def _B_ref(x, w1, w2):
        h = torch.einsum("bsd,df->bsf", x, w1)
        h = _silu(h)
        out = torch.einsum("bsf,fd->bsd", h, w2)
        return out

    x = A_x
    xn = _layernorm(x, axis=-1)
    s = _A_ref(xn, A_w_r, A_w_i)
    g = _silu(_B_ref(xn, B_w1, B_w2))
    return x + s * g
```

```python
import re

TRANS = ("v_exp_f32", "v_log_f32", "v_rcp_f32", "v_rsq_f32", "v_sqrt_f32", "v_sin_f32", "v_cos_f32",
         "v_rcp_iflag_f32")


def v(i, n=1):
    return f"v{i}" if n == 1 else f"v[{i}:{i+n-1}]"


def a(i, n=1):
    return f"a{i}" if n == 1 else f"a[{i}:{i+n-1}]"


def s(i, n=1):
    return f"s{i}" if n == 1 else f"s[{i}:{i+n-1}]"


_REG = re.compile(r"^-?\|?(?:abs\(|neg\()?([vas])(?:(\d+)|\[(\d+):(\d+)\])\)?\|?$")


def regs_of(tok):
    tok = tok.strip()
    if tok in ("vcc", "vcc_lo", "vcc_hi"):
        return {("s", "vcc")}
    if tok in ("exec", "exec_lo", "exec_hi"):
        return {("s", "exec")}
    if tok == "m0":
        return {("s", "m0")}
    m = _REG.match(tok)
    if not m:
        return set()
    f = m.group(1)
    if m.group(2) is not None:
        return {(f, int(m.group(2)))}
    return {(f, i) for i in range(int(m.group(3)), int(m.group(4)) + 1)}


def split_ops(rest):
    ops, depth, cur = [], 0, ""
    for ch in rest:
        if ch in "[(":
            depth += 1
        if ch in "])":
            depth -= 1
        if ch == "," and depth == 0:
            ops.append(cur.strip())
            cur = ""
        else:
            cur += ch
    if cur.strip():
        ops.append(cur.strip())
    return ops


class Ins:
    __slots__ = ("text", "mn", "ops", "mods", "dst", "src", "cls", "passes", "srcC", "srcAB", "isdpp", "nop",
                 "stdata", "lds")

    def __init__(self, text):
        self.text = text
        body = text.split(";")[0].strip()
        parts = body.split(None, 1)
        self.mn = parts[0]
        rest = parts[1] if len(parts) > 1 else ""
        ops = split_ops(rest)
        mods = ""
        if ops:
            last = ops[-1].split(None, 1)
            ops[-1] = last[0]
            if len(last) > 1:
                mods = last[1]
        self.ops, self.mods = ops, mods
        mn = self.mn
        self.dst, self.src = set(), set()
        self.srcC, self.srcAB = set(), set()
        self.passes = 0
        self.isdpp = False
        self.nop = 0
        self.stdata = set()
        self.lds = False
        R = [regs_of(o) for o in ops]
        if mn == "s_nop":
            self.cls = "nop"
            self.nop = int(ops[0], 0) + 1
            return
        if mn.startswith("v_mfma"):
            self.cls = "mfma"
            self.dst = R[0]
            self.srcAB = R[1] | R[2]
            self.srcC = R[3]
            self.src = self.srcAB | self.srcC
            if "32x32x16" in mn or "32x32x8" in mn:
                self.passes = 8
            elif "16x16x32" in mn or "16x16x16" in mn:
                self.passes = 4
            else:
                raise ValueError("unknown mfma " + mn)
            return
        if mn.startswith("v_"):
            self.cls = "valu"
            self.isdpp = any(k in mods for k in ("row_", "quad_perm", "wave_"))
            if mn.startswith("v_cmp"):
                self.dst = R[0]
                self.src = set().union(*R[1:])
            elif mn.startswith("v_permlane") and "swap" in mn:
                self.dst = R[0] | R[1]
                self.src = R[0] | R[1]
            elif mn.startswith(("v_add_co", "v_sub_co", "v_addc_co", "v_subb_co", "v_subrev_co")):
                self.dst = R[0] | R[1]
                self.src = set().union(*R[2:])
            elif mn.startswith(("v_fmac", "v_pk_fmac", "v_writelane", "v_dot2c")):
                self.dst = R[0]
                self.src = set().union(*R)
            elif mn == "v_nop":
                pass
            else:
                self.dst = R[0]
                self.src = set().union(*R[1:]) if len(R) > 1 else set()
                if mn.startswith("v_cndmask") and len(ops) == 3:
                    self.src |= {("s", "vcc")}
                if self.isdpp or "dst_sel" in mods or "op_sel" in mods:
                    self.src |= self.dst
            return
        if mn.startswith(("buffer_", "global_", "flat_")):
            self.cls = "vmem"
            self.lds = (" lds" in " " + mods) or "_lds_" in mn
            if "store" in mn or ("atomic" in mn):
                self.src = set().union(*R)
                if mn.startswith("buffer_"):
                    self.stdata = R[0]
                else:
                    self.stdata = R[1]
                if "atomic" in mn and "sc0" in mods:
                    self.dst = R[0]
                if not ("x3" in mn or "x4" in mn):
                    self.stdata = set()
            elif self.lds:
                self.src = set().union(*R) | {("s", "m0")}
            else:
                self.dst = R[0]
                self.src = set().union(*R[1:])
                if "d16" in mn:
                    self.src |= self.dst
            return
        if mn.startswith("ds_"):
            self.cls = "ds"
            if mn.startswith(("ds_write", "ds_add", "ds_or", "ds_max", "ds_min")) and "rtn" not in mn:
                self.src = set().union(*R)
            else:
                self.dst = R[0]
                self.src = set().union(*R[1:]) if len(R) > 1 else set()
            return
        if mn.startswith("s_"):
            self.cls = "salu"
            nodst = ("s_cmp", "s_cbranch", "s_branch", "s_waitcnt", "s_barrier", "s_endpgm", "s_setprio",
                     "s_sleep", "s_bitcmp", "s_setreg", "s_sethalt")
            if mn.startswith(nodst):
                self.src = set().union(*R) if R else set()
            else:
                self.dst = R[0] if R else set()
                self.src = set().union(*R[1:]) if len(R) > 1 else set()
                if "saveexec" in mn:
                    self.dst |= {("s", "exec")}
            return
        raise ValueError("cannot classify: " + text)


def _vg(rs):
    return {r for r in rs if r[0] in "va"}


def _sg(rs):
    return {r for r in rs if r[0] == "s"}


MF_RAW = {4: 8, 8: 12}
MF_OVL = {4: 6, 8: 10}
MF_WARC = {4: 3, 8: 7}


def need(p, c):
    n = 0
    if p.cls == "valu":
        wv = _vg(p.dst)
        ws = _sg(p.dst)
        if wv:
            if c.cls == "mfma" and wv & c.src:
                n = max(n, 2)
            if c.cls == "valu":
                if c.isdpp and wv & c.src:
                    n = max(n, 2)
                if c.mn.startswith("v_permlane") and wv & c.src:
                    n = max(n, 2)
                if c.mn.startswith(("v_readlane", "v_readfirstlane")) and wv & c.src:
                    n = max(n, 1)
                if p.mn.startswith(TRANS) and wv & c.src:
                    n = max(n, 1)
                if ("op_sel" in p.mods or "dst_sel" in p.mods) and wv & (c.src | c.dst):
                    n = max(n, 1)
        if ws:
            if c.cls == "valu" and ws & c.src:
                n = max(n, 4 if c.mn.startswith(("v_readlane", "v_writelane")) else 2)
            if c.cls == "vmem" and ws & c.src:
                n = max(n, 5)
            if c.cls == "salu" and ws & c.src:
                n = max(n, 4)
            if ("s", "exec") in ws and c.cls in ("mfma", "valu"):
                n = max(n, 5)
    elif p.cls == "mfma":
        d = p.dst
        if c.cls == "mfma":
            if d & c.srcAB:
                n = max(n, MF_RAW[p.passes])
            if d & c.srcC:
                if not (c.srcC == d and c.passes == p.passes):
                    n = max(n, MF_OVL[p.passes])
            elif d & c.dst:
                n = max(n, MF_OVL[p.passes])
        elif c.cls in ("valu", "vmem", "ds"):
            if d & (c.src | c.dst):
                n = max(n, MF_RAW[p.passes])
        if c.cls == "valu" and p.srcC & c.dst:
            n = max(n, MF_WARC[p.passes])
    elif p.cls == "salu":
        if ("s", "m0") in p.dst and ((c.cls == "vmem" and c.lds) or "addtid" in c.mn):
            n = max(n, 1)
    elif p.cls == "vmem":
        if p.stdata:
            if c.cls == "valu" and p.stdata & c.dst:
                n = max(n, 2)
            elif c.cls in ("vmem", "ds", "mfma") and p.stdata & c.dst:
                n = max(n, 1)
    return n


MAXW = 13


class Asm:
    def __init__(self):
        self.items = []

    def raw(self, text):
        for ln in text.split("\n"):
            self.items.append(("raw", ln))

    def label(self, name):
        self.items.append(("label", name))

    def c(self, text):
        self.items.append(("raw", "    ; " + text))

    def __call__(self, text):
        for ln in text.strip().split("\n"):
            ln = ln.strip()
            if not ln:
                continue
            if ln.startswith(";"):
                self.items.append(("raw", "    " + ln))
            elif ln.endswith(":") and " " not in ln:
                self.items.append(("label", ln[:-1]))
            elif ln.startswith("."):
                self.items.append(("raw", ln))
            else:
                self.items.append(("ins", Ins(ln)))

    def fix_hazards(self, verbose=False):
        total = 0
        out = []
        window = []
        for it in self.items:
            if it[0] == "ins":
                ins = it[1]
                missing = self._missing(window, ins)
                if missing > 0:
                    total += missing
                    while missing > 0:
                        k = min(missing, 16)
                        nop = Ins(f"s_nop {k-1}")
                        out.append(("ins", nop))
                        window.append(nop)
                        missing -= k
                out.append(it)
                window.append(ins)
                if ins.mn in ("s_branch", "s_endpgm", "s_setpc_b64"):
                    window = []
                window = window[-40:]
            else:
                out.append(it)
        self.items = out
        for _ in range(4):
            labels = {it[1]: i for i, it in enumerate(self.items) if it[0] == "label"}
            changed = False
            for i, it in enumerate(self.items):
                if it[0] != "ins":
                    continue
                ins = it[1]
                if not (ins.mn == "s_branch" or ins.mn.startswith("s_cbranch")):
                    continue
                tgt = ins.ops[0]
                if tgt not in labels:
                    raise ValueError("unknown label " + tgt)
                win = []
                j = i
                while j >= 0 and len(win) < 30:
                    if self.items[j][0] == "ins":
                        w = self.items[j][1]
                        if j != i and w.mn in ("s_branch", "s_endpgm"):
                            break
                        win.append(w)
                    j -= 1
                win.reverse()
                worst = 0
                j = labels[tgt]
                cnt = 0
                w2 = list(win)
                used = 0
                while j < len(self.items) and used < MAXW + 2:
                    if self.items[j][0] == "ins":
                        x = self.items[j][1]
                        m = self._missing(w2, x)
                        worst = max(worst, m)
                        w2.append(x)
                        used += x.nop if x.cls == "nop" else 1
                        if x.mn in ("s_branch", "s_endpgm"):
                            break
                    j += 1
                if worst > 0:
                    total += worst
                    self.items.insert(i, ("ins", Ins(f"s_nop {worst-1}")))
                    changed = True
                    break
            if not changed:
                break
        else:
            pass
        if verbose:
            print("hazard pass inserted", total, "wait states")
        return total

    @staticmethod
    def _missing(window, ins):
        dist = 0
        missing = 0
        for p in reversed(window):
            if dist >= MAXW:
                break
            n = need(p, ins)
            if n > dist:
                missing = max(missing, n - dist)
            dist += p.nop if p.cls == "nop" else 1
        return missing

    def text(self):
        out = []
        for it in self.items:
            if it[0] == "raw":
                out.append(it[1])
            elif it[0] == "label":
                out.append(it[1] + ":")
            else:
                out.append("    " + it[1].text)
        return "\n".join(out) + "\n"


def kernel_header(asm, name):
    asm.raw(f".globl {name}\n.p2align 8\n.type {name},@function")
    asm.label(name)


def kernel_descriptor(name, vgpr, agpr=0, sgpr=102, accum=None):
    if accum is None:
        accum = (vgpr + 3) // 4 * 4
    nfv = accum + agpr if agpr else vgpr
    return f""".section .rodata,"a"
.p2align 6
.amdhsa_kernel {name}
  .amdhsa_next_free_vgpr {nfv}
  .amdhsa_next_free_sgpr {sgpr}
  .amdhsa_accum_offset {max(accum,4)}
  .amdhsa_group_segment_fixed_size 0
  .amdhsa_kernarg_size 72
  .amdhsa_user_sgpr_count 2
  .amdhsa_user_sgpr_kernarg_segment_ptr 1
  .amdhsa_system_sgpr_workgroup_id_x 1
  .amdhsa_float_denorm_mode_32 3
.end_amdhsa_kernel
"""


def add_timing(A, kernels, ws_arg=64, t_off=60 << 20):
    out = []
    kidx = -1
    for it in A.items:
        if it[0] == "label" and it[1] in kernels:
            kidx = kernels.index(it[1])
            out.append(it)
            for ln in ["s_memrealtime s[92:93]", "s_mov_b32 s96, s2", "v_readfirstlane_b32 s97, v0", "s_lshr_b32 s97, s97, 6"] + [f"s_mov_b32 s{r}, 0" for r in range(80, 92)]:
                out.append(("ins", Ins(ln)))
            continue
        if it[0] == "ins" and it[1].mn == "s_endpgm" and kidx >= 0:
            txt = f"""s_mov_b64 exec, -1
            s_waitcnt vmcnt(0) lgkmcnt(0)
            s_memrealtime s[94:95]
            s_load_dwordx2 s[98:99], s[0:1], {ws_arg}
            s_min_u32 s96, s96, 1023
            s_add_u32 s96, s96, {kidx*1024}
            s_lshl_b32 s96, s96, 4
            s_add_u32 s96, s96, s97
            s_lshl_b32 s96, s96, 6
            s_add_u32 s96, s96, {t_off}
            s_waitcnt lgkmcnt(0)
            v_mov_b32 v0, s96
            v_mov_b32 v2, s92
            v_mov_b32 v3, s93
            v_mov_b32 v4, s94
            v_mov_b32 v5, s95
            global_store_dwordx4 v0, v[2:5], s[98:99]"""
            for q in range(3):
                for i_ in range(4):
                    txt += f"\nv_mov_b32 v{6+4*q+i_}, s{80+4*q+i_}"
                txt += f"\nglobal_store_dwordx4 v0, v[{6+4*q}:{9+4*q}], s[98:99] offset:{16+16*q}"
            txt += "\ns_endpgm"
            for ln in txt.split("\n"):
                out.append(("ins", Ins(ln.strip())))
            continue
        out.append(it)
    A.items = out


def stamp(A, cfg, i, cyc=False):
    if cfg.get('stamps'):
        A(f"s_mem{'time' if cyc else 'realtime'} s[{80+2*i}:{81+2*i}]")
```

```python
import sys
sys.path.insert(0,'gen')
from asmlib import *
from layout import *
from k1 import *
from f2 import *
from gemm import *
from k4 import *
from gemm2 import *
from gemm3 import gen_gemm3
from gemm4 import gen_gemm4
import gemm4

K3MAP = {
 0: '''s_and_b32 s22, s20, 3
    s_lshl_b32 s22, s22, 2
    s_and_b32 s23, s21, 3
    s_add_u32 s22, s22, s23          ; rb
    s_lshr_b32 s23, s20, 2
    s_lshl_b32 s23, s23, 3
    s_lshr_b32 s24, s21, 2
    s_add_u32 s23, s23, s24          ; cb''',
 1: '''s_lshl_b32 s22, s20, 1
    s_and_b32 s23, s21, 1
    s_add_u32 s22, s22, s23
    s_lshr_b32 s23, s21, 1''',
 3: '''s_lshr_b32 s22, s20, 1
    s_lshl_b32 s22, s22, 2
    s_and_b32 s23, s21, 3
    s_add_u32 s22, s22, s23
    s_lshr_b32 s23, s21, 2
    s_and_b32 s24, s20, 1''',
 2: '''s_lshr_b32 s22, s20, 1
    s_lshl_b32 s22, s22, 2
    s_and_b32 s23, s21, 3
    s_add_u32 s22, s22, s23
    s_lshr_b32 s23, s21, 2
    s_lshl_b32 s23, s23, 1
    s_and_b32 s24, s20, 1
    s_add_u32 s23, s23, s24''',
}

def build(path, cfg=None):
    cfg = cfg or {}
    v4 = cfg.get('v4', False)
    s2 = cfg.get('s2', False) or v4
    fused = cfg.get('fused', False) or s2
    A = Asm()
    hdr = """; recurrent_scan / spectral gfnet / dense silu
; @launch kernel=k1_kernel grid=(512,1,1) block=(256,1,1) lds=33024
; @launch kernel=k2_kernel grid=(256,1,1) block=(512,1,1) lds=147456
"""
    if not fused:
        hdr += "; @launch kernel=k4_kernel grid=(256,1,1) block=(256,1,1) lds=16384\n"
    hdr += f"; @launch kernel=k3_kernel grid=(256,1,1) block=(512,1,1) lds={gemm4.LDS_K3 if v4 else 163840 if fused else 147456}"
    A.raw(hdr)
    A.raw('.amdgcn_target "amdgcn-amd-amdhsa--gfx950"\n.text')
    kernel_header(A, "k1_kernel")
    gen_k1(A, "k1", dict(st=cfg.get('st1', ''), stamps=cfg.get('stamps'), pfw1=cfg.get('k1w1'), pfw2=cfg.get('k1w2')))
    kernel_header(A, "k2_kernel")
    A(f"""
    s_cmp_ge_u32 s2, 256
    s_cbranch_scc1 k2_done
    s_and_b32 s20, s2, 7
    s_lshr_b32 s21, s2, 3
    s_cmp_ge_u32 s21, 28
    s_cbranch_scc1 k2_f2
    s_and_b32 s22, s20, 1
    s_lshl_b32 s22, s22, 2
    s_and_b32 s23, s21, 3
    s_add_u32 s22, s22, s23          ; mb
    s_lshr_b32 s23, s20, 1
    s_mul_i32 s23, s23, 7
    s_lshr_b32 s24, s21, 2
    s_add_u32 s23, s23, s24          ; nb
    s_mov_b32 s24, 0
    """)
    gen_gemm(A, "g1", dict(mode='g1', pfw2=cfg.get('k2w2'), poison=s2, hfrag=v4, relayw2=cfg.get('wimg'), stamps=cfg.get('stamps'), st=cfg.get('st2', ''), timing=cfg.get('timing', False), snake=cfg.get('snake', True)))
    A.label("k2_f2")
    A(f"""
    s_load_dwordx2 s[6:7], s[0:1], {ARG_WS}
    v_readfirstlane_b32 s25, v0
    v_and_b32 v1, 63, v0
    s_lshr_b32 s25, s25, 6
    s_lshl_b32 s26, s20, 2
    s_sub_u32 s21, s21, 28
    s_add_u32 s26, s26, s21
    s_waitcnt lgkmcnt(0)
    """)
    gen_f2(A, "f2", dict(st=cfg.get('stf2', ''), stamps=cfg.get('stamps')))
    A.label("k2_done")
    A("s_endpgm")
    names = ['k1_kernel','k2_kernel']
    if not fused:
        kernel_header(A, "k4_kernel")
        gen_k4(A, "k4", dict(st=cfg.get('st4', ''), stamps=cfg.get('stamps'), f3only=True))
        names.append('k4_kernel')
    kernel_header(A, "k3_kernel")
    names.append('k3_kernel')
    A(f"""
    s_cmp_ge_u32 s2, 256
    s_cbranch_scc1 k3_done
    s_and_b32 s20, s2, 7             ; xcd
    s_lshr_b32 s21, s2, 3            ; slot
    {K3MAP[3 if s2 else cfg.get('map3', 0)]}
    s_lshl_b32 s20, s20, 5
    s_add_u32 s20, s20, s21          ; rho
    """)
    g2cfg = dict(stamps=cfg.get('stamps'), st=cfg.get('st3', ''), pf=cfg.get('pf'), fakew=cfg.get('fakew'))
    if v4:
        g2cfg['wimg'] = bool(cfg.get('wimg'))
        for k_ in ('fixx', 'fixw'): g2cfg[k_] = cfg.get(k_)
        gen_gemm4(A, "g4", g2cfg)
    elif s2:
        gen_gemm3(A, "g3", g2cfg)
    else:
        if fused:
            from f3 import make_f3
            g2cfg['f3'] = make_f3(cfg)
        gen_gemm2(A, "g2", g2cfg)
    A.label("k3_done")
    A("s_endpgm")
    if cfg.get('stamps'):
        add_timing(A, names)
    A.fix_hazards(verbose=True)
    txt = A.text()
    txt += kernel_descriptor("k1_kernel", 224)
    txt += kernel_descriptor("k2_kernel", 256)
    txt += kernel_descriptor("k3_kernel", 192, agpr=64, accum=192)
    if not fused:
        txt += kernel_descriptor("k4_kernel", 256)
    txt += table_text("tab_f1", f1_table()) + table_text("tab_f2", f2_table()) + table_text("tab_f3", f3_table())
    open(path, 'w').write(txt)
    print(path, len(txt), 'bytes')

if __name__ == '__main__':
    E = 'exp/'
    build(E+'c1.s', dict(v4=True, wimg=True))
    build(E+'c1_t.s', dict(stamps=True, v4=True, wimg=True))
    build(E+'d1_t.s', dict(stamps=True, v4=True, wimg=True, fixw=True))
    build(E+'d2_t.s', dict(stamps=True, v4=True, wimg=True, fixx=True))
    build(E+'d3_t.s', dict(stamps=True, v4=True, wimg=True, fixx=True, fixw=True))
```

```python
import numpy as np

L = np.arange(64)
LI = L & 31
HI = L >> 5
JJ = np.arange(8)


def bf16_round(x):
    x = np.asarray(x, dtype=np.float32)
    u = x.view(np.uint32).astype(np.uint64)
    r = (u + 0x7FFF + ((u >> 16) & 1)) >> 16
    return r.astype(np.uint16)


def bf16_to_f32(h):
    return (h.astype(np.uint32) << 16).view(np.float32)


def kstd(t):
    return 16 * t + 8 * HI[:, None] + JJ[None, :]


def kperm(beta):
    return 16 * beta + 8 * (JJ[None, :] >> 2) + 4 * HI[:, None] + (JJ[None, :] & 3)


def w(num, den):
    return np.exp(-2j * np.pi * (np.asarray(num) % den) / den)


def pack_frag(vals):
    h = bf16_round(vals).astype(np.uint32)
    return h[:, 0::2] | (h[:, 1::2] << 16)


def dreg_index():
    reg = np.arange(16)
    return 8 * (reg[None, :] >> 2) + 4 * HI[:, None] + (reg[None, :] & 3)


def f1_tables():
    fr = {}
    free = LI[:, None]
    for t in range(2):
        a = kstd(t)
        c = w(a * free, 32)
        fr['B1r', t] = c.real
        fr['B1i', t] = c.imag
    po = (LI >> 4)[:, None]
    k2 = (LI & 15)[:, None]
    for beta in range(2):
        b = kperm(beta)
        c = w(b * k2, 32)
        fr['A2', 0, beta] = np.where(po == 0, c.real, c.imag)
        fr['A2', 1, beta] = np.where(po == 0, -c.imag, c.real)
    tw = w(dreg_index() * free, 1024)
    return fr, tw


def f3_tables(scale):
    fr = {}
    free = LI[:, None]
    for t in range(2):
        kap = kstd(t)
        k2 = kap >> 1
        part = kap & 1
        c = np.conj(w(k2 * free, 32))
        fr['BAr', t] = np.where(part == 0, c.real, -c.imag)
        fr['BAi', t] = np.where(part == 0, c.imag, c.real)
    for beta in range(2):
        k1 = kperm(beta)
        c = np.conj(w(k1 * free, 32)) * scale
        fr['BB', 0, beta] = c.real
        fr['BB', 1, beta] = -c.imag
    tw = np.conj(w(dreg_index() * free, 1024))
    return fr, tw


def f2_tables():
    fr = {}
    free = LI[:, None]
    for g in range(2):
        p = kperm(g)
        for qb in range(2):
            c = w(p * free, 32) * w(qb * free, 64)
            fr['B1', g, qb] = c
    for a in range(2):
        for b in range(2):
            for beta in range(2):
                fr['F64', a, b, beta] = w((32 * a + free) * (32 * b + kperm(beta)), 64)
    for qb in range(2):
        for beta in range(2):
            l1 = kperm(beta)
            fr['A4', qb, beta] = np.conj(w(qb * l1, 64) * w(free * l1, 32))
    tw = w(dreg_index() * free, 2048)
    return fr, tw


def row_of(rho, j):
    gam = rho >> 7
    qb = (rho >> 6) & 1
    hi = (rho >> 5) & 1
    qi = rho & 31
    p = 16 * gam + 8 * (j >> 2) + 4 * hi + (j & 3)
    return 64 * p + 32 * qb + qi
```

```python
from asmlib import *
from layout import *
from consts import *
from k1 import srd_from, srd_table, tw_quads, table_text
import numpy as np

NFR = 42
def f2_table():
    fr, tw = f2_tables()
    fl = []
    def tri(c):
        return [c.real, c.imag, -c.imag]
    for g in range(2):
        for qb in range(2):
            fl += tri(fr['B1', g, qb])
    for a in range(2):
        for b in range(2):
            for beta in range(2):
                fl += tri(fr['F64', a, b, beta])
    for beta in range(2):
        fl += tri(fr['A4', 1, beta])
    assert len(fl) == NFR
    a = np.stack([pack_frag(f) for f in fl])
    return np.concatenate([a.reshape(-1), tw_quads(tw.real, tw.imag).reshape(-1)])

def iB1(g, qb): return (g * 2 + qb) * 3
def iF64(a, b, beta): return 12 + ((a * 2 + b) * 2 + beta) * 3
def iA4(beta): return 36 + beta * 3
R_, I_, N_ = 0, 1, 2


def schedule(A, groups, blocks, per_gap, tail=()):
    done = set()
    pend = [dict(b, pos=0) for b in blocks]
    nm = 0
    gend = {}
    def emit_block(b, n=None):
        k = 0
        while b['pos'] < len(b['ins']) and (n is None or k < n):
            A(b['ins'][b['pos']]); b['pos'] += 1; k += 1
        if b['pos'] == len(b['ins']):
            done.add(b['name'])
        return k
    def avail(b):
        a = b['after']
        return a in gend and nm >= gend[a] + b.get('delay', 1)
    def fill(n):
        for b in pend:
            if b['name'] in done:
                continue
            if not avail(b):
                break
            n -= emit_block(b, n)
            if n <= 0:
                break
    for gi, g in enumerate(groups):
        for d in g.get('deps', []):
            for b in pend:
                if b['name'] in done: continue
                assert b['after'] in gend, (gi, d, b['name'])
                emit_block(b)
                if b['name'] == d: break
            assert d in done
        for p in g.get('pre', []): A(p)
        A("s_waitcnt lgkmcnt(0)")
        for mi, m in enumerate(g['mf']):
            A(m); nm += 1
            if mi == 0 and gi + 1 < len(groups):
                for r in groups[gi + 1]['reads']: A(r)
                fill(max(0, per_gap - 3))
            else:
                fill(per_gap)
        gend[gi] = nm
        for p in g.get('post', []): A(p)
    for b in pend:
        if b['name'] not in done: emit_block(b)
    for t in tail: A(t)


def gen_f2(A, name, cfg):
    L = name
    ST = cfg.get('st', '')
    per_gap = cfg.get('per_gap', 5)
    XI = 8
    DA, DB = 40, 72
    PA = 104
    PB = 136
    W = 152
    T0 = 184
    CB = [216, 228]
    TMP = 240
    vL16, vL64, vLds = 2, 3, 4
    A(f"""
    v_lshlrev_b32 v{vL16}, 4, v1
    v_lshlrev_b32 v{vL64}, 6, v1
    """)
    srd_table(A, 16, "tab_f2", NFR * 1024 + 8192)
    srd_from(A, 8, 6, 7, X1_OFF, X1_SZ)
    srd_from(A, 12, 6, 7, WT_OFF, WT_SZ)
    srd_from(A, 20, 6, 7, Y1_OFF, Y1_SZ)
    A(f"""
    s_lshl_b32 s27, s26, 3
    s_add_u32 s27, s27, s25            ; cp
    s_lshl_b32 s40, s27, 14
    s_lshl_b32 s41, s27, 14
    s_add_u32 s42, s40, 32             ; col B
    s_add_u32 s43, s41, 8192
    s_mov_b32 s44, s42                 ; third
    s_mov_b32 s45, s43
    s_mov_b32 s46, 2
    s_cmp_eq_u32 s27, {cfg.get('extra_cp', 0)}
    s_cselect_b32 s44, {256*16384}, s44
    s_cselect_b32 s45, {512*8192}, s45
    s_cselect_b32 s46, 3, s46
    """)
    def xloads(so):
        out = []
        out.append(f"s_add_u32 s47, {so}, 4096")
        out.append(f"s_add_u32 s48, {so}, 8192")
        out.append(f"s_add_u32 s49, {so}, 12288")
        for qb in range(2):
            for g in range(2):
                sreg = [so, "s47", "s48", "s49"][g * 2 + qb]
                for part in range(2):
                    r = XI + ((qb * 2 + g) * 2 + part) * 4
                    out.append(f"buffer_load_dwordx4 {v(r,4)}, v{vL64}, s[8:11], {sreg} offen offset:{16*part}")
        return out
    def wloads(so):
        out = [f"s_add_u32 s50, {so}, 4096"]
        for blk in range(2):
            for g in range(4):
                out.append(f"buffer_load_dwordx4 {v(W+16*blk+4*g,4)}, v{vL16}, s[12:15], {so if blk == 0 else 's50'} offen offset:{1024*g}")
        return out
    for t in xloads("s40"): A(t)
    for t in wloads("s41"): A(t)
    for i in range(6):
        A(f"s_add_u32 s28, s25, {8*i}")
        if i == 5:
            A(f"s_min_u32 s28, s28, {NFR-1}")
        A(f"s_lshl_b32 s28, s28, 10")
        A(f"s_mov_b32 m0, s28")
        A(f"buffer_load_dwordx4 v{vL16}, s[16:19], s28 offen lds")
    A(f"s_mov_b32 s28, {NFR*1024}\ns_add_u32 s29, s28, 4096")
    for i in range(8):
        A(f"buffer_load_dwordx4 {v(T0+4*i,4)}, v{vL16}, s[16:19], {'s28' if i < 4 else 's29'} offen offset:{1024*(i&3)}")
    A(f"v_mov_b32 v{vLds}, v{vL16}")
    A("s_mov_b32 s34, 0xffff0000")
    A("s_waitcnt vmcnt(0)")
    A("s_barrier")
    stamp(A, cfg, 0); stamp(A, cfg, 2, True)

    def creads(setn, base, order=(R_, I_, N_)):
        return [f"ds_read_b128 {v(CB[setn]+4*k,4)}, v{vLds} offset:{(base+order[k])*1024}" for k in range(3)]
    CONJ = (R_, N_, I_)
    def mf(D, X, setn, first, constA):
        cr, ci, cn = (v(CB[setn] + 4 * k, 4) for k in range(3))
        Dr, Di = v(D, 16), v(D + 16, 16)
        xr, xi = v(X[0], 4), v(X[1], 4)
        def one(d, x, c, zero):
            a, b = (c, x) if constA else (x, c)
            return f"v_mfma_f32_32x32x16_bf16 {d}, {a}, {b}, {'0' if zero else d}"
        return [one(Dr, xr, cr, first), one(Di, xr, ci, first), one(Dr, xi, cn, False), one(Di, xi, cr, False)]
    groups = []
    def add(reads_base, order, D, X, first, constA, deps=(), **kw):
        n = len(groups) & 1
        groups.append(dict(reads=creads(n, reads_base, order), mf=mf(D, X, n, first, constA), deps=list(deps), **kw))
    Dq = [DA, DB]
    xin = lambda g, qb: (XI + ((qb * 2 + g) * 2) * 4, XI + ((qb * 2 + g) * 2 + 1) * 4)
    Tp = lambda qb, b: (PA + ((qb * 2 + b) * 2) * 4, PA + ((qb * 2 + b) * 2 + 1) * 4)
    Pp = lambda blk, b: ((PB if blk == 0 else PA) + (b * 2) * 4, (PB if blk == 0 else PA) + (b * 2 + 1) * 4)
    Up = lambda qb, b: ((PA + 16 if qb == 0 else PB) + (b * 2) * 4, (PA + 16 if qb == 0 else PB) + (b * 2 + 1) * 4)
    for qb in range(2):
        for g in range(2):
            add(iB1(g, qb), (R_, I_, N_), Dq[qb], xin(g, qb), g == 0, False)
    groups[3]['post'] = xloads("s42")
    for blk in range(2):
        for qb in range(2):
            for b in range(2):
                deps = []
                if blk == 0 and b == 0: deps = [f"TW{qb}"]
                add(iF64(blk, qb, b), (R_, I_, N_), Dq[blk], Tp(qb, b), qb == 0 and b == 0, True, deps)
    for qb in range(2):
        for blk in range(2):
            for b in range(2):
                deps = []
                if qb == 0 and b == 0: deps = [f"WM{blk}"]
                add(iF64(qb, blk, b), CONJ, Dq[qb], Pp(blk, b), blk == 0 and b == 0, False, deps)
    groups[14]['post'] = wloads("s43")
    for qb in range(2):
        for b in range(2):
            deps = [f"TI{qb}"] if b == 0 else []
            if qb == 0:
                add(iB1(b, 0), CONJ, Dq[0], Up(0, b), b == 0, True, deps)
            else:
                add(iA4(b), (R_, I_, N_), Dq[1], Up(1, b), b == 0, True, deps)
    blocks = []
    def tw_block(nm, D, dst, after, conj):
        ins = []
        Dr, Di = D, D + 16
        for e in range(16):
            t1, t2 = TMP + 2 * (e & 1), TMP + 2 * (e & 1) + 1
            br, bi = T0 + e, T0 + 16 + e
            ins.append(f"v_mul_f32 v{t1}, v{Di+e}, v{bi}")
            ins.append(f"v_mul_f32 v{t2}, v{Di+e}, v{br}")
            if not conj:
                ins.append(f"v_fma_f32 v{Di+e}, v{Dr+e}, v{bi}, v{t2}")
                ins.append(f"v_fma_f32 v{Dr+e}, v{Dr+e}, v{br}, -v{t1}")
            else:
                ins.append(f"v_fma_f32 v{Di+e}, -v{Dr+e}, v{bi}, v{t2}")
                ins.append(f"v_fma_f32 v{Dr+e}, v{Dr+e}, v{br}, v{t1}")
            if e & 1:
                b, q = e >> 3, (e & 7) >> 1
                ins.append(f"v_cvt_pk_bf16_f32 v{dst(b)[0]+q}, v{Dr+e-1}, v{Dr+e}")
                ins.append(f"v_cvt_pk_bf16_f32 v{dst(b)[1]+q}, v{Di+e-1}, v{Di+e}")
        blocks.append(dict(name=nm, ins=ins, after=after, delay=2))
    def wm_block(nm, D, blk, after):
        ins = []
        if blk == 0:
            ins.append("s_waitcnt vmcnt(8)")
        Dr, Di = D, D + 16
        for e in range(16):
            o = 4 * (e & 1)
            t1, t2, wr, wi = TMP + o, TMP + o + 1, TMP + o + 2, TMP + o + 3
            w = W + 16 * blk + e
            ins.append(f"v_lshlrev_b32 v{wr}, 16, v{w}")
            ins.append(f"v_and_b32 v{wi}, s34, v{w}")
            ins.append(f"v_mul_f32 v{t1}, v{Di+e}, v{wi}")
            ins.append(f"v_mul_f32 v{t2}, v{Di+e}, v{wr}")
            ins.append(f"v_fma_f32 v{Di+e}, v{Dr+e}, v{wi}, v{t2}")
            ins.append(f"v_fma_f32 v{Dr+e}, v{Dr+e}, v{wr}, -v{t1}")
            if e & 1:
                b, q = e >> 3, (e & 7) >> 1
                ins.append(f"v_cvt_pk_bf16_f32 v{Pp(blk,b)[0]+q}, v{Dr+e-1}, v{Dr+e}")
                ins.append(f"v_cvt_pk_bf16_f32 v{Pp(blk,b)[1]+q}, v{Di+e-1}, v{Di+e}")
        blocks.append(dict(name=nm, ins=ins, after=after, delay=2))
    def out_block(nm, D, qb, after):
        ins = []
        base = PA if qb == 0 else PA + 16
        for part in range(2):
            for g in range(2):
                r = base + (part * 2 + g) * 4
                for q in range(4):
                    s_ = D + 16 * part + 8 * g + 2 * q
                    ins.append(f"v_cvt_pk_bf16_f32 v{r+q}, v{s_}, v{s_+1}")
                so = ["s51", "s52", "s53", "s54"][g * 2 + qb]
                ins.append(f"buffer_store_dwordx4 {v(r,4)}, v{vL64}, s[20:23], {so} offen offset:{16*part}{ST}")
        blocks.append(dict(name=nm, ins=ins, after=after, delay=2))
    tw_block("TW0", DA, lambda b: Tp(0, b), 1, False)
    tw_block("TW1", DB, lambda b: Tp(1, b), 3, False)
    wm_block("WM0", DA, 0, 7)
    wm_block("WM1", DB, 1, 11)
    tw_block("TI0", DA, lambda b: Up(0, b), 15, True)
    tw_block("TI1", DB, lambda b: Up(1, b), 19, True)
    out_block("OUT0", DA, 0, 21)
    out_block("OUT1", DB, 1, 23)

    A.label(f"{L}_col")
    A(f"""
    s_mov_b32 s51, s40
    s_add_u32 s52, s40, 4096
    s_add_u32 s53, s40, 8192
    s_add_u32 s54, s40, 12288
    """)
    for r in groups[0]['reads']: A(r)
    A("s_waitcnt vmcnt(8)")
    schedule(A, groups, blocks, per_gap)
    A(f"""
    s_mov_b32 s40, s42
    s_mov_b32 s41, s43
    s_mov_b32 s42, s44
    s_mov_b32 s43, s45
    s_sub_u32 s46, s46, 1
    s_cmp_lg_u32 s46, 0
    s_cbranch_scc1 {L}_col
    """)
    stamp(A, cfg, 1); stamp(A, cfg, 3, True)
    A("s_endpgm")
```

```python
from asmlib import *
from layout import *
from k1 import srd_from, srd_table

STG = 147456

class F3:
    TAB, TW, YP, RD, SP = 16, 48, 80, 96, 176
    D1 = [112, 144]
    T = [8, 9, 10, 11, 12, 13]

    def __init__(self, cfg):
        self.cfg = cfg

    def setup(self, A):
        srd_from(A, 36, 8, 9, Y1_OFF, Y1_SZ)
        srd_from(A, 48, 8, 9, S_OFF, S_SZ)
        srd_table(A, 44, "tab_f3", 16384)
        A(f"""
        s_lshl_b32 s60, s25, 6
        v_add_u32 v176, s60, v1
        v_lshrrev_b32 v177, 2, v176
        v_lshlrev_b32 v177, 14, v177
        v_and_b32 v178, 3, v176
        v_lshlrev_b32 v178, 4, v178
        v_add_u32 v177, v177, v178           ; Y voffset
        s_lshl_b32 s60, s20, 6               ; rho*64
        s_add_u32 s61, s60, {1*MB}
        s_add_u32 s62, s60, {2*MB}
        s_add_u32 s63, s60, {3*MB}
        s_add_u32 s64, s60, {4*MB}
        s_lshl_b32 s65, s25, 2
        s_add_u32 s64, s64, s65
        v_mov_b32 v179, 0
        v_and_b32 v14, 1, v176
        v_lshlrev_b32 v14, 13, v14
        v_lshrrev_b32 v178, 1, v176
        v_lshlrev_b32 v178, 4, v178
        v_add_u32 v14, v14, v178
        v_add_u32 v14, {STG}, v14
        v_and_b32 v15, 31, v1
        v_lshlrev_b32 v15, 4, v15
        v_lshrrev_b32 v178, 5, v1
        v_lshlrev_b32 v178, 11, v178
        v_add_u32 v15, v15, v178
        s_add_u32 s65, s65, {STG}
        v_add_u32 v15, s65, v15
        v_lshlrev_b32 v180, 4, v1
        v_add_u32 v180, {STG}, v180
        s_lshl_b32 s65, s25, 12
        s_add_u32 s66, s65, {STG}
        s_mov_b32 s67, 0x05040100
        s_mov_b32 s68, 0x07060302
        s_mov_b32 s69, 0xffff0000
        """)

    def pro_vm(self, vlane16):
        r = ["s_mov_b32 m0, s66"]
        for i in range(4):
            r.append(f"buffer_load_dwordx4 v{vlane16}, s[44:47], s65 offen offset:{1024*i} lds")
        for i in range(4):
            r.append(f"buffer_load_dwordx4 {v(self.YP+4*i,4)}, v177, s[36:39], s{60+i} offen")
        r.append("buffer_load_dword v7, v179, s[36:39], s64 offen")
        return r

    def streams(self):
        TAB, TW, YP, RD, SP, D1, T = self.TAB, self.TW, self.YP, self.RD, self.SP, self.D1, self.T
        st = []
        s0 = [f"ds_read_b128 {v(TAB+4*i,4)}, v180 offset:{1024*i}" for i in range(16)]
        st.append((s0, ["s_waitcnt lgkmcnt(0)"]))
        st.append(([f"ds_write_b128 v14, {v(YP+4*i,4)} offset:{2048*i}" for i in range(4)], ["s_waitcnt lgkmcnt(0)"]))
        s2 = []
        for t in range(2):
            for q in range(4):
                o0 = 2 * (8 * t + q)
                s2.append(f"ds_read2st64_b32 {v(RD+8*t+2*q,2)}, v15 offset0:{o0} offset1:{o0+32}")
        AF = YP
        s2 += [None] * 6
        s2.append("s_waitcnt lgkmcnt(0)")
        for t in range(2):
            for q in range(4):
                a_, b_ = RD + 8*t + 2*q, RD + 8*t + 2*q + 1
                s2.append(f"v_perm_b32 v{AF+4*t+q}, v{b_}, v{a_}, s67")
                s2.append(f"v_perm_b32 v{AF+8+4*t+q}, v{b_}, v{a_}, s68")
        for t in range(2):
            for r in range(2):
                for part in range(2):
                    d = v(D1[r] + 16*part, 16)
                    s2.append(f"v_mfma_f32_32x32x16_bf16 {d}, {v(AF+8*r+4*t,4)}, {v(TAB+8*part+4*t,4)}, {'0' if t == 0 else d}")
        st.append((s2, []))
        PK = [RD, YP]
        for r in range(2):
            s_ = []
            Dr, Di = D1[r], D1[r] + 16
            for e in range(16):
                t1, t2 = T[(e & 1) * 2], T[(e & 1) * 2 + 1]
                s_.append(f"v_mul_f32 v{t1}, v{Di+e}, v{TW+16+e}")
                s_.append(f"v_mul_f32 v{t2}, v{Di+e}, v{TW+e}")
                s_.append(f"v_fma_f32 v{Di+e}, v{Dr+e}, v{TW+16+e}, v{t2}")
                s_.append(f"v_fma_f32 v{Dr+e}, v{Dr+e}, v{TW+e}, -v{t1}")
                if e & 1:
                    b, q = e >> 3, (e & 7) >> 1
                    s_.append(f"v_cvt_pk_bf16_f32 v{PK[r]+4*b+q}, v{Dr+e-1}, v{Dr+e}")
                    s_.append(f"v_cvt_pk_bf16_f32 v{PK[r]+8+4*b+q}, v{Di+e-1}, v{Di+e}")
            st.append((s_, []))
        s5 = []
        seq = [(pin, b) for pin in range(2) for b in range(2)]
        for k, (pin, b) in enumerate(seq):
            for r in range(2):
                d = v(D1[r], 16)
                s5.append(f"v_mfma_f32_32x32x16_bf16 {d}, {v(PK[r]+8*pin+4*b,4)}, {v(TAB+16+8*pin+4*b,4)}, {'0' if k == 0 else d}")
        s5 += [f"v_lshlrev_b32 v{T[4]}, 16, v7", f"v_and_b32 v{T[5]}, s69, v7",
               f"v_mul_f32 v{T[4]}, 0x35000000, v{T[4]}", f"v_mul_f32 v{T[5]}, 0x35000000, v{T[5]}",
               "v_and_b32 v14, 31, v1", "v_lshlrev_b32 v14, 6, v14", "v_lshrrev_b32 v15, 5, v1", "v_lshlrev_b32 v15, 4, v15",
               "v_add_u32 v14, v14, v15",
               "s_lshl_b32 s60, s20, 3", "s_lshl_b32 s61, s25, 1", "s_add_u32 s60, s60, s61", "s_lshl_b32 s60, s60, 11",
               "s_add_u32 s61, s60, 2048"]
        st.append((s5, []))
        s6 = []
        for r in range(2):
            for e in range(16):
                s6.append(f"v_{'add' if e % 2 == 0 else 'sub'}_f32 v{D1[r]+e}, v{D1[r]+e}, v{T[4+r]}")
            for t in range(2):
                base = SP + 8*r + 4*t
                for h in range(2):
                    for i in range(2):
                        e = 4 * (2*t + h) + 2*i
                        s6.append(f"v_cvt_pk_bf16_f32 v{base+2*h+i}, v{D1[r]+e}, v{D1[r]+e+1}")
                s6.append(f"v_permlane32_swap_b32 v{base}, v{base+2}")
                s6.append(f"v_permlane32_swap_b32 v{base+1}, v{base+3}")
        for r in range(2):
            for t in range(2):
                base = SP + 8*r + 4*t
                s6.append(f"buffer_store_dwordx4 {v(base,4)}, v14, s[48:51], s{60+r} offen offset:{32*t} sc1")
        st.append((s6, []))
        return st

    def signal(self, A, L):
        A(f"""
        s_cmp_lg_u32 s25, 0
        s_cbranch_scc1 {L}_nosig
        s_lshr_b32 s60, s20, 4
        s_lshl_b32 s60, s60, 2
        v_mov_b32 v8, s60
        v_mov_b32 v9, 1
        s_mov_b64 exec, 1
        global_atomic_add v8, v9, s[54:55] sc1
        s_mov_b64 exec, -1
        {L}_nosig:
        """)

def make_f3(cfg):
    return F3(cfg)
```

```python
from asmlib import *
from layout import *
from k1 import srd_from

STAGE = 49152
XSZ = 32768

def gen_gemm(A, name, cfg):
    mode = cfg['mode']
    NS = cfg.get('nst', 3)
    L = name
    timing = cfg.get('timing', False)
    agpr = cfg.get('agpr', False)
    snake = cfg.get('snake', True)
    ST = cfg.get('st', '')
    if mode == 'g1':
        KSTEPS, WSTRIDE, w_arg, x_off, x_sz, w_sz = 16, 7168, ARG_W1, XN_OFF, XN_SZ, 1024 * 7168
    else:
        KSTEPS, WSTRIDE, w_arg, x_off, x_sz, w_sz = 14, 2048, ARG_W2, H_OFF, H_SZ, 3584 * 2048
    A(f"""
    s_load_dwordx2 s[6:7], s[0:1], {w_arg}
    s_load_dwordx2 s[8:9], s[0:1], {ARG_WS}
    v_readfirstlane_b32 s25, v0
    s_lshr_b32 s25, s25, 6
    v_and_b32 v1, 63, v0             ; lane
    s_waitcnt lgkmcnt(0)
    """)
    if timing:
        A("s_memrealtime s[60:61]")
    A(f"""
    s_cmp_ge_u32 s25, 4
    s_cbranch_scc1 {L}_loader
    """)
    if agpr:
        XA, WA, XB, WB = 0, 32, 48, 80
        xa0, xa1, wa = 96, 97, 98
        lane, t0, t1, t2, t3 = 102, 103, 104, 105, 106
        acc = lambda i, n=1: a(i, n)
    else:
        XA, WA, XB, WB = 128, 160, 176, 208
        xa0, xa1, wa = 224, 225, 226
        lane, t0, t1, t2, t3 = 230, 231, 232, 233, 234
        acc = lambda i, n=1: v(i, n)
    A(f"""
    v_mov_b32 v{lane}, v1
    s_and_b32 s26, s25, 1            ; wm
    s_lshr_b32 s27, s25, 1           ; wf
    v_and_b32 v{t0}, 15, v{lane}     ; i = l&15
    v_lshrrev_b32 v{t1}, 4, v{lane}  ; G
    v_lshrrev_b32 v{t2}, 1, v{t0}    ; sw
    v_xor_b32 v{t2}, v{t2}, v{t1}    ; G ^ sw
    v_lshlrev_b32 v{t2}, 4, v{t2}
    v_lshlrev_b32 v{t3}, 7, v{t0}    ; row*128
    v_add_u32 v{t2}, v{t2}, v{t3}
    s_lshl_b32 s28, s26, 14          ; wm*128*128
    v_add_u32 v{xa0}, s28, v{t2}
    v_xor_b32 v{xa1}, 64, v{xa0}
    ; W addresses
    v_lshrrev_b32 v{t2}, 2, v{t0}    ; r'
    v_and_b32 v{t3}, 1, v{t1}
    v_lshlrev_b32 v{t3}, 2, v{t3}
    v_or_b32 v{t3}, v{t3}, v{t2}     ; f(k)
    v_lshlrev_b32 v{t1}, 3, v{t1}    ; 8G
    v_add_u32 v{t1}, v{t1}, v{t2}    ; 8G + r'
    v_lshlrev_b32 v{t1}, 8, v{t1}    ; *256
    v_and_b32 v{t0}, 3, v{t0}        ; cc
    v_lshlrev_b32 v{t0}, 3, v{t0}
    v_add_u32 v{t1}, v{t1}, v{t0}
    v_add_u32 v{t1}, {XSZ}, v{t1}
    s_lshl_b32 s28, s27, 2           ; wf*4
    """)
    for tf in range(4):
        A(f"""
        s_add_u32 s29, s28, {tf}
        v_xor_b32 v{t0}, s29, v{t3}
        v_lshlrev_b32 v{t0}, 5, v{t0}
        v_add_u32 v{wa+tf}, v{t0}, v{t1}
        """)
    for i in range(128):
        A(f"v_accvgpr_write_b32 a{i}, 0" if agpr else f"v_mov_b32 v{i}, 0")

    def reads(xset, wset, xreg, h):
        r = []
        xs = [f"ds_read_b128 {v(xset+4*tm,4)}, v{xreg} offset:{2048*tm}" for tm in range(8)]
        ws = []
        for tf in range(4):
            for u in range(2):
                ws.append(f"ds_read_b64_tr_b16 {v(wset+4*tf+2*u,2)}, v{wa+tf} offset:{h*8192+u*1024}")
        for i in range(8):
            r.append(ws[i]); r.append(xs[i])
        return r

    def unit(xset, wset, rd, extra=()):
        mf = []
        for tm in range(8):
            order = range(4) if (not snake or tm % 2 == 0) else range(3, -1, -1)
            for tf in order:
                d = acc(4*(tf*8+tm), 4)
                mf.append(f"v_mfma_f32_16x16x32_bf16 {d}, {v(wset+4*tf,4)}, {v(xset+4*tm,4)}, {d}")
        rd = list(rd); extra = list(extra)
        for i, m in enumerate(mf):
            A(m)
            if i < len(rd):
                A(rd[i])
            elif extra:
                A(extra.pop(0))
        for e in extra: A(e)

    if cfg.get('poison'):
        srd_from(A, 44, 8, 9, E_OFF, E_SZ)
        A(f"""
        s_mul_i32 s50, s22, 28
        s_add_u32 s50, s50, s23
        s_lshl_b32 s51, s50, 14
        s_lshl_b32 s28, s25, 12
        s_add_u32 s51, s51, s28
        v_lshlrev_b32 v{t0}, 4, v{lane}
        v_mov_b32 v240, -1
        v_mov_b32 v241, -1
        v_mov_b32 v242, -1
        v_mov_b32 v243, -1
        """)
        for i in range(4):
            A(f"buffer_store_dwordx4 v[240:243], v{t0}, s[44:47], s51 offen offset:{1024*i} sc1")
        A(f"""
        s_cmp_lt_u32 s50, 32
        s_cbranch_scc0 {L}_nopois
        s_add_u32 s51, s51, {224*16384}
        """)
        for i in range(4):
            A(f"buffer_store_dwordx4 v[240:243], v{t0}, s[44:47], s51 offen offset:{1024*i} sc1")
        A.label(f"{L}_nopois")
    if cfg.get('pfw2'):
        A(f"""
        s_load_dwordx2 s[48:49], s[0:1], {ARG_W2}
        s_mul_i32 s50, s22, 28
        s_add_u32 s50, s50, s23
        s_lshl_b32 s50, s50, 2
        s_add_u32 s50, s50, s25
        s_lshl_b32 s50, s50, 13
        s_add_u32 s51, s50, 4096
        v_lshlrev_b32 v{t0}, 6, v{lane}
        s_waitcnt lgkmcnt(0)
        """)
        srd_from(A, 52, 48, 49, 0, 3584 * 2048)
    A("s_barrier")
    stamp(A, cfg, 0); stamp(A, cfg, 2, True)
    if cfg.get('pfw2'):
        A(f"buffer_load_dword v236, v{t0}, s[52:55], s50 offen")
        A(f"buffer_load_dword v236, v{t0}, s[52:55], s51 offen")
    if timing:
        A("s_memtime s[66:67]")
        A("s_memrealtime s[70:71]")
    for r in reads(XA, WA, xa0, 0): A(r)
    A(f"""
    s_mov_b32 s30, 0                 ; step
    s_mov_b32 s31, 0
    s_waitcnt lgkmcnt(0)
    """)
    A.label(f"{L}_cloop")
    A(f"""
    s_add_u32 s32, s31, {STAGE}
    s_cmp_eq_u32 s32, {STAGE*NS}
    s_cselect_b32 s32, 0, s32
    s_sub_u32 s33, s32, s31          ; delta
    s_mov_b32 s31, s32
    """)
    unit(XA, WA, reads(XB, WB, xa1, 1))
    adv = [f"v_add_u32 v{xa0}, s33, v{xa0}"] + [f"v_add_u32 v{wa+t}, s33, v{wa+t}" for t in range(4)]
    for e in adv: A(e)
    A("s_waitcnt lgkmcnt(0)")
    A("s_barrier")
    unit(XB, WB, reads(XA, WA, xa0, 0), extra=[f"v_xor_b32 v{xa1}, 64, v{xa0}"])
    A(f"""
    s_add_u32 s30, s30, 1
    s_cmp_lt_u32 s30, {KSTEPS}
    s_waitcnt lgkmcnt(0)
    s_cbranch_scc1 {L}_cloop
    """)
    stamp(A, cfg, 1); stamp(A, cfg, 3, True)
    if timing:
        A("s_memrealtime s[62:63]")
        A("s_memtime s[68:69]")
    P = 0 if agpr else 128
    if mode == 'g1' and not cfg.get('hfrag'):
        srd_from(A, 12, 8, 9, H_OFF, H_SZ)
        A(f"""
        s_mul_i32 s28, s22, {56*32768}
        s_lshl_b32 s29, s23, 1
        s_add_u32 s29, s29, s27          ; s2
        s_lshl_b32 s29, s29, 15
        s_add_u32 s34, s28, s29
        s_lshl_b32 s28, s26, 14
        s_add_u32 s34, s34, s28
        v_and_b32 v{t0}, 15, v{lane}
        v_lshrrev_b32 v{t1}, 4, v{lane}  ; G
        v_and_b32 v{t2}, 1, v{t1}
        v_lshlrev_b32 v{t2}, 1, v{t2}
        v_lshrrev_b32 v{t1}, 1, v{t1}
        v_or_b32 v{t1}, v{t1}, v{t2}     ; cG
        v_lshrrev_b32 v{t2}, 1, v{t0}    ; sw
        v_xor_b32 v{t1}, v{t1}, v{t2}
        v_lshlrev_b32 v{t1}, 4, v{t1}
        v_lshlrev_b32 v{t0}, 7, v{t0}
        v_add_u32 v{xa0}, v{t0}, v{t1}
        v_xor_b32 v{xa1}, 64, v{xa0}
        s_mov_b32 s35, 0xbfb8aa3b        ; -log2(e)
        """)
        rowstep = 2048
    elif mode == 'g1':
        srd_from(A, 12, 8, 9, H_OFF, H_SZ)
        A(f"""
        s_lshl_b32 s28, s22, 4
        s_lshl_b32 s29, s26, 3
        s_add_u32 s28, s28, s29
        s_mul_i32 s28, s28, 112
        s_lshl_b32 s29, s23, 2
        s_add_u32 s28, s28, s29
        s_lshl_b32 s29, s27, 1
        s_add_u32 s28, s28, s29
        s_lshl_b32 s34, s28, 10
        v_and_b32 v{t0}, 15, v{lane}
        v_lshrrev_b32 v{t1}, 4, v{lane}  ; G
        v_and_b32 v{t2}, 1, v{t1}
        v_lshlrev_b32 v{t2}, 1, v{t2}
        v_lshrrev_b32 v{t1}, 1, v{t1}
        v_or_b32 v{t1}, v{t1}, v{t2}     ; cG
        v_lshlrev_b32 v{t1}, 8, v{t1}
        v_lshlrev_b32 v{t0}, 4, v{t0}
        v_add_u32 v{xa0}, v{t0}, v{t1}
        v_add_u32 v{xa1}, 1024, v{xa0}
        s_mov_b32 s35, 0xbfb8aa3b        ; -log2(e)
        """)
        rowstep = 112 * 1024
    else:
        srd_from(A, 12, 8, 9, P_OFF, P_SZ)
        A(f"""
        s_lshl_b32 s28, s24, 22
        s_lshl_b32 s29, s22, 8
        s_lshl_b32 s35, s26, 7
        s_add_u32 s29, s29, s35
        s_lshl_b32 s29, s29, 11
        s_add_u32 s34, s28, s29
        s_lshl_b32 s29, s23, 8           ; nb*256 B
        s_add_u32 s34, s34, s29
        s_lshl_b32 s29, s27, 7           ; wf*128 B
        s_add_u32 s34, s34, s29
        v_and_b32 v{t0}, 15, v{lane}
        v_lshrrev_b32 v{t1}, 4, v{lane}  ; G
        v_and_b32 v{t2}, 1, v{t1}
        v_lshlrev_b32 v{t2}, 1, v{t2}
        v_lshrrev_b32 v{t1}, 1, v{t1}
        v_or_b32 v{t1}, v{t1}, v{t2}     ; cG
        v_lshlrev_b32 v{t1}, 4, v{t1}
        v_lshlrev_b32 v{t0}, 11, v{t0}
        v_add_u32 v{xa0}, v{t0}, v{t1}
        v_add_u32 v{xa1}, 64, v{xa0}
        """)
        rowstep = 16 * 2048
    nbuf = 0
    for tm in range(8):
        for fp in range(2):
            base = P + (nbuf % 4) * 24
            nbuf += 1
            Tidx = [4*((2*fp+t)*8+tm) + r for t in range(2) for r in range(4)]
            if agpr:
                T = [base + 16 + i for i in range(8)]
                for i in range(8): A(f"v_accvgpr_read_b32 v{T[i]}, a{Tidx[i]}")
            else:
                T = Tidx
            E = [base + 8 + i for i in range(8)]
            if mode == 'g1':
                for i in range(8): A(f"v_mul_f32 v{E[i]}, s35, v{T[i]}")
                for i in range(8): A(f"v_exp_f32 v{E[i]}, v{E[i]}")
                for i in range(8): A(f"v_add_f32 v{E[i]}, 1.0, v{E[i]}")
                for i in range(8): A(f"v_rcp_f32 v{E[i]}, v{E[i]}")
                for i in range(8): A(f"v_mul_f32 v{E[i]}, v{T[i]}, v{E[i]}")
            else:
                E = T
            for i in range(4): A(f"v_cvt_pk_bf16_f32 v{base+i}, v{E[2*i]}, v{E[2*i+1]}")
            A(f"v_permlane16_swap_b32 v{base}, v{base+2}")
            A(f"v_permlane16_swap_b32 v{base+1}, v{base+3}")
            A(f"s_add_u32 s36, s34, {rowstep*tm}")
            A(f"buffer_store_dwordx4 {v(base,4)}, v{xa1 if fp else xa0}, s[12:15], s36 offen{ST}")
    if timing:
        A(f"""
        s_waitcnt vmcnt(0)
        s_memrealtime s[64:65]
        s_load_dwordx2 s[40:41], s[0:1], 48
        s_waitcnt lgkmcnt(0)
        s_lshl_b32 s42, s2, 5
        s_cmp_eq_u32 s25, 0
        s_cbranch_scc0 {L}_notim
        v_mov_b32 v2, s42
        v_mov_b32 v4, s60
        v_mov_b32 v5, s62
        v_mov_b32 v6, s64
        s_sub_u32 s68, s68, s66
        v_mov_b32 v7, s68
        global_store_dwordx4 v2, v[4:7], s[40:41]
        v_mov_b32 v4, s70
        global_store_dword v2, v4, s[40:41] offset:16
        {L}_notim:
        """)
    A("s_endpgm")

    A.label(f"{L}_loader")
    vx, vw = 2, 3
    A("s_sub_u32 s25, s25, 4            ; lw")
    srd_from(A, 12, 8, 9, x_off, x_sz)
    srd_from(A, 16, 6, 7, 0, w_sz)
    if mode == 'g1':
        A(f"""
        s_lshl_b32 s40, s22, 19
        s_lshl_b32 s41, s23, 8
        """)
    else:
        A(f"""
        s_mul_i32 s40, s22, 56
        s_mul_i32 s41, s24, 14
        s_add_u32 s40, s40, s41
        s_lshl_b32 s40, s40, 15
        s_mul_i32 s41, s24, {896*2048}
        s_lshl_b32 s42, s23, 8
        s_add_u32 s41, s41, s42
        """)
    A(f"""
    s_lshl_b32 s26, s25, 13          ; lw*8192
    v_lshlrev_b32 v{vx}, 4, v1
    v_add_u32 v{vx}, s26, v{vx}
    v_lshrrev_b32 v8, 4, v1          ; l>>4
    v_and_b32 v9, 15, v1             ; p16
    v_lshrrev_b32 v10, 1, v9         ; c32'
    v_and_b32 v9, 1, v9
    v_lshlrev_b32 v9, 4, v9          ; half*16
    s_lshl_b32 s27, s25, 4           ; 16 lw
    v_add_u32 v11, s27, v8           ; 16lw + (l>>4)
    s_mov_b32 s28, {WSTRIDE}
    v_mul_lo_u32 v11, v11, s28
    v_add_u32 v11, v11, v9
    """)
    for i in range(4):
        A(f"""
        v_or_b32 v12, {((i>>1)&1)<<2}, v8
        v_xor_b32 v12, v12, v10
        v_lshlrev_b32 v12, 5, v12
        v_add_u32 v12, v12, v11
        v_add_u32 v{vw+i}, {4*i*WSTRIDE - 1024*i}, v12
        """)
    A(f"""
    s_lshl_b32 s29, s25, 12
    s_add_u32 s29, s29, {XSZ}
    s_mov_b32 s31, 0
    """)
    def issue():
        A(f"""
        s_add_u32 m0, s31, s26
        s_add_u32 s42, s40, 4096
        buffer_load_dwordx4 v{vx}, s[12:15], s40 offen lds
        buffer_load_dwordx4 v{vx}, s[12:15], s40 offen offset:1024 lds
        buffer_load_dwordx4 v{vx}, s[12:15], s40 offen offset:2048 lds
        buffer_load_dwordx4 v{vx}, s[12:15], s40 offen offset:3072 lds
        s_add_u32 m0, m0, 4096
        s_add_u32 s40, s40, 32768
        buffer_load_dwordx4 v{vx}, s[12:15], s42 offen lds
        buffer_load_dwordx4 v{vx}, s[12:15], s42 offen offset:1024 lds
        buffer_load_dwordx4 v{vx}, s[12:15], s42 offen offset:2048 lds
        buffer_load_dwordx4 v{vx}, s[12:15], s42 offen offset:3072 lds
        s_add_u32 m0, s31, s29
        s_add_u32 s31, s31, {STAGE}
        buffer_load_dwordx4 v{vw}, s[16:19], s41 offen lds
        buffer_load_dwordx4 v{vw+1}, s[16:19], s41 offen offset:1024 lds
        buffer_load_dwordx4 v{vw+2}, s[16:19], s41 offen offset:2048 lds
        buffer_load_dwordx4 v{vw+3}, s[16:19], s41 offen offset:3072 lds
        s_add_u32 s41, s41, {64*WSTRIDE}
        s_cmp_eq_u32 s31, {STAGE*NS}
        s_cselect_b32 s31, 0, s31
        """)
    for i in range(NS): issue()
    A(f"s_waitcnt vmcnt({12*(NS-1)})")
    A("s_barrier")
    relay = cfg.get('relayw2')
    NLOOP = KSTEPS - NS - (1 if relay else 0)
    A("s_mov_b32 s30, 0")
    A.label(f"{L}_lloop")
    A(f"s_waitcnt vmcnt({12*(NS-2)})")
    A("s_barrier")
    issue()
    A(f"""
    s_add_u32 s30, s30, 1
    s_cmp_lt_u32 s30, {NLOOP}
    s_cbranch_scc1 {L}_lloop
    """)
    nx = 0
    if relay:
        A(f"s_waitcnt vmcnt({12*(NS-2)})")
        A("s_barrier")
        issue()
        CBS = 3584 * 256
        A(f"""
        s_load_dwordx2 s[48:49], s[0:1], {ARG_W2}
        s_mul_i32 s50, s22, 28
        s_add_u32 s50, s50, s23          ; idx
        s_lshl_b32 s50, s50, 4
        s_lshl_b32 s51, s25, 2
        s_add_u32 s50, s50, s51
        s_lshl_b32 s51, s50, 11
        s_lshl_b32 s50, s50, 8
        v_lshlrev_b32 v16, 4, v1         ; lane*16
        v_lshrrev_b32 v17, 4, v1
        v_mul_u32_u24 v17, {CBS // 256}, v17
        v_lshlrev_b32 v17, 8, v17        ; (lane>>4)*CBS
        v_and_b32 v18, 1, v1
        v_lshlrev_b32 v18, 4, v18
        v_add_u32 v17, v17, v18
        v_bfe_u32 v18, v1, 1, 3          ; c32
        s_lshr_b32 s28, s25, 1
        s_lshl_b32 s28, s28, 2           ; ((k>>3)&1)<<2
        s_waitcnt lgkmcnt(0)
        """)
        for r in range(4):
            A(f"""
            s_or_b32 s29, s28, {r}
            v_xor_b32 v19, s29, v18
            v_lshlrev_b32 v19, 5, v19
            v_add_u32 v{20+r}, v17, v19
            """)
        srd_from(A, 52, 48, 49, 0, 3584 * 2048)
        srd_from(A, 56, 8, 9, W2I_OFF, W2I_SZ)
        for r in range(4):
            for hf in range(2):
                A(f"s_add_u32 s29, s51, {r*2048}")
                A(f"buffer_load_dwordx4 {v(32+8*r+4*hf,4)}, v16, s[52:55], s29 offen offset:{1024*hf}")
        nx = 8
    for s_ in range(KSTEPS-NS, KSTEPS):
        rem = max(0, KSTEPS - 1 - (s_ + 1))
        if s_ < KSTEPS - 1:
            A(f"s_waitcnt vmcnt({12*rem + nx})")
        A("s_barrier")
    if relay:
        A("s_waitcnt vmcnt(0)")
        for r in range(4):
            for hf in range(2):
                A(f"s_add_u32 s29, s50, {r*256 + hf*4*3584*256}")
                A(f"buffer_store_dwordx4 {v(32+8*r+4*hf,4)}, v{20+r}, s[56:59], s29 offen{relay if isinstance(relay, str) else ''}")
    A("s_endpgm")
```

```python
from asmlib import *
from layout import *
from k1 import srd_from, srd_table

STAGE = 49152
XSZ = 32768
NSTEP = 28

def gen_gemm2(A, name, cfg):
    NS = 3
    FW = cfg.get('fakew', False)
    WS = 128 if FW else 2048
    L = name
    ST = cfg.get('st', '')
    f3 = cfg.get('f3')
    A(f"""
    s_load_dwordx2 s[6:7], s[0:1], {ARG_W2}
    s_load_dwordx2 s[8:9], s[0:1], {ARG_WS}
    s_load_dwordx2 s[4:5], s[0:1], {ARG_X}
    s_load_dwordx4 s[52:55], s[0:1], {ARG_OUT}
    v_readfirstlane_b32 s25, v0
    s_lshr_b32 s25, s25, 6
    v_and_b32 v1, 63, v0             ; lane
    s_cmp_ge_u32 s25, 4
    s_cbranch_scc1 {L}_loader
    """)
    XA, WA, XB, WB = 0, 16, 32, 48
    xa0, xa1, wa = 64, 65, 66
    lane, t0, t1, t2, t3 = 70, 71, 72, 73, 74
    A(f"""
    v_mov_b32 v{lane}, v1
    s_and_b32 s26, s25, 1            ; wm
    s_lshr_b32 s27, s25, 1           ; ks
    v_and_b32 v{t0}, 15, v{lane}     ; i = l&15
    v_lshrrev_b32 v{t1}, 4, v{lane}  ; G
    v_lshrrev_b32 v{t2}, 1, v{t0}    ; sw
    v_xor_b32 v{t2}, v{t2}, v{t1}    ; G ^ sw
    v_lshlrev_b32 v{t2}, 4, v{t2}
    v_lshlrev_b32 v{t3}, 7, v{t0}    ; row*128
    v_add_u32 v{t2}, v{t2}, v{t3}
    s_lshl_b32 s28, s26, 13          ; wm*64*128
    s_lshl_b32 s29, s27, 14          ; ks*16384
    s_add_u32 s28, s28, s29
    v_add_u32 v{xa0}, s28, v{t2}
    v_xor_b32 v{xa1}, 64, v{xa0}
    ; W addresses
    v_lshrrev_b32 v{t2}, 2, v{t0}    ; r'
    v_and_b32 v{t3}, 1, v{t1}
    v_lshlrev_b32 v{t3}, 1, v{t3}
    v_lshrrev_b32 v{xa1+1}, 1, v{t2}
    v_or_b32 v{t3}, v{t3}, v{xa1+1}  ; f(k)
    v_lshlrev_b32 v{t1}, 3, v{t1}    ; 8G
    v_add_u32 v{t1}, v{t1}, v{t2}    ; 8G + r'
    v_lshlrev_b32 v{t1}, 7, v{t1}    ; *128
    v_and_b32 v{t0}, 3, v{t0}        ; cc
    v_lshlrev_b32 v{t0}, 3, v{t0}
    v_add_u32 v{t1}, v{t1}, v{t0}
    s_lshl_b32 s28, s27, 13          ; ks*64*128
    s_add_u32 s28, s28, {XSZ}
    v_add_u32 v{t1}, s28, v{t1}
    """)
    for tf in range(4):
        A(f"""
        v_xor_b32 v{t0}, {tf}, v{t3}
        v_lshlrev_b32 v{t0}, 5, v{t0}
        v_add_u32 v{wa+tf}, v{t0}, v{t1}
        """)
    A(f"v_xor_b32 v{xa1}, 64, v{xa0}")
    for i in range(64):
        A(f"v_accvgpr_write_b32 a{i}, 0")

    def reads(xset, wset, xreg, h):
        xs = [f"ds_read_b128 {v(xset+4*tm,4)}, v{xreg} offset:{2048*tm}" for tm in range(4)]
        ws = []
        for tf in range(4):
            for u in range(2):
                ws.append(f"ds_read_b64_tr_b16 {v(wset+4*tf+2*u,2)}, v{wa+tf} offset:{h*4096+u*512}")
        r = []
        for i in range(4):
            r += [ws[2*i], ws[2*i+1], xs[i]]
        return r

    def unit(xset, wset, rd, extra=()):
        mf = []
        for tm in range(4):
            order = range(4) if tm % 2 == 0 else range(3, -1, -1)
            for tf in order:
                d = a(4*(tf*4+tm), 4)
                mf.append(f"v_mfma_f32_16x16x32_bf16 {d}, {v(wset+4*tf,4)}, {v(xset+4*tm,4)}, {d}")
        rd = list(rd); extra = list(extra)
        for i, m in enumerate(mf):
            A(m)
            if i < len(rd):
                A(rd[i])
            elif extra:
                A(extra.pop(0))
        for e in extra: A(e)

    pf = cfg.get('pf')
    XP, SP = 128, 144
    vx_, vs_, ex = 76, 77, 75
    vpf, vdum = 78, 79
    A(f"""
    v_lshlrev_b32 v{ex}, 4, v{lane}
    v_and_b32 v{t1}, 15, v{lane}         ; i
    v_lshrrev_b32 v{t2}, 4, v{lane}      ; G
    v_and_b32 v{t3}, 1, v{t2}
    v_lshlrev_b32 v{t3}, 1, v{t3}
    v_lshrrev_b32 v{t2}, 1, v{t2}
    v_or_b32 v{t2}, v{t2}, v{t3}         ; cG
    v_lshlrev_b32 v{t2}, 4, v{t2}
    v_lshlrev_b32 v{vs_}, 11, v{t1}
    v_add_u32 v{vs_}, v{vs_}, v{t2}
    v_bfe_u32 v{t3}, v{t1}, 2, 1
    v_lshlrev_b32 v{t3}, 3, v{t3}
    v_and_b32 v{vx_}, 3, v{t1}
    v_add_u32 v{vx_}, v{vx_}, v{t3}
    v_lshlrev_b32 v{vx_}, 6, v{vx_}
    v_lshrrev_b32 v{t3}, 3, v{t1}
    v_add_u32 v{vx_}, v{vx_}, v{t3}
    v_lshlrev_b32 v{vx_}, 11, v{vx_}
    v_add_u32 v{vx_}, v{vx_}, v{t2}
    s_lshl_b32 s28, s22, 4
    s_lshl_b32 s29, s26, 3
    s_add_u32 s28, s28, s29
    s_lshl_b32 s29, s27, 2
    s_add_u32 s28, s28, s29
    s_lshr_b32 s29, s28, 7               ; gamma
    s_lshl_b32 s29, s29, 4
    s_lshr_b32 s30, s28, 5
    s_and_b32 s30, s30, 1
    s_lshl_b32 s30, s30, 2
    s_add_u32 s29, s29, s30
    s_lshl_b32 s29, s29, 6
    s_lshr_b32 s30, s28, 6
    s_and_b32 s30, s30, 1
    s_lshl_b32 s30, s30, 5
    s_add_u32 s29, s29, s30
    s_and_b32 s30, s28, 31
    s_add_u32 s29, s29, s30              ; nS
    s_lshl_b32 s29, s29, 11
    s_lshl_b32 s30, s23, 7               ; cb*128
    s_add_u32 s40, s29, s30
    s_add_u32 s41, s40, 4096             ; tm2 = 1
    s_lshl_b32 s28, s28, 14
    s_add_u32 s42, s28, s30
    s_add_u32 s43, s42, {16*2048}
    s_waitcnt lgkmcnt(0)
    """)
    srd_from(A, 12, 4, 5, 0, 4 * MB)
    srd_from(A, 16, 8, 9, S_OFF, S_SZ)
    srd_from(A, 36, 52, 53, 0, 4 * MB)
    if pf:
        A(f"""
        s_and_b32 s28, s25, 1
        s_cmp_eq_u32 s28, 0
        s_cbranch_scc0 {L}_pfw
        """)
        srd_from(A, 56, 8, 9, H_OFF, H_SZ)
        A(f"""
        s_lshr_b32 s60, s22, 1
        s_mul_i32 s60, s60, {56*32768}
        s_and_b32 s28, s22, 1
        s_lshl_b32 s28, s28, 14
        s_add_u32 s60, s60, s28
        s_and_b32 s28, s23, 7            ; cbl
        s_lshr_b32 s29, s28, 2
        s_lshl_b32 s29, s29, 15
        s_add_u32 s60, s60, s29
        s_and_b32 s28, s28, 3
        s_lshl_b32 s28, s28, 12
        s_add_u32 s60, s60, s28
        s_lshr_b32 s28, s25, 1
        s_lshl_b32 s28, s28, 11
        s_add_u32 s60, s60, s28
        s_add_u32 s60, s60, {pf[0]*65536}
        s_mov_b32 s61, 65536
        v_and_b32 v{vpf}, 31, v{lane}
        v_lshlrev_b32 v{vpf}, 6, v{vpf}
        s_branch {L}_pfd
        {L}_pfw:
        """)
        srd_from(A, 56, 6, 7, 0, 3584 * 2048)
        A(f"""
        s_and_b32 s28, s22, 3            ; rbl
        s_lshl_b32 s28, s28, 5
        s_lshr_b32 s29, s25, 1
        s_lshl_b32 s29, s29, 4
        s_add_u32 s28, s28, s29
        s_lshl_b32 s60, s28, 11
        s_lshl_b32 s28, s23, 7
        s_add_u32 s60, s60, s28
        s_add_u32 s60, s60, {pf[0]*128*2048}
        s_mov_b32 s61, {128*2048}
        v_and_b32 v{vpf}, 31, v{lane}
        v_lshrrev_b32 v{t0}, 1, v{vpf}
        v_lshlrev_b32 v{t0}, 11, v{t0}
        v_and_b32 v{vpf}, 1, v{vpf}
        v_lshlrev_b32 v{vpf}, 6, v{vpf}
        v_add_u32 v{vpf}, v{vpf}, v{t0}
        {L}_pfd:
        """)
    SL = " sc1" if f3 else ""
    early = []
    for tm2 in range(2):
        for fp in range(2):
            early.append(f"buffer_load_dwordx4 {v(SP+8*tm2+4*fp,4)}, v{vs_}, s[16:19], s{42+tm2} offen offset:{64*fp}{SL}")
    for tm2 in range(2):
        for fp in range(2):
            early.append(f"buffer_load_dwordx4 {v(XP+8*tm2+4*fp,4)}, v{vx_}, s[12:15], s{40+tm2} offen offset:{64*fp}")

    A("s_barrier")
    stamp(A, cfg, 0); stamp(A, cfg, 2, True)
    for r in reads(XA, WA, xa0, 0): A(r)
    A(f"""
    s_mov_b32 s31, 0
    s_waitcnt lgkmcnt(0)
    """)
    def cstep(npf=0, extra=()):
        A(f"""
        s_add_u32 s32, s31, {STAGE}
        s_cmp_eq_u32 s32, {STAGE*NS}
        s_cselect_b32 s32, 0, s32
        s_sub_u32 s33, s32, s31          ; delta
        s_mov_b32 s31, s32
        """)
        unit(XA, WA, reads(XB, WB, xa1, 1))
        adv = [f"v_add_u32 v{xa0}, s33, v{xa0}"] + [f"v_add_u32 v{wa+t}, s33, v{wa+t}" for t in range(4)]
        for e in adv: A(e)
        A("s_waitcnt lgkmcnt(0)")
        A("s_barrier")
        ex_ = [f"v_xor_b32 v{xa1}, 64, v{xa0}"]
        for _ in range(npf):
            ex_ += [f"buffer_load_dword v{vdum}, v{vpf}, s[56:59], s60 offen", "s_add_u32 s60, s60, s61"]
        unit(XB, WB, reads(XA, WA, xa0, 0), extra=ex_ + list(extra))
    def cloop(tag, n, npf):
        if n <= 0: return
        A("s_mov_b32 s30, 0")
        A.label(f"{L}_cloop{tag}")
        cstep(npf)
        A(f"""
        s_add_u32 s30, s30, 1
        s_cmp_lt_u32 s30, {n}
        s_waitcnt lgkmcnt(0)
        s_cbranch_scc1 {L}_cloop{tag}
        """)
    ESTEP = 23
    done = 0
    if pf:
        p0, nd = pf
        cloop("a", nd, 2)
        n1 = min(ESTEP, NSTEP - (p0 + 2*nd) + 0) - 0
        n1 = max(0, min(ESTEP - nd, NSTEP - (p0 + 2*nd)))
        cloop("b", n1, 1)
        done = nd + n1
    cloop("c", ESTEP - done, 0)
    cstep(0, early)
    A("s_waitcnt lgkmcnt(0)")
    cloop("d", NSTEP - ESTEP - 1, 0)
    stamp(A, cfg, 1); stamp(A, cfg, 3, True)
    RP = 32
    A(f"""
    s_lshl_b32 s28, s25, 13
    v_add_u32 v{t0}, s28, v{ex}
    s_cmp_eq_u32 s27, 0
    s_cbranch_scc1 {L}_ks0
    """)
    def xch(send_tm0):
        k = 0
        for tm in (send_tm0, send_tm0 + 1):
            for tf in range(4):
                A(f"ds_write_b128 v{t0}, {a(4*(tf*4+tm),4)} offset:{1024*k}")
                k += 1
    xch(0)
    A(f"s_branch {L}_sent")
    A.label(f"{L}_ks0")
    xch(2)
    A.label(f"{L}_sent")
    A("s_waitcnt lgkmcnt(0)")
    A("s_barrier")
    A(f"""
    s_xor_b32 s28, s25, 2
    s_lshl_b32 s28, s28, 13
    v_add_u32 v{t0}, s28, v{ex}
    """)
    for k in range(8):
        A(f"ds_read_b128 {v(RP+4*k,4)}, v{t0} offset:{1024*k}")
    A(f"""
    s_mov_b32 s34, 0xffff0000
    s_mov_b32 s35, 0xbfb8aa3b
    s_cmp_eq_u32 s27, 0
    s_cbranch_scc1 {L}_own0
    """)
    OW = 80
    def own(tm0):
        k = 0
        for tm in (tm0, tm0 + 1):
            for tf in range(4):
                for r in range(4):
                    A(f"v_accvgpr_read_b32 v{OW+4*k+r}, a{4*(tf*4+tm)+r}")
                k += 1
    own(2)
    A(f"s_branch {L}_owned")
    A.label(f"{L}_own0")
    own(0)
    A.label(f"{L}_owned")
    A("s_waitcnt lgkmcnt(0)")
    E = [112 + i for i in range(8)]
    G = 120
    T = [124, 125, 126, 127]
    for tm2 in range(2):
        for fp in range(2):
            idx = [4*(tm2*4 + 2*fp + t) + r for t in range(2) for r in range(4)]
            O = [OW + i for i in idx]
            for i in range(8): A(f"v_add_f32 v{O[i]}, v{O[i]}, v{RP+idx[i]}")
            for i in range(4):
                A(f"v_cvt_pk_bf16_f32 v{G+i}, v{O[2*i]}, v{O[2*i+1]}")
            for i in range(4):
                A(f"v_lshlrev_b32 v{O[2*i]}, 16, v{G+i}")
                A(f"v_and_b32 v{O[2*i+1]}, s34, v{G+i}")
            for i in range(8): A(f"v_mul_f32 v{E[i]}, s35, v{O[i]}")
            for i in range(8): A(f"v_exp_f32 v{E[i]}, v{E[i]}")
            for i in range(8): A(f"v_add_f32 v{E[i]}, 1.0, v{E[i]}")
            for i in range(8): A(f"v_rcp_f32 v{E[i]}, v{E[i]}")
            for i in range(8): A(f"v_mul_f32 v{E[i]}, v{O[i]}, v{E[i]}")
            for i in range(4): A(f"v_cvt_pk_bf16_f32 v{G+i}, v{E[2*i]}, v{E[2*i+1]}")
            A(f"v_permlane16_swap_b32 v{G}, v{G+2}")
            A(f"v_permlane16_swap_b32 v{G+1}, v{G+3}")
            if tm2 == 0 and fp == 0:
                A("s_waitcnt vmcnt(0)")
            sp, xp = SP + 8*tm2 + 4*fp, XP + 8*tm2 + 4*fp
            for i in range(4):
                a0, a1, b0, b1 = T
                A(f"v_lshlrev_b32 v{a0}, 16, v{sp+i}")
                A(f"v_and_b32 v{a1}, s34, v{sp+i}")
                A(f"v_lshlrev_b32 v{b0}, 16, v{G+i}")
                A(f"v_and_b32 v{b1}, s34, v{G+i}")
                A(f"v_mul_f32 v{a0}, v{a0}, v{b0}")
                A(f"v_mul_f32 v{a1}, v{a1}, v{b1}")
                A(f"v_cvt_pk_bf16_f32 v{a0}, v{a0}, v{a1}")
                A(f"v_lshlrev_b32 v{b0}, 16, v{a0}")
                A(f"v_and_b32 v{b1}, s34, v{a0}")
                A(f"v_lshlrev_b32 v{a0}, 16, v{xp+i}")
                A(f"v_and_b32 v{a1}, s34, v{xp+i}")
                A(f"v_add_f32 v{a0}, v{a0}, v{b0}")
                A(f"v_add_f32 v{a1}, v{a1}, v{b1}")
                A(f"v_cvt_pk_bf16_f32 v{sp+i}, v{a0}, v{a1}")
            A(f"buffer_store_dwordx4 {v(sp,4)}, v{vx_}, s[36:39], s{40+tm2} offen offset:{64*fp}{ST}")
    A("s_endpgm")

    A.label(f"{L}_loader")
    vx, vw = 2, 3
    A("s_sub_u32 s25, s25, 4            ; lw")
    A("s_waitcnt lgkmcnt(0)")
    srd_from(A, 12, 8, 9, H_OFF, H_SZ)
    srd_from(A, 16, 6, 7, 0, 3584 * 2048)
    A(f"""
    s_lshr_b32 s40, s22, 1
    s_mul_i32 s40, s40, 56
    s_lshr_b32 s28, s25, 1
    s_add_u32 s40, s40, s28
    s_lshl_b32 s40, s40, 15
    s_and_b32 s28, s22, 1
    s_lshl_b32 s28, s28, 14
    s_add_u32 s40, s40, s28
    s_and_b32 s28, s25, 1
    s_lshl_b32 s28, s28, 13
    s_add_u32 s40, s40, s28
    s_lshl_b32 s26, s25, 13
    v_lshlrev_b32 v{vx}, 4, v1
    ; W
    s_mul_i32 s41, s23, {3584*128 if FW else 128}           ; cb*128
    v_lshrrev_b32 v8, 3, v1          ; l>>3  (row)
    v_and_b32 v9, 7, v1
    v_lshrrev_b32 v10, 1, v9         ; col32'
    v_and_b32 v9, 1, v9
    v_lshlrev_b32 v9, 4, v9          ; half*16
    s_lshl_b32 s27, s25, 5           ; 32 lw
    v_add_u32 v11, s27, v8
    v_lshlrev_b32 v11, {7 if FW else 11}, v11       ; row*2048
    v_add_u32 v11, v11, v9
    v_bfe_u32 v13, v1, 4, 1          ; (k>>1)&1
    """)
    for i in range(4):
        A(f"""
        v_or_b32 v12, {(i&1)<<1}, v13
        v_xor_b32 v12, v12, v10
        v_lshlrev_b32 v12, 5, v12
        v_add_u32 v12, v12, v11
        v_add_u32 v{vw+i}, {8*i*WS - 1024*i}, v12
        """)
    A(f"""
    s_lshl_b32 s29, s25, 12
    s_add_u32 s29, s29, {XSZ}
    s_mov_b32 s31, 0
    """)
    q = []
    def issue(tag, mix=(), post=()):
        seq = [
        ["s_add_u32 m0, s31, s26", "s_add_u32 s42, s40, 4096"],
        f"buffer_load_dwordx4 v{vx}, s[12:15], s40 offen lds",
        f"buffer_load_dwordx4 v{vx}, s[12:15], s40 offen offset:1024 lds",
        f"buffer_load_dwordx4 v{vx}, s[12:15], s40 offen offset:2048 lds",
        f"buffer_load_dwordx4 v{vx}, s[12:15], s40 offen offset:3072 lds",
        ["s_add_u32 m0, m0, 4096", "s_add_u32 s40, s40, 65536"],
        f"buffer_load_dwordx4 v{vx}, s[12:15], s42 offen lds",
        f"buffer_load_dwordx4 v{vx}, s[12:15], s42 offen offset:1024 lds",
        f"buffer_load_dwordx4 v{vx}, s[12:15], s42 offen offset:2048 lds",
        f"buffer_load_dwordx4 v{vx}, s[12:15], s42 offen offset:3072 lds",
        ["s_add_u32 m0, s31, s29", f"s_add_u32 s31, s31, {STAGE}"],
        f"buffer_load_dwordx4 v{vw}, s[16:19], s41 offen lds",
        f"buffer_load_dwordx4 v{vw+1}, s[16:19], s41 offen offset:1024 lds",
        f"buffer_load_dwordx4 v{vw+2}, s[16:19], s41 offen offset:2048 lds",
        f"buffer_load_dwordx4 v{vw+3}, s[16:19], s41 offen offset:3072 lds",
         [f"s_add_u32 s41, s41, {128*WS}", f"s_cmp_eq_u32 s31, {STAGE*NS}", "s_cselect_b32 s31, 0, s31"]]
        mix = list(mix)
        per = (len(mix) + 11) // 12
        for it in seq:
            if isinstance(it, list):
                for x in it: A(x)
                continue
            A(it); q.append(tag)
            for _ in range(per):
                if mix:
                    x = mix.pop(0)
                    if x is None: continue
                    A(x)
                    if x.startswith(("buffer_", "global_")): q.append('x')
        assert not mix
        for x in post: A(x)
    def wait_for(tag):
        last = max(i for i, t in enumerate(q) if t == tag)
        A(f"s_waitcnt vmcnt({len(q) - 1 - last})")
    issue(0)
    if f3:
        f3.setup(A)
        for x in f3.pro_vm(vx):
            A(x)
            if x.startswith("buffer_"): q.append('x')
    issue(1); issue(2)
    wait_for(0)
    A("s_barrier")
    s0 = 0
    if f3:
        strs = f3.streams()
        for s_ in range(len(strs)):
            wait_for(s_ + 1)
            A("s_barrier")
            issue(s_ + 3, *strs[s_])
        s_ = len(strs)
        wait_for(s_ + 1); A("s_barrier"); issue(s_ + 3)
        s_ += 1
        A("s_waitcnt vmcnt(0)")
        A("s_barrier")
        f3.signal(A, L)
        issue(s_ + 3)
        s0 = s_ + 1
    PSTEP = 21 if f3 else NSTEP - NS
    A("s_mov_b32 s30, 0")
    A.label(f"{L}_lloop")
    A(f"s_waitcnt vmcnt({12*(NS-2)})")
    A("s_barrier")
    issue('l')
    A(f"""
    s_add_u32 s30, s30, 1
    s_cmp_lt_u32 s30, {PSTEP - s0}
    s_cbranch_scc1 {L}_lloop
    """)
    if f3:
        q.clear(); q.extend([22]*12 + [23]*12)
        wait_for(22); A("s_barrier"); issue(24)
        A(f"""
        s_lshl_b32 s60, s22, 2
        v_mov_b32 v8, s60
        global_load_dword v9, v8, s[54:55] sc1
        """)
        q.append('p')
        wait_for(23); A("s_barrier"); issue(25)
        wait_for('p')
        A(f"""
        v_readfirstlane_b32 s60, v9
        s_cmp_ge_u32 s60, 16
        s_cbranch_scc1 {L}_ready
        {L}_poll:
        s_sleep 1
        global_load_dword v9, v8, s[54:55] sc1
        s_waitcnt vmcnt(0)
        v_readfirstlane_b32 s60, v9
        s_cmp_ge_u32 s60, 16
        s_cbranch_scc0 {L}_poll
        {L}_ready:
        """)
        A("s_barrier"); issue(26)
        wait_for(25); A("s_barrier"); issue(27)
    for s_ in range(NSTEP-NS, NSTEP):
        rem = max(0, NSTEP - 1 - (s_ + 1))
        A(f"s_waitcnt vmcnt({12*rem})")
        A("s_barrier")
    A("s_endpgm")
```

```python
from asmlib import *
from layout import *
from k1 import srd_from, srd_table

STAGE = 32768
XSZ = 16384
NS = 4
NSTEP = 28
TABL = NS * STAGE
STG = TABL + 16384
LDS_K3 = STG + 16384
SPIN = 400000

def f3_consumer(A, cfg):
    D1 = [0, 32]
    TAB, TW, YP, RD = 80, 112, 144, 160
    SP = TW
    T = [176, 177, 178, 179, 180, 181]
    vny, vw_, vr_, vt_, vy, vz = 182, 183, 184, 185, 186, 187
    lane = 70
    def part0():
        srd_from(A, 44, 8, 9, Y1_OFF, Y1_SZ)
        A(f"""
        s_lshl_b32 s60, s25, 6
        v_add_u32 v{T[0]}, s60, v{lane}            ; t = w*64 + lane
        v_lshrrev_b32 v{vy}, 2, v{T[0]}
        v_lshlrev_b32 v{vy}, 14, v{vy}
        v_and_b32 v{T[1]}, 3, v{T[0]}
        v_lshlrev_b32 v{T[1]}, 4, v{T[1]}
        v_add_u32 v{vy}, v{vy}, v{T[1]}            ; Y voffset
        s_lshl_b32 s60, s20, 6               ; rho*64
        s_add_u32 s61, s60, {1*MB}
        s_add_u32 s62, s60, {2*MB}
        s_add_u32 s63, s60, {3*MB}
        s_add_u32 s64, s60, {4*MB}
        s_lshl_b32 s65, s25, 2
        s_add_u32 s64, s64, s65
        v_mov_b32 v{vz}, 0
        """)
        for i in range(4):
            A(f"buffer_load_dwordx4 {v(YP+4*i,4)}, v{vy}, s[44:47], s{60+i} offen")
        A(f"buffer_load_dword v{vny}, v{vz}, s[44:47], s64 offen")
        A(f"""
        v_and_b32 v{vw_}, 1, v{T[0]}
        v_lshlrev_b32 v{vw_}, 13, v{vw_}
        v_lshrrev_b32 v{T[1]}, 1, v{T[0]}
        v_lshlrev_b32 v{T[1]}, 4, v{T[1]}
        v_add_u32 v{vw_}, v{vw_}, v{T[1]}
        v_add_u32 v{vw_}, {STG}, v{vw_}
        v_and_b32 v{vr_}, 31, v{lane}
        v_lshlrev_b32 v{vr_}, 4, v{vr_}
        v_lshrrev_b32 v{T[1]}, 5, v{lane}
        v_lshlrev_b32 v{T[1]}, 11, v{T[1]}
        v_add_u32 v{vr_}, v{vr_}, v{T[1]}
        s_add_u32 s65, s65, {STG}
        v_add_u32 v{vr_}, s65, v{vr_}
        v_lshlrev_b32 v{vt_}, 4, v{lane}
        v_add_u32 v{vt_}, {TABL}, v{vt_}
        s_mov_b32 s67, 0x05040100
        s_mov_b32 s68, 0x07060302
        s_mov_b32 s69, 0xffff0000
        """)
    def part1():
        A("s_waitcnt vmcnt(0)")
        for i in range(4):
            A(f"ds_write_b128 v{vw_}, {v(YP+4*i,4)} offset:{2048*i}")
        A("s_waitcnt lgkmcnt(0)")
    def part2():
        for t in range(2):
            for q in range(4):
                o0 = 2 * (8 * t + q)
                A(f"ds_read2st64_b32 {v(RD+8*t+2*q,2)}, v{vr_} offset0:{o0} offset1:{o0+32}")
        order = [0, 1, 2, 3, 8, 9, 10, 11, 12, 13, 14, 15, 4, 5, 6, 7]
        for i in order:
            A(f"ds_read_b128 {v(TAB+4*i,4)}, v{vt_} offset:{1024*i}")
        AF = YP
        A("s_waitcnt lgkmcnt(12)")
        for t in range(2):
            for q in range(4):
                a_, b_ = RD + 8*t + 2*q, RD + 8*t + 2*q + 1
                A(f"v_perm_b32 v{AF+4*t+q}, v{b_}, v{a_}, s67")
                A(f"v_perm_b32 v{AF+8+4*t+q}, v{b_}, v{a_}, s68")
        for t in range(2):
            for r in range(2):
                for part in range(2):
                    d = v(D1[r] + 16*part, 16)
                    A(f"v_mfma_f32_32x32x16_bf16 {d}, {v(AF+8*r+4*t,4)}, {v(TAB+8*part+4*t,4)}, {'0' if t == 0 else d}")
        A(f"""
        v_and_b32 v{vw_}, 31, v{lane}
        v_lshlrev_b32 v{vw_}, 6, v{vw_}
        v_lshrrev_b32 v{vr_}, 5, v{lane}
        v_lshlrev_b32 v{vr_}, 4, v{vr_}
        v_add_u32 v{vw_}, v{vw_}, v{vr_}
        s_lshl_b32 s60, s20, 3
        s_lshl_b32 s61, s25, 1
        s_add_u32 s60, s60, s61
        s_lshl_b32 s60, s60, 11
        s_add_u32 s61, s60, 2048
        v_lshlrev_b32 v{T[4]}, 16, v{vny}
        v_and_b32 v{T[5]}, s69, v{vny}
        v_mul_f32 v{T[4]}, 0x35000000, v{T[4]}
        v_mul_f32 v{T[5]}, 0x35000000, v{T[5]}
        s_waitcnt lgkmcnt(0)
        """)
        PK = [RD, YP]
        for r in range(2):
            Dr, Di = D1[r], D1[r] + 16
            for e in range(16):
                t1, t2 = T[(e & 1) * 2], T[(e & 1) * 2 + 1]
                A(f"v_mul_f32 v{t1}, v{Di+e}, v{TW+16+e}")
                A(f"v_mul_f32 v{t2}, v{Di+e}, v{TW+e}")
                A(f"v_fma_f32 v{Di+e}, v{Dr+e}, v{TW+16+e}, v{t2}")
                A(f"v_fma_f32 v{Dr+e}, v{Dr+e}, v{TW+e}, -v{t1}")
                if e & 1:
                    b, q = e >> 3, (e & 7) >> 1
                    A(f"v_cvt_pk_bf16_f32 v{PK[r]+4*b+q}, v{Dr+e-1}, v{Dr+e}")
                    A(f"v_cvt_pk_bf16_f32 v{PK[r]+8+4*b+q}, v{Di+e-1}, v{Di+e}")
            if r == 0:
                seq = [(pin, b) for pin in range(2) for b in range(2)]
                for k, (pin, b) in enumerate(seq):
                    d = v(D1[0], 16)
                    A(f"v_mfma_f32_32x32x16_bf16 {d}, {v(PK[0]+8*pin+4*b,4)}, {v(TAB+16+8*pin+4*b,4)}, {'0' if k == 0 else d}")
        for k, (pin, b) in enumerate(seq):
            d = v(D1[1], 16)
            A(f"v_mfma_f32_32x32x16_bf16 {d}, {v(PK[1]+8*pin+4*b,4)}, {v(TAB+16+8*pin+4*b,4)}, {'0' if k == 0 else d}")
        for r in range(2):
            for e in range(16):
                A(f"v_{'add' if e % 2 == 0 else 'sub'}_f32 v{D1[r]+e}, v{D1[r]+e}, v{T[4+r]}")
            for t in range(2):
                base = SP + 8*r + 4*t
                for h in range(2):
                    for i in range(2):
                        e = 4 * (2*t + h) + 2*i
                        A(f"v_cvt_pk_bf16_f32 v{base+2*h+i}, v{D1[r]+e}, v{D1[r]+e+1}")
                A(f"v_permlane32_swap_b32 v{base}, v{base+2}")
                A(f"v_permlane32_swap_b32 v{base+1}, v{base+3}")
                A(f"buffer_store_dwordx4 {v(base,4)}, v{vw_}, s[16:19], s{60+r} offen offset:{32*t} sc1")
    return part0, part1, part2


def gen_gemm3(A, name, cfg):
    L = name
    ST = cfg.get('st', '')
    A(f"""
    s_load_dwordx2 s[6:7], s[0:1], {ARG_W2}
    s_load_dwordx2 s[8:9], s[0:1], {ARG_WS}
    s_load_dwordx2 s[4:5], s[0:1], {ARG_X}
    s_load_dwordx4 s[52:55], s[0:1], {ARG_OUT}
    v_readfirstlane_b32 s25, v0
    s_lshr_b32 s25, s25, 6
    v_and_b32 v1, 63, v0             ; lane
    s_cmp_ge_u32 s25, 4
    s_cbranch_scc1 {L}_loader
    """)
    XA, WA, XB, WB = 0, 16, 32, 48
    xa0, xa1, wa = 64, 65, 66
    lane, t0, t1, t2, t3 = 70, 71, 72, 73, 74
    ex, vx_, vs_ = 75, 76, 77
    XP, SP = 128, 144
    p0, p1, p2 = f3_consumer(A, cfg)
    A(f"v_mov_b32 v{lane}, v1")
    A("s_waitcnt lgkmcnt(0)")
    p0()
    A(f"""
    s_and_b32 s26, s25, 1            ; wm
    s_lshr_b32 s27, s25, 1           ; wn
    v_and_b32 v{t0}, 15, v{lane}     ; i = l&15
    v_lshrrev_b32 v{t1}, 4, v{lane}  ; G
    v_lshrrev_b32 v{t2}, 1, v{t0}    ; sw
    v_xor_b32 v{t2}, v{t2}, v{t1}    ; G ^ sw
    v_lshlrev_b32 v{t2}, 4, v{t2}
    v_lshlrev_b32 v{t3}, 7, v{t0}    ; row*128
    v_add_u32 v{t2}, v{t2}, v{t3}
    s_lshl_b32 s28, s26, 13          ; wm*64*128
    v_add_u32 v{xa0}, s28, v{t2}
    v_lshrrev_b32 v{t2}, 2, v{t0}    ; r'
    v_and_b32 v{t3}, 1, v{t1}
    v_lshlrev_b32 v{t3}, 2, v{t3}
    v_or_b32 v{t3}, v{t3}, v{t2}     ; f(k)
    v_lshlrev_b32 v{t1}, 3, v{t1}    ; 8G
    v_add_u32 v{t1}, v{t1}, v{t2}    ; 8G + r'
    v_lshlrev_b32 v{t1}, 8, v{t1}    ; *256
    v_and_b32 v{t0}, 3, v{t0}        ; cc
    v_lshlrev_b32 v{t0}, 3, v{t0}
    v_add_u32 v{t1}, v{t1}, v{t0}
    v_add_u32 v{t1}, {XSZ}, v{t1}
    s_lshl_b32 s28, s27, 2           ; wn*4
    """)
    for tf in range(4):
        A(f"""
        s_add_u32 s29, s28, {tf}
        v_xor_b32 v{t0}, s29, v{t3}
        v_lshlrev_b32 v{t0}, 5, v{t0}
        v_add_u32 v{wa+tf}, v{t0}, v{t1}
        """)
    A(f"v_xor_b32 v{xa1}, 64, v{xa0}")
    for i in range(64):
        A(f"v_accvgpr_write_b32 a{i}, 0")
    A(f"""
    v_lshlrev_b32 v{ex}, 4, v{lane}
    v_and_b32 v{t1}, 15, v{lane}         ; i
    v_lshrrev_b32 v{t2}, 4, v{lane}      ; G
    v_and_b32 v{t3}, 1, v{t2}
    v_lshlrev_b32 v{t3}, 1, v{t3}
    v_lshrrev_b32 v{t2}, 1, v{t2}
    v_or_b32 v{t2}, v{t2}, v{t3}         ; cG
    v_lshlrev_b32 v{t2}, 4, v{t2}
    v_lshlrev_b32 v{vs_}, 11, v{t1}
    v_add_u32 v{vs_}, v{vs_}, v{t2}
    v_bfe_u32 v{t3}, v{t1}, 2, 1
    v_lshlrev_b32 v{t3}, 3, v{t3}
    v_and_b32 v{vx_}, 3, v{t1}
    v_add_u32 v{vx_}, v{vx_}, v{t3}
    v_lshlrev_b32 v{vx_}, 6, v{vx_}
    v_lshrrev_b32 v{t3}, 3, v{t1}
    v_add_u32 v{vx_}, v{vx_}, v{t3}
    v_lshlrev_b32 v{vx_}, 11, v{vx_}
    v_add_u32 v{vx_}, v{vx_}, v{t2}
    s_lshl_b32 s28, s22, 4
    s_lshl_b32 s29, s26, 3
    s_add_u32 s28, s28, s29
    s_lshl_b32 s29, s24, 2
    s_add_u32 s28, s28, s29
    s_lshr_b32 s29, s28, 7               ; gamma
    s_lshl_b32 s29, s29, 4
    s_lshr_b32 s30, s28, 5
    s_and_b32 s30, s30, 1
    s_lshl_b32 s30, s30, 2
    s_add_u32 s29, s29, s30
    s_lshl_b32 s29, s29, 6
    s_lshr_b32 s30, s28, 6
    s_and_b32 s30, s30, 1
    s_lshl_b32 s30, s30, 5
    s_add_u32 s29, s29, s30
    s_and_b32 s30, s28, 31
    s_add_u32 s29, s29, s30              ; nS
    s_lshl_b32 s29, s29, 11
    s_lshl_b32 s30, s23, 1
    s_add_u32 s30, s30, s27
    s_lshl_b32 s30, s30, 7
    s_add_u32 s40, s29, s30
    s_add_u32 s41, s40, 4096             ; tm2 = 1
    s_lshl_b32 s28, s28, 14
    s_add_u32 s42, s28, s30
    s_add_u32 s43, s42, {16*2048}
    s_lshl_b32 s56, s22, 3
    s_add_u32 s56, s56, s23
    s_lshl_b32 s56, s56, 1
    s_add_u32 s57, s56, s24
    s_xor_b32 s58, s57, 1
    s_lshl_b32 s57, s57, 14
    s_lshl_b32 s58, s58, 14
    s_lshl_b32 s56, s25, 12
    s_add_u32 s57, s57, s56
    s_add_u32 s58, s58, s56
    """)
    srd_from(A, 12, 4, 5, 0, 4 * MB)
    srd_from(A, 16, 8, 9, S_OFF, S_SZ)
    srd_from(A, 36, 52, 53, 0, 4 * MB)
    srd_from(A, 48, 8, 9, E_OFF, E_SZ)
    p1()
    A("s_barrier")
    p2()

    def reads(xset, wset, xreg, h):
        xs = [f"ds_read_b128 {v(xset+4*tm,4)}, v{xreg} offset:{2048*tm}" for tm in range(4)]
        ws = []
        for tf in range(4):
            for u in range(2):
                ws.append(f"ds_read_b64_tr_b16 {v(wset+4*tf+2*u,2)}, v{wa+tf} offset:{h*8192+u*1024}")
        r = []
        for i in range(4):
            r += [ws[2*i], ws[2*i+1], xs[i]]
        return r

    def unit(xset, wset, rd, extra=()):
        mf = []
        for tm in range(4):
            order = range(4) if tm % 2 == 0 else range(3, -1, -1)
            for tf in order:
                d = a(4*(tf*4+tm), 4)
                mf.append(f"v_mfma_f32_16x16x32_bf16 {d}, {v(wset+4*tf,4)}, {v(xset+4*tm,4)}, {d}")
        rd = list(rd); extra = list(extra)
        for i, m in enumerate(mf):
            A(m)
            if i < len(rd):
                A(rd[i])
            elif extra:
                A(extra.pop(0))
        for e in extra: A(e)

    early = []
    for tm2 in range(2):
        for fp in range(2):
            early.append(f"buffer_load_dwordx4 {v(SP+8*tm2+4*fp,4)}, v{vs_}, s[16:19], s{42+tm2} offen offset:{64*fp} sc1")
    for tm2 in range(2):
        for fp in range(2):
            early.append(f"buffer_load_dwordx4 {v(XP+8*tm2+4*fp,4)}, v{vx_}, s[12:15], s{40+tm2} offen offset:{64*fp}")

    A("s_barrier")
    stamp(A, cfg, 0); stamp(A, cfg, 2, True)
    for r in reads(XA, WA, xa0, 0): A(r)
    A(f"""
    s_mov_b32 s31, 0
    s_waitcnt lgkmcnt(0)
    """)
    def cstep(extra=(), prebar=(), postbar=None):
        A(f"""
        s_add_u32 s32, s31, {STAGE}
        s_cmp_eq_u32 s32, {STAGE*NS}
        s_cselect_b32 s32, 0, s32
        s_sub_u32 s33, s32, s31          ; delta
        s_mov_b32 s31, s32
        """)
        unit(XA, WA, reads(XB, WB, xa1, 1))
        adv = [f"v_add_u32 v{xa0}, s33, v{xa0}"] + [f"v_add_u32 v{wa+t}, s33, v{wa+t}" for t in range(4)]
        for e in adv: A(e)
        A("s_waitcnt lgkmcnt(0)")
        for e in prebar: A(e)
        A("s_barrier")
        if postbar: postbar()
        unit(XB, WB, reads(XA, WA, xa0, 0), extra=[f"v_xor_b32 v{xa1}, 64, v{xa0}"] + list(extra))
    def cloop(tag, n):
        if n <= 0: return
        A("s_mov_b32 s30, 0")
        A.label(f"{L}_cloop{tag}")
        cstep()
        A(f"""
        s_add_u32 s30, s30, 1
        s_cmp_lt_u32 s30, {n}
        s_waitcnt lgkmcnt(0)
        s_cbranch_scc1 {L}_cloop{tag}
        """)
    def signal():
        A(f"""
        s_cmp_lg_u32 s25, 0
        s_cbranch_scc1 {L}_nosig
        s_lshr_b32 s60, s20, 4
        s_lshl_b32 s60, s60, 2
        v_mov_b32 v{t0}, s60
        v_mov_b32 v{t1}, 1
        s_mov_b64 exec, 1
        global_atomic_add v{t0}, v{t1}, s[54:55] sc1
        s_mov_b64 exec, -1
        {L}_nosig:
        """)
    SIG = 3
    ESTEP = 23
    cloop("a", SIG)
    cstep(prebar=["s_waitcnt vmcnt(0)"], postbar=signal)
    A("s_waitcnt lgkmcnt(0)")
    cloop("b", ESTEP - SIG - 1)
    cstep(early)
    A("s_waitcnt lgkmcnt(0)")
    cloop("d", NSTEP - ESTEP - 1)
    stamp(A, cfg, 1); stamp(A, cfg, 3, True)
    RP = 32
    SND = 0
    TMP = 80
    OW = 80
    def send(tm0):
        k = 0
        for tm in (tm0, tm0 + 1):
            for tf in range(4):
                for r in range(4):
                    A(f"v_accvgpr_read_b32 v{TMP+4*k+r}, a{4*(tf*4+tm)+r}")
                k += 1
        for k in range(8):
            for i in range(2):
                A(f"v_cvt_pk_bf16_f32 v{SND+2*k+i}, v{TMP+4*k+2*i}, v{TMP+4*k+2*i+1}")
        for k in range(16):
            A(f"v_min_u32 v{SND+k}, s34, v{SND+k}")
        for i in range(4):
            A(f"buffer_store_dwordx4 {v(SND+4*i,4)}, v{ex}, s[48:51], s57 offen offset:{1024*i} sc1")
    def own(tm0):
        k = 0
        for tm in (tm0, tm0 + 1):
            for tf in range(4):
                for r in range(4):
                    A(f"v_accvgpr_read_b32 v{OW+4*k+r}, a{4*(tf*4+tm)+r}")
                k += 1
    def fetch():
        for i in range(4):
            A(f"buffer_load_dwordx4 {v(RP+4*i,4)}, v{ex}, s[48:51], s58 offen offset:{1024*i} sc1")
    A(f"""
    s_mov_b32 s34, 0xfffffffe
    s_mov_b32 s35, 0xbfb8aa3b
    s_cmp_eq_u32 s24, 0
    s_cbranch_scc1 {L}_kh0
    """)
    send(0); fetch(); own(2)
    A(f"s_branch {L}_sent")
    A.label(f"{L}_kh0")
    send(2); fetch(); own(0)
    A.label(f"{L}_sent")
    A("s_mov_b32 s70, 0")
    A.label(f"{L}_chk")
    A("s_waitcnt vmcnt(0)")
    A(f"v_max3_u32 v{t0}, v{RP}, v{RP+1}, v{RP+2}")
    for i in range(3, 15, 2):
        A(f"v_max3_u32 v{t0}, v{t0}, v{RP+i}, v{RP+i+1}")
    A(f"""
    v_max_u32 v{t0}, v{t0}, v{RP+15}
    v_cmp_eq_u32 vcc, -1, v{t0}
    s_nop 4
    s_cbranch_vccz {L}_got
    s_add_u32 s70, s70, 1
    s_cmp_ge_u32 s70, {SPIN}
    s_cbranch_scc1 {L}_got
    """)
    fetch()
    A(f"s_branch {L}_chk")
    A.label(f"{L}_got")
    stamp(A, cfg, 4)
    A("s_mov_b32 s34, 0xffff0000")
    E = [112 + i for i in range(8)]
    G = 120
    T = [124, 125, 126, 127]
    for tm2 in range(2):
        for fp in range(2):
            idx = [4*(tm2*4 + 2*fp + t) + r for t in range(2) for r in range(4)]
            O = [OW + i for i in idx]
            for t in range(2):
                for i in range(2):
                    src = RP + 2*(tm2*4 + 2*fp + t) + i
                    A(f"v_lshlrev_b32 v{E[4*t+2*i]}, 16, v{src}")
                    A(f"v_and_b32 v{E[4*t+2*i+1]}, s34, v{src}")
            for i in range(8): A(f"v_add_f32 v{O[i]}, v{O[i]}, v{E[i]}")
            for i in range(4):
                A(f"v_cvt_pk_bf16_f32 v{G+i}, v{O[2*i]}, v{O[2*i+1]}")
            for i in range(4):
                A(f"v_lshlrev_b32 v{O[2*i]}, 16, v{G+i}")
                A(f"v_and_b32 v{O[2*i+1]}, s34, v{G+i}")
            for i in range(8): A(f"v_mul_f32 v{E[i]}, s35, v{O[i]}")
            for i in range(8): A(f"v_exp_f32 v{E[i]}, v{E[i]}")
            for i in range(8): A(f"v_add_f32 v{E[i]}, 1.0, v{E[i]}")
            for i in range(8): A(f"v_rcp_f32 v{E[i]}, v{E[i]}")
            for i in range(8): A(f"v_mul_f32 v{E[i]}, v{O[i]}, v{E[i]}")
            for i in range(4): A(f"v_cvt_pk_bf16_f32 v{G+i}, v{E[2*i]}, v{E[2*i+1]}")
            A(f"v_permlane16_swap_b32 v{G}, v{G+2}")
            A(f"v_permlane16_swap_b32 v{G+1}, v{G+3}")
            sp, xp = SP + 8*tm2 + 4*fp, XP + 8*tm2 + 4*fp
            for i in range(4):
                a0, a1, b0, b1 = T
                A(f"v_lshlrev_b32 v{a0}, 16, v{sp+i}")
                A(f"v_and_b32 v{a1}, s34, v{sp+i}")
                A(f"v_lshlrev_b32 v{b0}, 16, v{G+i}")
                A(f"v_and_b32 v{b1}, s34, v{G+i}")
                A(f"v_mul_f32 v{a0}, v{a0}, v{b0}")
                A(f"v_mul_f32 v{a1}, v{a1}, v{b1}")
                A(f"v_cvt_pk_bf16_f32 v{a0}, v{a0}, v{a1}")
                A(f"v_lshlrev_b32 v{b0}, 16, v{a0}")
                A(f"v_and_b32 v{b1}, s34, v{a0}")
                A(f"v_lshlrev_b32 v{a0}, 16, v{xp+i}")
                A(f"v_and_b32 v{a1}, s34, v{xp+i}")
                A(f"v_add_f32 v{a0}, v{a0}, v{b0}")
                A(f"v_add_f32 v{a1}, v{a1}, v{b1}")
                A(f"v_cvt_pk_bf16_f32 v{sp+i}, v{a0}, v{a1}")
            A(f"buffer_store_dwordx4 {v(sp,4)}, v{vx_}, s[36:39], s{40+tm2} offen offset:{64*fp}{ST}")
    A("s_endpgm")

    A.label(f"{L}_loader")
    vx, vw = 2, 3
    A("s_sub_u32 s25, s25, 4            ; lw")
    A(f"""
    v_lshlrev_b32 v{vx}, 4, v1
    s_lshr_b32 s40, s22, 1
    s_mul_i32 s40, s40, 56
    s_mul_i32 s28, s24, 28
    s_add_u32 s40, s40, s28
    s_lshl_b32 s40, s40, 15
    s_and_b32 s28, s22, 1
    s_lshl_b32 s28, s28, 14
    s_add_u32 s40, s40, s28
    s_lshl_b32 s26, s25, 12
    s_add_u32 s40, s40, s26
    ; W
    s_mul_i32 s41, s24, {1792*2048}
    s_lshl_b32 s28, s23, 8
    s_add_u32 s41, s41, s28
    v_lshrrev_b32 v8, 4, v1          ; l>>4
    v_and_b32 v9, 15, v1             ; p16
    v_lshrrev_b32 v10, 1, v9         ; c32'
    v_and_b32 v9, 1, v9
    v_lshlrev_b32 v9, 4, v9          ; half*16
    s_lshl_b32 s27, s25, 4           ; 16 lw
    v_add_u32 v11, s27, v8           ; 16lw + (l>>4)
    v_lshlrev_b32 v11, 11, v11
    v_add_u32 v11, v11, v9
    """)
    for i in range(4):
        A(f"""
        v_or_b32 v12, {((i>>1)&1)<<2}, v8
        v_xor_b32 v12, v12, v10
        v_lshlrev_b32 v12, 5, v12
        v_add_u32 v12, v12, v11
        v_add_u32 v{vw+i}, {4*i*2048 - 1024*i}, v12
        """)
    A(f"""
    s_add_u32 s29, s26, {XSZ}
    s_mov_b32 s31, 0
    s_add_u32 s27, s26, {TABL}
    s_waitcnt lgkmcnt(0)
    """)
    srd_from(A, 12, 8, 9, H_OFF, H_SZ)
    srd_from(A, 16, 6, 7, 0, 3584 * 2048)
    srd_table(A, 44, "tab_f3", 16384)
    q = []
    A("s_mov_b32 m0, s27")
    for i in range(4):
        A(f"buffer_load_dwordx4 v{vx}, s[44:47], s26 offen offset:{1024*i} lds"); q.append('t')
    def issue(tag):
        A("s_add_u32 m0, s31, s26")
        for i in range(4):
            A(f"buffer_load_dwordx4 v{vx}, s[12:15], s40 offen offset:{1024*i} lds"); q.append(tag)
        A(f"s_add_u32 m0, s31, s29\ns_add_u32 s31, s31, {STAGE}\ns_add_u32 s40, s40, 32768")
        for i in range(4):
            A(f"buffer_load_dwordx4 v{vw+i}, s[16:19], s41 offen offset:{1024*i} lds"); q.append(tag)
        A(f"s_add_u32 s41, s41, {64*2048}\ns_cmp_eq_u32 s31, {STAGE*NS}\ns_cselect_b32 s31, 0, s31")
    def wait_for(tag):
        last = max(i for i, t in enumerate(q) if t == tag)
        A(f"s_waitcnt vmcnt({len(q) - 1 - last})")
    for i in range(NS): issue(i)
    wait_for('t')
    A("s_barrier")
    wait_for(0)
    A("s_barrier")
    PSTEP = 21
    A("s_mov_b32 s30, 0")
    A.label(f"{L}_lloop")
    A(f"s_waitcnt vmcnt({8*(NS-2)})")
    A("s_barrier")
    issue('l')
    A(f"""
    s_add_u32 s30, s30, 1
    s_cmp_lt_u32 s30, {PSTEP}
    s_cbranch_scc1 {L}_lloop
    """)
    q.clear(); q.extend([22]*8 + [23]*8 + [24]*8)
    wait_for(22); A("s_barrier")
    A(f"""
    s_lshl_b32 s60, s22, 2
    v_mov_b32 v8, s60
    global_load_dword v9, v8, s[54:55] sc1
    """)
    q.append('p')
    issue(25)
    wait_for(23); A("s_barrier"); issue(26)
    wait_for('p')
    A(f"""
    v_readfirstlane_b32 s60, v9
    s_cmp_ge_u32 s60, 16
    s_cbranch_scc1 {L}_ready
    s_mov_b32 s70, 0
    {L}_poll:
    s_add_u32 s70, s70, 1
    s_cmp_ge_u32 s70, {SPIN}
    s_cbranch_scc1 {L}_ready
    s_sleep 1
    global_load_dword v9, v8, s[54:55] sc1
    s_waitcnt vmcnt(0)
    v_readfirstlane_b32 s60, v9
    s_cmp_ge_u32 s60, 16
    s_cbranch_scc0 {L}_poll
    {L}_ready:
    """)
    A("s_barrier"); issue(27)
    wait_for(25); A("s_barrier")
    wait_for(26); A("s_barrier")
    wait_for(27); A("s_barrier")
    A("s_barrier")
    A("s_endpgm")
```

```python
from asmlib import *
from layout import *
from k1 import srd_from, srd_table

STAGE = 16384
NS = 8
NSTEP = 28
TABL = NS * STAGE
STG = TABL + 16384
LDS_K3 = STG + 16384
SPIN = 400000

def f3_consumer(A, cfg):
    D1 = [0, 32]
    TW, YP, RD = 112, 144, 160
    TAB = 0
    SP = RD
    T = [176, 177, 178, 179, 180, 181]
    vny, vw_, vr_, vt_, vy, vz = 182, 183, 184, 185, 186, 187
    lane = 72
    def part0():
        srd_from(A, 44, 8, 9, Y1_OFF, Y1_SZ)
        A(f"""
        s_lshl_b32 s60, s25, 6
        v_add_u32 v{T[0]}, s60, v{lane}            ; t = w*64 + lane
        v_lshrrev_b32 v{vy}, 2, v{T[0]}
        v_lshlrev_b32 v{vy}, 14, v{vy}
        v_and_b32 v{T[1]}, 3, v{T[0]}
        v_lshlrev_b32 v{T[1]}, 4, v{T[1]}
        v_add_u32 v{vy}, v{vy}, v{T[1]}            ; Y voffset
        s_lshl_b32 s60, s20, 6               ; rho*64
        s_add_u32 s61, s60, {1*MB}
        s_add_u32 s62, s60, {2*MB}
        s_add_u32 s63, s60, {3*MB}
        s_add_u32 s64, s60, {4*MB}
        s_lshl_b32 s65, s25, 2
        s_add_u32 s64, s64, s65
        v_mov_b32 v{vz}, 0
        """)
        for i in range(4):
            A(f"buffer_load_dwordx4 {v(YP+4*i,4)}, v{vy}, s[44:47], s{60+i} offen")
        A(f"buffer_load_dword v{vny}, v{vz}, s[44:47], s64 offen")
        A(f"""
        v_and_b32 v{vw_}, 1, v{T[0]}
        v_lshlrev_b32 v{vw_}, 13, v{vw_}
        v_lshrrev_b32 v{T[1]}, 1, v{T[0]}
        v_lshlrev_b32 v{T[1]}, 4, v{T[1]}
        v_add_u32 v{vw_}, v{vw_}, v{T[1]}
        v_add_u32 v{vw_}, {STG}, v{vw_}
        v_and_b32 v{vr_}, 31, v{lane}
        v_lshlrev_b32 v{vr_}, 4, v{vr_}
        v_lshrrev_b32 v{T[1]}, 5, v{lane}
        v_lshlrev_b32 v{T[1]}, 11, v{T[1]}
        v_add_u32 v{vr_}, v{vr_}, v{T[1]}
        s_add_u32 s65, s65, {STG}
        v_add_u32 v{vr_}, s65, v{vr_}
        v_lshlrev_b32 v{vt_}, 4, v{lane}
        v_add_u32 v{vt_}, {TABL}, v{vt_}
        s_mov_b32 s67, 0x05040100
        s_mov_b32 s68, 0x07060302
        s_mov_b32 s69, 0xffff0000
        """)
    def part1():
        A("s_waitcnt vmcnt(8)")
        for i in range(4):
            A(f"ds_write_b128 v{vw_}, {v(YP+4*i,4)} offset:{2048*i}")
        A("s_waitcnt lgkmcnt(0)")
    def part2(after_twiddle):
        for t in range(2):
            for q in range(4):
                o0 = 2 * (8 * t + q)
                A(f"ds_read2st64_b32 {v(RD+8*t+2*q,2)}, v{vr_} offset0:{o0} offset1:{o0+32}")
        order = [0, 1, 2, 3, 8, 9, 10, 11, 12, 13, 14, 15, 4, 5, 6, 7]
        for i in order:
            dst = a(TAB+4*i,4) if i < 8 else v(TW+4*(i-8),4)
            A(f"ds_read_b128 {dst}, v{vt_} offset:{1024*i}")
        AF = YP
        A("s_waitcnt lgkmcnt(12)")
        for t in range(2):
            for q in range(4):
                a_, b_ = RD + 8*t + 2*q, RD + 8*t + 2*q + 1
                A(f"v_perm_b32 v{AF+4*t+q}, v{b_}, v{a_}, s67")
                A(f"v_perm_b32 v{AF+8+4*t+q}, v{b_}, v{a_}, s68")
        for t in range(2):
            for r in range(2):
                for part in range(2):
                    d = v(D1[r] + 16*part, 16)
                    A(f"v_mfma_f32_32x32x16_bf16 {d}, {v(AF+8*r+4*t,4)}, {a(TAB+8*part+4*t,4)}, {'0' if t == 0 else d}")
        A(f"""
        v_and_b32 v{vw_}, 31, v{lane}
        v_lshlrev_b32 v{vw_}, 6, v{vw_}
        v_lshrrev_b32 v{vr_}, 5, v{lane}
        v_lshlrev_b32 v{vr_}, 4, v{vr_}
        v_add_u32 v{vw_}, v{vw_}, v{vr_}
        s_lshl_b32 s60, s20, 3
        s_lshl_b32 s61, s25, 1
        s_add_u32 s60, s60, s61
        s_lshl_b32 s60, s60, 11
        s_add_u32 s61, s60, 2048
        v_lshlrev_b32 v{T[4]}, 16, v{vny}
        v_and_b32 v{T[5]}, s69, v{vny}
        v_mul_f32 v{T[4]}, 0x35000000, v{T[4]}
        v_mul_f32 v{T[5]}, 0x35000000, v{T[5]}
        s_waitcnt lgkmcnt(0)
        """)
        PK = [RD, YP]
        for r in range(2):
            Dr, Di = D1[r], D1[r] + 16
            for e in range(16):
                t1, t2 = T[(e & 1) * 2], T[(e & 1) * 2 + 1]
                A(f"v_mul_f32 v{t1}, v{Di+e}, v{TW+16+e}")
                A(f"v_mul_f32 v{t2}, v{Di+e}, v{TW+e}")
                A(f"v_fma_f32 v{Di+e}, v{Dr+e}, v{TW+16+e}, v{t2}")
                A(f"v_fma_f32 v{Dr+e}, v{Dr+e}, v{TW+e}, -v{t1}")
                if e & 1:
                    b, q = e >> 3, (e & 7) >> 1
                    A(f"v_cvt_pk_bf16_f32 v{PK[r]+4*b+q}, v{Dr+e-1}, v{Dr+e}")
                    A(f"v_cvt_pk_bf16_f32 v{PK[r]+8+4*b+q}, v{Di+e-1}, v{Di+e}")
            if r == 0:
                seq = [(pin, b) for pin in range(2) for b in range(2)]
                for k, (pin, b) in enumerate(seq):
                    d = v(D1[0], 16)
                    A(f"v_mfma_f32_32x32x16_bf16 {d}, {v(PK[0]+8*pin+4*b,4)}, {a(TAB+16+8*pin+4*b,4)}, {'0' if k == 0 else d}")
        after_twiddle()
        for k, (pin, b) in enumerate(seq):
            d = v(D1[1], 16)
            A(f"v_mfma_f32_32x32x16_bf16 {d}, {v(PK[1]+8*pin+4*b,4)}, {a(TAB+16+8*pin+4*b,4)}, {'0' if k == 0 else d}")
        for r in range(2):
            for e in range(16):
                A(f"v_{'add' if e % 2 == 0 else 'sub'}_f32 v{D1[r]+e}, v{D1[r]+e}, v{T[4+r]}")
            for t in range(2):
                base = SP + 8*r + 4*t
                for h in range(2):
                    for i in range(2):
                        e = 4 * (2*t + h) + 2*i
                        A(f"v_cvt_pk_bf16_f32 v{base+2*h+i}, v{D1[r]+e}, v{D1[r]+e+1}")
                A(f"v_permlane32_swap_b32 v{base}, v{base+2}")
                A(f"v_permlane32_swap_b32 v{base+1}, v{base+3}")
                A(f"buffer_store_dwordx4 {v(base,4)}, v{vw_}, s[16:19], s{60+r} offen offset:{32*t} sc1")
    return part0, part1, part2


def gen_gemm4(A, name, cfg):
    L = name
    ST = cfg.get('st', '')
    WIMG = cfg.get('wimg', False)
    A(f"""
    s_load_dwordx2 s[6:7], s[0:1], {ARG_W2}
    s_load_dwordx2 s[8:9], s[0:1], {ARG_WS}
    s_load_dwordx2 s[4:5], s[0:1], {ARG_X}
    s_load_dwordx4 s[52:55], s[0:1], {ARG_OUT}
    v_readfirstlane_b32 s25, v0
    s_lshr_b32 s25, s25, 6
    v_and_b32 v1, 63, v0             ; lane
    s_cmp_ge_u32 s25, 4
    s_cbranch_scc1 {L}_loader
    """)
    WA, WB = 0, 32
    wa = 64
    lane, t0, t1, t2, t3 = 72, 73, 74, 75, 76
    ex, vx_, vs_ = 77, 78, 79
    XR = 80
    xb = 188
    wa2 = 176
    XP, SP = 144, 160
    p0, p1, p2 = f3_consumer(A, cfg)
    HT = 112 * 1024
    def xloads(slot):
        r = []
        for h in range(2):
            for tm in range(2):
                r.append(f"buffer_load_dwordx4 {v(XR+16*slot+8*h+4*tm,4)}, v{xb if tm else ex}, s[56:59], s33 offen offset:{1024*h}")
        r.append(f"s_add_u32 s33, s33, {0 if cfg.get('fixx') else 2048}")
        return r
    A(f"""
    v_mov_b32 v{lane}, v1
    v_lshlrev_b32 v{ex}, 4, v1
    v_add_u32 v{xb}, {HT}, v{ex}
    s_lshl_b32 s33, s22, 3
    s_lshl_b32 s28, s25, 1
    s_add_u32 s33, s33, s28
    s_mul_i32 s33, s33, 112
    s_mul_i32 s28, s24, 56
    s_add_u32 s33, s33, s28
    s_lshl_b32 s33, s33, 10
    s_waitcnt lgkmcnt(0)
    """)
    p0()
    srd_from(A, 56, 8, 9, H_OFF, H_SZ)
    for x in xloads(0) + xloads(1): A(x)
    A(f"""
    v_and_b32 v{t0}, 15, v{lane}     ; i = l&15
    v_lshrrev_b32 v{t1}, 4, v{lane}  ; G
    v_lshrrev_b32 v{t2}, 2, v{t0}    ; r'
    v_and_b32 v{t3}, 1, v{t1}
    v_lshlrev_b32 v{t3}, 2, v{t3}
    v_or_b32 v{t3}, v{t3}, v{t2}     ; f(k)
    v_lshlrev_b32 v{t1}, 3, v{t1}    ; 8G
    v_add_u32 v{t1}, v{t1}, v{t2}    ; 8G + r'
    v_lshlrev_b32 v{t1}, 8, v{t1}    ; *256
    v_and_b32 v{t0}, 3, v{t0}        ; cc
    v_lshlrev_b32 v{t0}, 3, v{t0}
    v_add_u32 v{t1}, v{t1}, v{t0}
    """)
    for tf in range(8):
        A(f"""
        v_xor_b32 v{t0}, {tf}, v{t3}
        v_lshlrev_b32 v{t0}, 5, v{t0}
        v_add_u32 v{wa+tf}, v{t0}, v{t1}
        """)
    for i in range(32, 64):
        A(f"v_accvgpr_write_b32 a{i}, 0")
    A(f"""
    v_and_b32 v{t1}, 15, v{lane}         ; i
    v_lshrrev_b32 v{t2}, 4, v{lane}      ; G
    v_and_b32 v{t3}, 1, v{t2}
    v_lshlrev_b32 v{t3}, 1, v{t3}
    v_lshrrev_b32 v{t2}, 1, v{t2}
    v_or_b32 v{t2}, v{t2}, v{t3}         ; cG
    v_lshlrev_b32 v{t2}, 4, v{t2}
    v_lshlrev_b32 v{vs_}, 11, v{t1}
    v_add_u32 v{vs_}, v{vs_}, v{t2}
    v_bfe_u32 v{t3}, v{t1}, 2, 1
    v_lshlrev_b32 v{t3}, 3, v{t3}
    v_and_b32 v{vx_}, 3, v{t1}
    v_add_u32 v{vx_}, v{vx_}, v{t3}
    v_lshlrev_b32 v{vx_}, 6, v{vx_}
    v_lshrrev_b32 v{t3}, 3, v{t1}
    v_add_u32 v{vx_}, v{vx_}, v{t3}
    v_lshlrev_b32 v{vx_}, 11, v{vx_}
    v_add_u32 v{vx_}, v{vx_}, v{t2}
    s_lshl_b32 s28, s22, 4
    s_lshl_b32 s29, s25, 2
    s_add_u32 s28, s28, s29
    s_lshl_b32 s29, s24, 1
    s_add_u32 s28, s28, s29
    s_lshr_b32 s29, s28, 7               ; gamma
    s_lshl_b32 s29, s29, 4
    s_lshr_b32 s30, s28, 5
    s_and_b32 s30, s30, 1
    s_lshl_b32 s30, s30, 2
    s_add_u32 s29, s29, s30
    s_lshl_b32 s29, s29, 6
    s_lshr_b32 s30, s28, 6
    s_and_b32 s30, s30, 1
    s_lshl_b32 s30, s30, 5
    s_add_u32 s29, s29, s30
    s_and_b32 s30, s28, 31
    s_add_u32 s29, s29, s30              ; nS
    s_lshl_b32 s29, s29, 11
    s_lshl_b32 s30, s23, 8               ; cb2*256
    s_add_u32 s40, s29, s30
    s_lshl_b32 s28, s28, 14
    s_add_u32 s42, s28, s30              ; s soffset
    s_lshl_b32 s26, s22, 3
    s_add_u32 s26, s26, s23
    s_lshl_b32 s26, s26, 1
    s_add_u32 s26, s26, s24
    s_xor_b32 s27, s26, 1
    s_lshl_b32 s26, s26, 14
    s_lshl_b32 s27, s27, 14
    s_lshl_b32 s28, s25, 12
    s_add_u32 s26, s26, s28
    s_add_u32 s27, s27, s28
    """)
    srd_from(A, 12, 4, 5, 0, 4 * MB)
    srd_from(A, 16, 8, 9, S_OFF, S_SZ)
    srd_from(A, 36, 52, 53, 0, 4 * MB)
    srd_from(A, 48, 8, 9, E_OFF, E_SZ)
    p1()
    A("s_barrier")
    def after_twiddle():
        for x in xloads(2): A(x)
    p2(after_twiddle)
    for i in range(32):
        A(f"v_accvgpr_write_b32 a{i}, 0")
    for tf in range(8):
        A(f"v_add_u32 v{wa2+tf}, 65536, v{wa+tf}")

    def reads(wset, stage, h):
        r = []
        base = wa if stage < 4 else wa2
        for tf in range(8):
            for u in range(2):
                r.append(f"ds_read_b64_tr_b16 {v(wset+4*tf+2*u,2)}, v{base+tf} offset:{(stage&3)*STAGE+h*8192+u*1024}")
        return r

    def unit(slot, h, wset, rd, extra=(), vm=None, bar=False, postbar=None):
        mf = []
        for tf in range(8):
            order = (0, 1) if tf % 2 == 0 else (1, 0)
            for tm in order:
                d = a(4*(tf*2+tm), 4)
                mf.append(f"v_mfma_f32_16x16x32_bf16 {d}, {v(wset+4*tf,4)}, {v(XR+16*slot+8*h+4*tm,4)}, {d}")
        rd = list(rd); extra = list(extra)
        hasrd = bool(rd)
        for i, m in enumerate(mf):
            if i % 2 == 0:
                n = 14 if hasrd else 14 - i
                A(f"s_waitcnt vmcnt({vm}) lgkmcnt({n})" if (i == 0 and vm is not None) else f"s_waitcnt lgkmcnt({n})")
            A(m)
            if i == 0 and bar:
                A("s_barrier")
                if postbar: postbar()
            if rd: A(rd.pop(0))
            if extra and i >= 2 and i % 2 == 1: A(extra.pop(0))
        for e in extra: A(e)

    early = []
    for fp in range(4):
        early.append(f"buffer_load_dwordx4 {v(SP+4*fp,4)}, v{vs_}, s[16:19], s42 offen offset:{64*fp} sc1")
    for fp in range(4):
        early.append(f"buffer_load_dwordx4 {v(XP+4*fp,4)}, v{vx_}, s[12:15], s40 offen offset:{64*fp}")

    A("s_barrier")
    stamp(A, cfg, 0); stamp(A, cfg, 2, True)
    for r in reads(WA, 0, 0): A(r)
    def cstep(st, vm, xl=True, extraA=(), postbar=None, last=False):
        j = st & 3
        exA = (xloads((j + 3) % 4) if xl else []) + list(extraA)
        unit(j, 0, WA, reads(WB, st, 1), extra=exA, vm=vm)
        unit(j, 1, WB, [] if last else reads(WA, (st + 1) % 8, 0), bar=(st & 1 == 1 and not last), postbar=postbar)
    def signal():
        A(f"""
        s_cmp_lg_u32 s25, 0
        s_cbranch_scc1 {L}_nosig
        s_lshr_b32 s60, s20, 4
        s_lshl_b32 s60, s60, 2
        v_mov_b32 v{t0}, s60
        v_mov_b32 v{t1}, 1
        s_mov_b64 exec, 1
        global_atomic_add v{t0}, v{t1}, s[54:55] sc1
        s_mov_b64 exec, -1
        {L}_nosig:
        """)
    cstep(0, 12); cstep(1, 12); cstep(2, 12); cstep(3, 8, postbar=signal)
    A("s_mov_b32 s30, 0")
    A.label(f"{L}_cloop")
    for st in (4, 5, 6, 7, 0, 1, 2, 3): cstep(st, 8)
    A(f"""
    s_add_u32 s30, s30, 1
    s_cmp_lt_u32 s30, 2
    s_cbranch_scc1 {L}_cloop
    """)
    for st in (4, 5, 6, 7): cstep(st, 8)
    cstep(0, 8, extraA=early); cstep(1, 16, xl=False); cstep(2, 12, xl=False); cstep(3, 8, xl=False, last=True)
    stamp(A, cfg, 1); stamp(A, cfg, 3, True)
    RP = 32
    SND = 0
    TMP = 80
    OW = 80
    def send(tm):
        for tf in range(8):
            for r in range(4):
                A(f"v_accvgpr_read_b32 v{TMP+4*tf+r}, a{4*(tf*2+tm)+r}")
        for k in range(8):
            for i in range(2):
                A(f"v_cvt_pk_bf16_f32 v{SND+2*k+i}, v{TMP+4*k+2*i}, v{TMP+4*k+2*i+1}")
        for k in range(16):
            A(f"v_min_u32 v{SND+k}, s34, v{SND+k}")
        for i in range(4):
            A(f"buffer_store_dwordx4 {v(SND+4*i,4)}, v{ex}, s[48:51], s26 offen offset:{1024*i} sc1")
    def own(tm):
        for tf in range(8):
            for r in range(4):
                A(f"v_accvgpr_read_b32 v{OW+4*tf+r}, a{4*(tf*2+tm)+r}")
    def fetch():
        for i in range(4):
            A(f"buffer_load_dwordx4 {v(RP+4*i,4)}, v{ex}, s[48:51], s27 offen offset:{1024*i} sc1")
    A(f"""
    s_mov_b32 s34, 0xfffffffe
    s_mov_b32 s35, 0xbfb8aa3b
    s_cmp_eq_u32 s24, 0
    s_cbranch_scc1 {L}_kh0
    """)
    send(0); fetch(); own(1)
    A(f"s_branch {L}_sent")
    A.label(f"{L}_kh0")
    send(1); fetch(); own(0)
    A.label(f"{L}_sent")
    A("s_mov_b32 s70, 0")
    A.label(f"{L}_chk")
    A("s_waitcnt vmcnt(0)")
    A(f"v_max3_u32 v{t0}, v{RP}, v{RP+1}, v{RP+2}")
    for i in range(3, 15, 2):
        A(f"v_max3_u32 v{t0}, v{t0}, v{RP+i}, v{RP+i+1}")
    A(f"""
    v_max_u32 v{t0}, v{t0}, v{RP+15}
    v_cmp_eq_u32 vcc, -1, v{t0}
    s_nop 4
    s_cbranch_vccz {L}_got
    s_add_u32 s70, s70, 1
    s_cmp_ge_u32 s70, {SPIN}
    s_cbranch_scc1 {L}_got
    """)
    fetch()
    A(f"s_branch {L}_chk")
    A.label(f"{L}_got")
    stamp(A, cfg, 4)
    A("s_mov_b32 s34, 0xffff0000")
    E = [112 + i for i in range(8)]
    G = 120
    T = [124, 125, 126, 127]
    for fp in range(4):
        O = [OW + 4*(2*fp + t) + r for t in range(2) for r in range(4)]
        for t in range(2):
            for i in range(2):
                src = RP + 2*(2*fp + t) + i
                A(f"v_lshlrev_b32 v{E[4*t+2*i]}, 16, v{src}")
                A(f"v_and_b32 v{E[4*t+2*i+1]}, s34, v{src}")
        for i in range(8): A(f"v_add_f32 v{O[i]}, v{O[i]}, v{E[i]}")
        for i in range(4):
            A(f"v_cvt_pk_bf16_f32 v{G+i}, v{O[2*i]}, v{O[2*i+1]}")
        for i in range(4):
            A(f"v_lshlrev_b32 v{O[2*i]}, 16, v{G+i}")
            A(f"v_and_b32 v{O[2*i+1]}, s34, v{G+i}")
        for i in range(8): A(f"v_mul_f32 v{E[i]}, s35, v{O[i]}")
        for i in range(8): A(f"v_exp_f32 v{E[i]}, v{E[i]}")
        for i in range(8): A(f"v_add_f32 v{E[i]}, 1.0, v{E[i]}")
        for i in range(8): A(f"v_rcp_f32 v{E[i]}, v{E[i]}")
        for i in range(8): A(f"v_mul_f32 v{E[i]}, v{O[i]}, v{E[i]}")
        for i in range(4): A(f"v_cvt_pk_bf16_f32 v{G+i}, v{E[2*i]}, v{E[2*i+1]}")
        A(f"v_permlane16_swap_b32 v{G}, v{G+2}")
        A(f"v_permlane16_swap_b32 v{G+1}, v{G+3}")
        sp, xp = SP + 4*fp, XP + 4*fp
        for i in range(4):
            a0, a1, b0, b1 = T
            A(f"v_lshlrev_b32 v{a0}, 16, v{sp+i}")
            A(f"v_and_b32 v{a1}, s34, v{sp+i}")
            A(f"v_lshlrev_b32 v{b0}, 16, v{G+i}")
            A(f"v_and_b32 v{b1}, s34, v{G+i}")
            A(f"v_mul_f32 v{a0}, v{a0}, v{b0}")
            A(f"v_mul_f32 v{a1}, v{a1}, v{b1}")
            A(f"v_cvt_pk_bf16_f32 v{a0}, v{a0}, v{a1}")
            A(f"v_lshlrev_b32 v{b0}, 16, v{a0}")
            A(f"v_and_b32 v{b1}, s34, v{a0}")
            A(f"v_lshlrev_b32 v{a0}, 16, v{xp+i}")
            A(f"v_and_b32 v{a1}, s34, v{xp+i}")
            A(f"v_add_f32 v{a0}, v{a0}, v{b0}")
            A(f"v_add_f32 v{a1}, v{a1}, v{b1}")
            A(f"v_cvt_pk_bf16_f32 v{sp+i}, v{a0}, v{a1}")
        A(f"buffer_store_dwordx4 {v(sp,4)}, v{vx_}, s[36:39], s40 offen offset:{64*fp}{ST}")
    A("s_endpgm")

    A.label(f"{L}_loader")
    vx, vw = 2, 3
    A("s_sub_u32 s25, s25, 4            ; lw")
    A(f"""
    v_lshlrev_b32 v{vx}, 4, v1
    s_lshl_b32 s26, s25, 12
    """)
    if WIMG:
        A(f"""
        s_mul_i32 s41, s23, {3584*256}
        s_mul_i32 s28, s24, {1792*256}
        s_add_u32 s41, s41, s28
        s_add_u32 s41, s41, s26
        """)
    else:
        A(f"""
        s_mul_i32 s41, s24, {1792*2048}
        s_lshl_b32 s28, s23, 8
        s_add_u32 s41, s41, s28
        v_lshrrev_b32 v8, 4, v1          ; l>>4
        v_and_b32 v9, 15, v1             ; p16
        v_lshrrev_b32 v10, 1, v9         ; c32'
        v_and_b32 v9, 1, v9
        v_lshlrev_b32 v9, 4, v9          ; half*16
        s_lshl_b32 s27, s25, 4           ; 16 lw
        v_add_u32 v11, s27, v8           ; 16lw + (l>>4)
        v_lshlrev_b32 v11, 11, v11
        v_add_u32 v11, v11, v9
        """)
        for i in range(4):
            A(f"""
            v_or_b32 v12, {((i>>1)&1)<<2}, v8
            v_xor_b32 v12, v12, v10
            v_lshlrev_b32 v12, 5, v12
            v_add_u32 v12, v12, v11
            v_add_u32 v{vw+i}, {4*i*2048 - 1024*i}, v12
            """)
    A(f"""
    s_mov_b32 s31, 0
    s_add_u32 s27, s26, {TABL}
    s_waitcnt lgkmcnt(0)
    """)
    if WIMG:
        srd_from(A, 16, 8, 9, W2I_OFF, W2I_SZ)
    else:
        srd_from(A, 16, 6, 7, 0, 3584 * 2048)
    srd_table(A, 44, "tab_f3", 16384)
    q = []
    A("s_mov_b32 m0, s27")
    for i in range(4):
        A(f"buffer_load_dwordx4 v{vx}, s[44:47], s26 offen offset:{1024*i} lds"); q.append('t')
    def issue(tag):
        for half in range(2):
            A(f"s_add_u32 m0, s31, s26\ns_add_u32 s31, s31, {STAGE}")
            for i in range(4):
                A(f"buffer_load_dwordx4 v{vx if WIMG else vw+i}, s[16:19], s41 offen offset:{1024*i} lds"); q.append(tag)
            A(f"s_add_u32 s41, s41, {0 if cfg.get('fixw') else 64*(256 if WIMG else 2048)}")
        A(f"s_cmp_eq_u32 s31, {STAGE*NS}\ns_cselect_b32 s31, 0, s31")
    def wait_for(tag):
        last = max(i for i, t in enumerate(q) if t == tag)
        A(f"s_waitcnt vmcnt({len(q) - 1 - last})")
    for i in range(3): issue(i)
    wait_for('t')
    A("s_barrier")
    wait_for(0)
    A("s_barrier")
    A("s_mov_b32 s30, 0")
    A.label(f"{L}_lloop")
    A("s_waitcnt vmcnt(8)")
    A("s_barrier")
    issue('l')
    A(f"""
    s_add_u32 s30, s30, 1
    s_cmp_lt_u32 s30, 10
    s_cbranch_scc1 {L}_lloop
    """)
    q.clear(); q.extend([11]*8 + [12]*8)
    wait_for(11); A("s_barrier")
    A(f"""
    s_lshl_b32 s60, s22, 2
    v_mov_b32 v8, s60
    global_load_dword v9, v8, s[54:55] sc1
    """)
    q.append('p')
    issue(13)
    wait_for('p')
    A(f"""
    v_readfirstlane_b32 s60, v9
    s_cmp_ge_u32 s60, 16
    s_cbranch_scc1 {L}_ready
    s_mov_b32 s70, 0
    {L}_poll:
    s_add_u32 s70, s70, 1
    s_cmp_ge_u32 s70, {SPIN}
    s_cbranch_scc1 {L}_ready
    s_sleep 1
    global_load_dword v9, v8, s[54:55] sc1
    s_waitcnt vmcnt(0)
    v_readfirstlane_b32 s60, v9
    s_cmp_ge_u32 s60, 16
    s_cbranch_scc0 {L}_poll
    {L}_ready:
    """)
    A("s_barrier")
    wait_for(13); A("s_barrier")
    A("s_endpgm")
```

```python
from asmlib import *
from layout import *
from consts import *
import numpy as np

def table_text(name, dwords):
    out = [f".section .rodata,\"a\"\n.p2align 8\n.type {name},@object\n{name}:"]
    d = np.asarray(dwords, dtype=np.uint32).reshape(-1)
    for i in range(0, len(d), 8):
        out.append(".long " + ",".join("0x%x" % x for x in d[i:i+8]))
    out.append(f".size {name}, {4*len(d)}")
    return "\n".join(out) + "\n"

def tw_quads(tw_re, tw_im):
    q = []
    for arr in (tw_re, tw_im):
        f = np.asarray(arr, dtype=np.float32).view(np.uint32)
        for g in range(4):
            q.append(f[:, 4*g:4*g+4])
    return np.stack(q)

def f1_table():
    fr, tw = f1_tables()
    fl = [fr['B1r', 0], fr['B1r', 1], fr['B1i', 0], fr['B1i', 1],
          fr['A2', 0, 0], fr['A2', 0, 1], fr['A2', 1, 0], fr['A2', 1, 1]]
    a = np.stack([pack_frag(f) for f in fl])
    return np.concatenate([a.reshape(-1), tw_quads(tw.real, tw.imag).reshape(-1)])

def srd_from(A, dst, lo, hi, off, size):
    A(f"s_add_u32 s{dst}, s{lo}, {off}" if off else f"s_mov_b32 s{dst}, s{lo}")
    A(f"s_addc_u32 s{dst+1}, s{hi}, 0" if off else f"s_mov_b32 s{dst+1}, s{hi}")
    A(f"s_mov_b32 s{dst+2}, {size}")
    A(f"s_mov_b32 s{dst+3}, 0x20000")

def srd_table(A, dst, name, size):
    A(f"""
    s_getpc_b64 s[{dst}:{dst+1}]
    s_add_u32 s{dst}, s{dst}, {name}@rel32@lo+4
    s_addc_u32 s{dst+1}, s{dst+1}, {name}@rel32@hi+12
    s_mov_b32 s{dst+2}, {size}
    s_mov_b32 s{dst+3}, 0x20000
    """)

def wave_reduce(A, regs):
    for mod in ("row_shr:1", "row_shr:2", "row_shr:4", "row_shr:8"):
        for r in regs:
            A(f"v_add_f32_dpp v{r}, v{r}, v{r} {mod} row_mask:0xf bank_mask:0xf bound_ctrl:0")
    for r in regs:
        A(f"v_add_f32_dpp v{r}, v{r}, v{r} row_bcast:15 row_mask:0xa bank_mask:0xf")
    for r in regs:
        A(f"v_add_f32_dpp v{r}, v{r}, v{r} row_bcast:31 row_mask:0xc bank_mask:0xf")

def gen_k1(A, name, cfg):
    ST = cfg.get('st', '')
    L = name
    A(f"""
    s_cmp_ge_u32 s2, 512
    s_cbranch_scc1 {L}_done
    s_load_dwordx2 s[4:5], s[0:1], {ARG_X}
    s_load_dwordx4 s[8:11], s[0:1], {ARG_WR}
    s_load_dwordx2 s[6:7], s[0:1], {ARG_WS}
    v_readfirstlane_b32 s25, v0
    v_and_b32 v1, 63, v0
    s_lshr_b32 s25, s25, 6
    s_cmp_ge_u32 s2, 256
    s_cbranch_scc1 {L}_wprep
    """)
    XROW, XS, NYQ = 0, 16384, 32768
    RAW = [8, 16]
    F = [24, 40]
    TAB = 64
    TW = 96
    D1 = [128, 160]
    AF = [56, 8]
    PK = [24, 40]
    D2 = [128, 160]
    A(f"""
    s_and_b32 s20, s2, 7
    s_lshr_b32 s21, s2, 3
    s_lshl_b32 s20, s20, 5
    s_add_u32 s20, s20, s21            ; rho
    s_lshr_b32 s21, s20, 7             ; gamma
    s_lshl_b32 s21, s21, 4
    s_lshr_b32 s22, s20, 5
    s_and_b32 s22, s22, 1              ; hi
    s_lshl_b32 s22, s22, 2
    s_add_u32 s21, s21, s22
    s_lshr_b32 s22, s25, 1
    s_lshl_b32 s22, s22, 3
    s_add_u32 s21, s21, s22
    s_and_b32 s22, s25, 1
    s_lshl_b32 s22, s22, 1
    s_add_u32 s21, s21, s22
    s_lshl_b32 s21, s21, 6
    s_lshr_b32 s22, s20, 6
    s_and_b32 s22, s22, 1
    s_lshl_b32 s22, s22, 5
    s_add_u32 s21, s21, s22
    s_and_b32 s22, s20, 31
    s_add_u32 s21, s21, s22
    s_lshl_b32 s21, s21, 11
    s_add_u32 s22, s21, 131072         ; row B
    v_lshlrev_b32 v2, 4, v1            ; lane*16
    s_waitcnt lgkmcnt(0)
    """)
    srd_from(A, 12, 4, 5, 0, 4 * MB)
    A(f"""
    buffer_load_dwordx4 v[{RAW[0]}:{RAW[0]+3}], v2, s[12:15], s21 offen
    buffer_load_dwordx4 v[{RAW[0]+4}:{RAW[0]+7}], v2, s[12:15], s21 offen offset:1024
    buffer_load_dwordx4 v[{RAW[1]}:{RAW[1]+3}], v2, s[12:15], s22 offen
    buffer_load_dwordx4 v[{RAW[1]+4}:{RAW[1]+7}], v2, s[12:15], s22 offen offset:1024
    """)
    srd_table(A, 16, "tab_f1", 16384)
    A("s_mov_b32 s26, 4096\ns_mov_b32 s27, 8192\ns_mov_b32 s28, 12288")
    for i in range(16):
        so = ["0", "s26", "s27", "s28"][i >> 2]
        A(f"buffer_load_dwordx4 v[{TAB+4*i}:{TAB+4*i+3}], v2, s[16:19], {so} offen offset:{1024*(i&3)}")
    A(f"""
    s_and_b32 s29, s20, 1
    s_lshl_b32 s29, s29, 2
    s_add_u32 s29, s29, s25
    v_and_b32 v3, 7, v1
    v_xor_b32 v3, s29, v3
    v_lshlrev_b32 v3, 4, v3
    v_lshrrev_b32 v4, 3, v1
    v_lshlrev_b32 v4, 15, v4
    v_add_u32 v3, v3, v4
    s_lshr_b32 s30, s20, 5
    s_lshl_b32 s30, s30, 19            ; mb*524288
    s_and_b32 s31, s20, 31
    s_lshl_b32 s31, s31, 3
    s_lshl_b32 s33, s25, 1
    s_add_u32 s31, s31, s33
    s_lshl_b32 s31, s31, 7
    s_add_u32 s30, s30, s31
    s_add_u32 s31, s30, 262144
    s_lshl_b32 s33, s25, 12
    v_add_u32 v4, s33, v2
    v_lshrrev_b32 v5, 5, v1
    v_lshlrev_b32 v5, 3, v5
    v_bfe_u32 v6, v1, 2, 2
    v_add_u32 v5, v5, v6
    v_lshlrev_b32 v5, 6, v5
    v_bfe_u32 v6, v1, 4, 1
    v_lshlrev_b32 v6, 5, v6
    v_add_u32 v5, v5, v6
    v_and_b32 v6, 3, v1
    v_lshlrev_b32 v6, 3, v6
    v_add_u32 v5, v5, v6
    v_add_u32 v5, s33, v5
    v_and_b32 v6, 31, v1
    v_lshlrev_b32 v6, 4, v6
    v_lshrrev_b32 v7, 5, v1
    v_lshlrev_b32 v7, 11, v7
    v_add_u32 v6, v6, v7
    s_lshl_b32 s33, s25, 2
    s_add_u32 s33, s33, {XS}
    v_add_u32 v6, s33, v6
    """)
    srd_from(A, 36, 6, 7, XN_OFF, XN_SZ)
    srd_from(A, 40, 6, 7, X1_OFF, X1_SZ)
    A("s_mov_b32 s34, 0xffff0000")
    A("s_waitcnt vmcnt(16)")
    for r in range(2):
        for i in range(8):
            A(f"v_lshlrev_b32 v{F[r]+2*i}, 16, v{RAW[r]+i}")
            A(f"v_and_b32 v{F[r]+2*i+1}, s34, v{RAW[r]+i}")
    S = [56, 57]
    T = [58, 59, 60, 61]
    for r in range(2):
        A(f"v_add_f32 v{S[r]}, v{F[r]}, v{F[r]+1}")
    for i in range(2, 16):
        for r in range(2):
            A(f"v_add_f32 v{S[r]}, v{S[r]}, v{F[r]+i}")
    wave_reduce(A, S)
    for r in range(2):
        A(f"v_readlane_b32 s{44+r}, v{S[r]}, 63")
    for r in range(2):
        A(f"v_mov_b32 v{T[r]}, 0x3a800000")
        A(f"v_mul_f32 v{T[r]}, s{44+r}, v{T[r]}")
    for i in range(16):
        for r in range(2):
            A(f"v_sub_f32 v{T[2+r]}, v{F[r]+i}, v{T[r]}")
            if i == 0:
                A(f"v_mul_f32 v{S[r]}, v{T[2+r]}, v{T[2+r]}")
            else:
                A(f"v_fmac_f32 v{S[r]}, v{T[2+r]}, v{T[2+r]}")
    wave_reduce(A, S)
    for r in range(2):
        A(f"v_readlane_b32 s{46+r}, v{S[r]}, 63")
    for r in range(2):
        A(f"v_cvt_pk_bf16_f32 v{T[r]}, v{T[r]}, v{T[r]}")
        A(f"v_and_b32 v{T[r]}, s34, v{T[r]}")
        A(f"v_mov_b32 v{T[2+r]}, 0x3a800000")
        A(f"v_mul_f32 v{T[2+r]}, s{46+r}, v{T[2+r]}")
        A(f"v_cvt_pk_bf16_f32 v{T[2+r]}, v{T[2+r]}, v{T[2+r]}")
        A(f"v_and_b32 v{T[2+r]}, s34, v{T[2+r]}")
        A(f"v_add_f32 v{T[2+r]}, 0x3727c5ac, v{T[2+r]}")
        A(f"v_cvt_pk_bf16_f32 v{T[2+r]}, v{T[2+r]}, v{T[2+r]}")
        A(f"v_and_b32 v{T[2+r]}, s34, v{T[2+r]}")
        A(f"v_sqrt_f32 v{T[2+r]}, v{T[2+r]}")
        A(f"v_cvt_pk_bf16_f32 v{T[2+r]}, v{T[2+r]}, v{T[2+r]}")
        A(f"v_and_b32 v{T[2+r]}, s34, v{T[2+r]}")
        A(f"v_rcp_f32 v{T[2+r]}, v{T[2+r]}")
    U = [62, 63]
    for i in range(8):
        for r in range(2):
            a0, a1 = F[r]+2*i, F[r]+2*i+1
            A(f"v_sub_f32 v{a0}, v{a0}, v{T[r]}")
            A(f"v_sub_f32 v{a1}, v{a1}, v{T[r]}")
            A(f"v_cvt_pk_bf16_f32 v{U[r]}, v{a0}, v{a1}")
            A(f"v_lshlrev_b32 v{a0}, 16, v{U[r]}")
            A(f"v_and_b32 v{a1}, s34, v{U[r]}")
            A(f"v_mul_f32 v{a0}, v{a0}, v{T[2+r]}")
            A(f"v_mul_f32 v{a1}, v{a1}, v{T[2+r]}")
            A(f"v_cvt_pk_bf16_f32 v{RAW[r]+i}, v{a0}, v{a1}")
    for r in range(2):
        A(f"ds_write_b128 v4, v[{RAW[r]}:{RAW[r]+3}] offset:{XROW + 2048*r}")
        A(f"ds_write_b128 v4, v[{RAW[r]+4}:{RAW[r]+7}] offset:{XROW + 2048*r + 1024}")
    for r in range(2):
        A(f"buffer_store_dwordx4 v[{RAW[r]}:{RAW[r]+3}], v3, s[36:39], s30 offen offset:{128*r}{ST}")
        A(f"buffer_store_dwordx4 v[{RAW[r]+4}:{RAW[r]+7}], v3, s[36:39], s31 offen offset:{128*r}{ST}")
    A("s_waitcnt lgkmcnt(0)")
    AF = [24, 40]
    for r in range(2):
        for t in range(2):
            for u in range(2):
                A(f"ds_read_b64_tr_b16 v[{AF[r]+4*t+2*u}:{AF[r]+4*t+2*u+1}], v5 offset:{XROW + 2048*r + 1024*t + 256*u}")
    A("s_waitcnt vmcnt(4) lgkmcnt(0)")
    for r in range(2):
        for part in range(2):
            for t in range(2):
                d = v(D1[r] + 16*part, 16)
                A(f"v_mfma_f32_32x32x16_bf16 {d}, {v(AF[r]+4*t,4)}, {v(TAB+8*part+4*t,4)}, {'0' if t == 0 else d}")
    NY = [56, 57]
    PK = [8, 40]
    PK = [192, 208]
    for r in range(2):
        Dr, Di = D1[r], D1[r] + 16
        A(f"v_sub_f32 v{NY[r]}, v{Dr}, v{Dr+1}")
        for i in range(2, 16):
            A(f"v_{'add' if i % 2 == 0 else 'sub'}_f32 v{NY[r]}, v{NY[r]}, v{Dr+i}")
    for r in range(2):
        Dr, Di = D1[r], D1[r] + 16
        for e in range(16):
            t1, t2 = T[0] + (e & 1) * 2, T[1] + (e & 1) * 2
            A(f"v_mul_f32 v{t1}, v{Di+e}, v{TW+16+e}")
            A(f"v_mul_f32 v{t2}, v{Di+e}, v{TW+e}")
            A(f"v_fma_f32 v{Di+e}, v{Dr+e}, v{TW+16+e}, v{t2}")
            A(f"v_fma_f32 v{Dr+e}, v{Dr+e}, v{TW+e}, -v{t1}")
            if e & 1:
                b, q = e >> 3, (e & 7) >> 1
                A(f"v_cvt_pk_bf16_f32 v{PK[r]+4*b+q}, v{Dr+e-1}, v{Dr+e}")
                A(f"v_cvt_pk_bf16_f32 v{PK[r]+8+4*b+q}, v{Di+e-1}, v{Di+e}")
    for r in range(2):
        d = v(D2[r], 16)
        first = True
        for pin in range(2):
            for b in range(2):
                A(f"v_mfma_f32_32x32x16_bf16 {d}, {v(TAB+16+8*pin+4*b,4)}, {v(PK[r]+8*pin+4*b,4)}, {'0' if first else d}")
                first = False
    for r in range(2):
        A(f"v_readlane_b32 s{44+r}, v{NY[r]}, 32")
    for r in range(2):
        A(f"v_add_f32 v{NY[r]}, s{44+r}, v{NY[r]}")
    A(f"v_cvt_pk_bf16_f32 v{NY[0]}, v{NY[0]}, v{NY[1]}")
    A(f"""
    s_lshl_b32 s33, s25, 2
    s_add_u32 s33, s33, {NYQ}
    v_mov_b32 v58, s33
    v_cmp_eq_u32 vcc, 0, v1
    v_mov_b32 v59, 1.0
    v_mov_b32 v60, 0.5
    v_cndmask_b32 v59, v59, v60, vcc
    s_mov_b64 exec, 1
    ds_write_b32 v58, v{NY[0]}
    s_mov_b64 exec, -1
    """)
    for r in range(2):
        A(f"v_mul_f32 v{D2[r]}, v{D2[r]}, v59")
    for e in range(8):
        o0 = 2 * (8 * (e >> 2) + (e & 3))
        a, b = 60 + 2 * (e & 1), 61 + 2 * (e & 1)
        A(f"v_cvt_pk_bf16_f32 v{a}, v{D2[0]+e}, v{D2[1]+e}")
        A(f"v_cvt_pk_bf16_f32 v{b}, v{D2[0]+8+e}, v{D2[1]+8+e}")
        A(f"ds_write2st64_b32 v6, v{a}, v{b} offset0:{o0} offset1:{o0+32}")
    A(f"""
    v_and_b32 v7, 1, v0
    v_lshlrev_b32 v7, 13, v7
    v_lshrrev_b32 v8, 1, v0
    v_lshlrev_b32 v8, 4, v8
    v_add_u32 v7, v7, v8
    v_add_u32 v7, {XS}, v7
    v_lshrrev_b32 v8, 2, v0
    v_lshlrev_b32 v8, 14, v8
    v_and_b32 v9, 3, v0
    v_lshlrev_b32 v9, 4, v9
    v_add_u32 v8, v8, v9
    s_lshl_b32 s33, s20, 6              ; rho*64
    s_add_u32 s44, s33, {1*MB}
    s_add_u32 s45, s33, {2*MB}
    s_add_u32 s46, s33, {3*MB}
    s_add_u32 s47, s33, {4*MB}
    s_waitcnt lgkmcnt(0)
    s_barrier
    """)
    for i in range(4):
        A(f"ds_read_b128 v[{12+4*i}:{15+4*i}], v7 offset:{2048*i}")
    A(f"v_mov_b32 v28, {NYQ}")
    A("ds_read_b128 v[28:31], v28")
    for i in range(4):
        A(f"s_waitcnt lgkmcnt({4-i})")
        so = ["s33", "s44", "s45", "s46"][i]
        A(f"buffer_store_dwordx4 v[{12+4*i}:{15+4*i}], v8, s[40:43], {so} offen{ST}")
    A(f"""
    s_cmp_eq_u32 s25, 0
    s_cbranch_scc0 {L}_done
    s_waitcnt lgkmcnt(0)
    v_cmp_eq_u32 vcc, 0, v1
    v_cndmask_b32 v28, 0, v28, vcc
    v_cndmask_b32 v29, 0, v29, vcc
    v_cndmask_b32 v30, 0, v30, vcc
    v_cndmask_b32 v31, 0, v31, vcc
    s_mov_b64 exec, 3
    buffer_store_dwordx4 v[28:31], v2, s[40:43], s47 offen{ST}
    s_endpgm
    """)
    A.label(f"{L}_wprep")
    A(f"""
    s_sub_u32 s20, s2, 256
    s_and_b32 s21, s20, 63             ; combo
    s_lshr_b32 s22, s20, 6             ; crange
    s_lshr_b32 s23, s21, 2
    s_and_b32 s24, s21, 3              ; oct
    s_lshl_b32 s26, s24, 3
    s_lshr_b32 s27, s25, 1
    s_lshl_b32 s27, s27, 2
    s_add_u32 s26, s26, s27
    s_lshl_b32 s27, s23, 7
    s_add_u32 s27, s27, s26
    s_mul_i32 s28, s27, 1026
    s_add_u32 s29, s28, 32832
    s_add_u32 s30, s28, {2*32832}
    s_add_u32 s31, s28, {3*32832}
    ; column
    s_lshl_b32 s33, s22, 7
    s_and_b32 s34, s25, 1
    s_lshl_b32 s34, s34, 6
    s_add_u32 s33, s33, s34
    v_add_u32 v2, s33, v1              ; c
    v_lshlrev_b32 v3, 1, v2            ; 2c
    s_waitcnt lgkmcnt(0)
    """)
    srd_from(A, 12, 8, 9, 0, 2048 * 1026)
    srd_from(A, 16, 10, 11, 0, 2048 * 1026)
    srd_from(A, 36, 6, 7, WT_OFF, WT_SZ)
    so = ["s28", "s29", "s30", "s31"]
    for i in range(4):
        for r in range(4):
            A(f"buffer_load_ushort v{8+4*i+r}, v3, s[12:15], {so[r]} offen offset:{1026*i}")
            A(f"buffer_load_ushort v{24+4*i+r}, v3, s[16:19], {so[r]} offen offset:{1026*i}")
    for arg, tag in ((ARG_W1, 'pfw1'), (ARG_W2, 'pfw2')):
        if cfg.get(tag):
            A(f"""
            s_load_dwordx2 s[48:49], s[0:1], {arg}
            s_lshl_b32 s50, s20, 2
            s_add_u32 s50, s50, s25
            s_lshl_b32 s50, s50, 13
            s_add_u32 s51, s50, 4096
            v_lshlrev_b32 v48, 6, v1
            s_waitcnt lgkmcnt(0)
            """)
            srd_from(A, 52, 48, 49, 0, 1024 * 7168)
            A("buffer_load_dword v49, v48, s[52:55], s50 offen")
            A("buffer_load_dword v49, v48, s[52:55], s51 offen")
    A(f"""
    v_lshlrev_b32 v4, 13, v2
    s_lshr_b32 s34, s23, 1
    s_lshl_b32 s34, s34, 10
    s_and_b32 s35, s23, 1
    s_lshl_b32 s35, s35, 9
    s_add_u32 s34, s34, s35
    s_lshl_b32 s35, s26, 4
    s_add_u32 s35, s35, s34
    """)
    A(f"""
    s_cmp_eq_u32 s22, 3
    s_cselect_b32 s40, 1, 0
    s_cmp_eq_u32 s25, 0
    s_cselect_b32 s40, s40, 0
    s_cmp_eq_u32 s40, 0
    s_cbranch_scc1 {L}_noextra
    v_and_b32 v5, 7, v1
    v_mul_u32_u24 v6, 1026, v5
    v_add_u32 v6, 1024, v6
    s_mov_b64 exec, 0xff
    """)
    for r in range(4):
        A(f"buffer_load_ushort v{40+r}, v6, s[12:15], {so[r]} offen")
        A(f"buffer_load_ushort v{44+r}, v6, s[16:19], {so[r]} offen")
    A(f"""
    v_lshlrev_b32 v5, 4, v5
    v_add_u32 v5, {512*8192}, v5
    s_waitcnt vmcnt(0)
    v_lshl_or_b32 v40, v44, 16, v40
    v_lshl_or_b32 v41, v45, 16, v41
    v_lshl_or_b32 v42, v46, 16, v42
    v_lshl_or_b32 v43, v47, 16, v43
    buffer_store_dwordx4 v[40:43], v5, s[36:39], s35 offen{ST}
    s_mov_b64 exec, -1
    """)
    A.label(f"{L}_noextra")
    for i in range(4):
        if i == 0: A("s_waitcnt vmcnt(0)")
        for r in range(4):
            A(f"v_lshl_or_b32 v{8+4*i+r}, v{24+4*i+r}, 16, v{8+4*i+r}")
        A(f"buffer_store_dwordx4 v[{8+4*i}:{11+4*i}], v4, s[36:39], s35 offen offset:{16*i}{ST}")
    A.label(f"{L}_done")
    A("s_endpgm")
```

```python
from asmlib import *
from layout import *
from consts import *
from k1 import srd_from, srd_table, tw_quads, table_text
import numpy as np

def f3_table():
    fr, tw = f3_tables(2.0 ** -20)
    fl = [fr['BAr', 0], fr['BAr', 1], fr['BAi', 0], fr['BAi', 1],
          fr['BB', 0, 0], fr['BB', 0, 1], fr['BB', 1, 0], fr['BB', 1, 1]]
    a = np.stack([pack_frag(f) for f in fl])
    return np.concatenate([a.reshape(-1), tw_quads(tw.real, tw.imag).reshape(-1)])

def gen_k4(A, name, cfg):
    L = name
    ST = cfg.get('st', '')
    F3O = cfg.get('f3only', False)
    TAB, TW = 8, 40
    PP = 72
    XX = 136
    D1 = [152, 184]
    YP = 216
    RD = 232
    T = [248, 249, 250, 251, 252, 253, 254, 255]
    A(f"""
    s_cmp_ge_u32 s2, 256
    s_cbranch_scc1 {L}_done
    s_load_dwordx2 s[4:5], s[0:1], {ARG_X}
    s_load_dwordx2 s[8:9], s[0:1], {ARG_OUT}
    s_load_dwordx2 s[6:7], s[0:1], {ARG_WS}
    v_readfirstlane_b32 s25, v0
    v_and_b32 v1, 63, v0
    s_lshr_b32 s25, s25, 6
    s_and_b32 s20, s2, 7
    s_lshr_b32 s21, s2, 3
    s_lshl_b32 s20, s20, 5
    s_add_u32 s20, s20, s21            ; rho
    s_lshr_b32 s21, s20, 7             ; gamma
    s_lshl_b32 s21, s21, 4
    s_lshr_b32 s22, s20, 5
    s_and_b32 s22, s22, 1              ; hi
    s_lshl_b32 s22, s22, 2
    s_add_u32 s21, s21, s22
    s_lshr_b32 s22, s25, 1
    s_lshl_b32 s22, s22, 3
    s_add_u32 s21, s21, s22
    s_and_b32 s22, s25, 1
    s_lshl_b32 s22, s22, 1
    s_add_u32 s21, s21, s22
    s_lshl_b32 s21, s21, 6
    s_lshr_b32 s22, s20, 6
    s_and_b32 s22, s22, 1
    s_lshl_b32 s22, s22, 5
    s_add_u32 s21, s21, s22
    s_and_b32 s22, s20, 31
    s_add_u32 s21, s21, s22
    s_lshl_b32 s21, s21, 11
    s_add_u32 s22, s21, 131072         ; row B
    v_lshrrev_b32 v2, 2, v0
    v_lshlrev_b32 v2, 14, v2
    v_and_b32 v3, 3, v0
    v_lshlrev_b32 v3, 4, v3
    v_add_u32 v2, v2, v3
    s_lshl_b32 s33, s20, 6              ; rho*64
    s_add_u32 s44, s33, {1*MB}
    s_add_u32 s45, s33, {2*MB}
    s_add_u32 s46, s33, {3*MB}
    s_add_u32 s47, s33, {4*MB}
    s_lshl_b32 s48, s25, 2
    s_add_u32 s47, s47, s48
    v_mov_b32 v3, 0
    s_waitcnt lgkmcnt(0)
    """)
    srd_from(A, 12, 6, 7, Y1_OFF, Y1_SZ)
    for i in range(4):
        A(f"buffer_load_dwordx4 {v(YP+4*i,4)}, v2, s[12:15], {['s33','s44','s45','s46'][i]} offen")
    A("buffer_load_dword v7, v3, s[12:15], s47 offen")
    srd_table(A, 16, "tab_f3", 16384)
    A("v_lshlrev_b32 v4, 4, v1")
    A("s_mov_b32 s26, 4096\ns_mov_b32 s27, 8192\ns_mov_b32 s28, 12288")
    for i in range(16):
        so = ["0", "s26", "s27", "s28"][i >> 2]
        A(f"buffer_load_dwordx4 {v(TAB+4*i,4)}, v4, s[16:19], {so} offen offset:{1024*(i&3)}")
    A(f"""
    v_and_b32 v5, 31, v1
    v_lshlrev_b32 v5, 6, v5
    v_lshrrev_b32 v6, 5, v1
    v_lshlrev_b32 v6, 4, v6
    v_add_u32 v5, v5, v6
    s_lshl_b32 s29, s20, 3
    s_lshl_b32 s30, s25, 1
    s_add_u32 s29, s29, s30
    s_lshl_b32 s29, s29, 11
    """)
    srd_from(A, 36, 6, 7, P_OFF, P_SZ)
    srd_from(A, 40, 4, 5, 0, 4 * MB)
    for ks in range(0 if F3O else 4):
        A(f"s_add_u32 s30, s29, {ks * 4 * MB}")
        for r in range(2):
            for t in range(2):
                A(f"buffer_load_dwordx4 {v(PP+16*ks+8*r+4*t,4)}, v5, s[36:39], s30 offen offset:{2048*r + 32*t}")
    for r in range(0 if F3O else 2):
        for t in range(2):
            A(f"buffer_load_dwordx4 {v(XX+8*r+4*t,4)}, v5, s[40:43], {'s21' if r == 0 else 's22'} offen offset:{32*t}")
    A(f"""
    v_and_b32 v2, 1, v0
    v_lshlrev_b32 v2, 13, v2
    v_lshrrev_b32 v3, 1, v0
    v_lshlrev_b32 v3, 4, v3
    v_add_u32 v2, v2, v3
    v_and_b32 v3, 31, v1
    v_lshlrev_b32 v3, 4, v3
    v_lshrrev_b32 v6, 5, v1
    v_lshlrev_b32 v6, 11, v6
    v_add_u32 v3, v3, v6
    s_lshl_b32 s30, s25, 2
    v_add_u32 v3, s30, v3
    s_mov_b32 s34, 0xffff0000
    s_mov_b32 s35, 0x05040100
    s_mov_b32 s48, 0x07060302
    s_mov_b32 s49, 0xbfb8aa3b
    s_waitcnt vmcnt({17 if F3O else 37})
    """)
    for i in range(4):
        A(f"ds_write_b128 v2, {v(YP+4*i,4)} offset:{2048*i}")
    A("s_waitcnt lgkmcnt(0)\ns_barrier")
    for t in range(2):
        for q in range(4):
            o0 = 2 * (8 * t + q)
            A(f"ds_read2st64_b32 {v(RD+8*t+2*q,2)}, v3 offset0:{o0} offset1:{o0+32}")
    AF = YP
    for t in range(2):
        A(f"s_waitcnt lgkmcnt({4*(1-t)})")
        for q in range(4):
            a_, b_ = RD + 8*t + 2*q, RD + 8*t + 2*q + 1
            A(f"v_perm_b32 v{AF+4*t+q}, v{b_}, v{a_}, s35")
            A(f"v_perm_b32 v{AF+8+4*t+q}, v{b_}, v{a_}, s48")
    A("s_waitcnt vmcnt(0)" if F3O else "s_waitcnt vmcnt(20)")
    for r in range(2):
        for part in range(2):
            for t in range(2):
                d = v(D1[r] + 16*part, 16)
                A(f"v_mfma_f32_32x32x16_bf16 {d}, {v(AF+8*r+4*t,4)}, {v(TAB+8*part+4*t,4)}, {'0' if t == 0 else d}")
    if not F3O: A("s_waitcnt vmcnt(4)")
    for i in range(0 if F3O else 16):
        o = 4 * (i & 1)
        lo, hi_, t1, t2 = T[o], T[o+1], T[o+2], T[o+3]
        A(f"v_lshlrev_b32 v{lo}, 16, v{PP+i}")
        A(f"v_and_b32 v{hi_}, s34, v{PP+i}")
        for ks in range(1, 4):
            A(f"v_lshlrev_b32 v{t1}, 16, v{PP+16*ks+i}")
            A(f"v_and_b32 v{t2}, s34, v{PP+16*ks+i}")
            A(f"v_add_f32 v{lo}, v{lo}, v{t1}")
            A(f"v_add_f32 v{hi_}, v{hi_}, v{t2}")
        A(f"v_cvt_pk_bf16_f32 v{t1}, v{lo}, v{hi_}")
        A(f"v_lshlrev_b32 v{lo}, 16, v{t1}")
        A(f"v_and_b32 v{hi_}, s34, v{t1}")
        A(f"v_mul_f32 v{t1}, s49, v{lo}")
        A(f"v_mul_f32 v{t2}, s49, v{hi_}")
        A(f"v_exp_f32 v{t1}, v{t1}")
        A(f"v_exp_f32 v{t2}, v{t2}")
        A(f"v_add_f32 v{t1}, 1.0, v{t1}")
        A(f"v_add_f32 v{t2}, 1.0, v{t2}")
        A(f"v_rcp_f32 v{t1}, v{t1}")
        A(f"v_rcp_f32 v{t2}, v{t2}")
        A(f"v_mul_f32 v{lo}, v{lo}, v{t1}")
        A(f"v_mul_f32 v{hi_}, v{hi_}, v{t2}")
        A(f"v_cvt_pk_bf16_f32 v{PP+i}, v{lo}, v{hi_}")
    PK = [PP + 16, PP + 32]
    for r in range(2):
        Dr, Di = D1[r], D1[r] + 16
        for e in range(16):
            t1, t2 = T[(e & 1) * 2], T[(e & 1) * 2 + 1]
            A(f"v_mul_f32 v{t1}, v{Di+e}, v{TW+16+e}")
            A(f"v_mul_f32 v{t2}, v{Di+e}, v{TW+e}")
            A(f"v_fma_f32 v{Di+e}, v{Dr+e}, v{TW+16+e}, v{t2}")
            A(f"v_fma_f32 v{Dr+e}, v{Dr+e}, v{TW+e}, -v{t1}")
            if e & 1:
                b, q = e >> 3, (e & 7) >> 1
                A(f"v_cvt_pk_bf16_f32 v{PK[r]+4*b+q}, v{Dr+e-1}, v{Dr+e}")
                A(f"v_cvt_pk_bf16_f32 v{PK[r]+8+4*b+q}, v{Di+e-1}, v{Di+e}")
    D2 = D1
    for r in range(2):
        d = v(D2[r], 16)
        first = True
        for pin in range(2):
            for b in range(2):
                A(f"v_mfma_f32_32x32x16_bf16 {d}, {v(PK[r]+8*pin+4*b,4)}, {v(TAB+16+8*pin+4*b,4)}, {'0' if first else d}")
                first = False
    A(f"""
    v_lshlrev_b32 v{T[4]}, 16, v7
    v_and_b32 v{T[5]}, s34, v7
    v_mul_f32 v{T[4]}, 0x35000000, v{T[4]}
    v_mul_f32 v{T[5]}, 0x35000000, v{T[5]}
    """)
    if F3O:
        srd_from(A, 52, 6, 7, S_OFF, S_SZ)
        A("s_mov_b32 s21, s29\ns_add_u32 s22, s29, 2048")
    else:
        srd_from(A, 52, 8, 9, 0, 4 * MB)
    A("s_waitcnt vmcnt(0)")
    SP = PP + 48
    for r in range(2):
        for e in range(16):
            A(f"v_{'add' if e % 2 == 0 else 'sub'}_f32 v{D2[r]+e}, v{D2[r]+e}, v{T[4+r]}")
        for t in range(2):
            base = SP + 8*r + 4*t
            for h in range(2):
                for i in range(2):
                    e = 4 * (2*t + h) + 2*i
                    A(f"v_cvt_pk_bf16_f32 v{base+2*h+i}, v{D2[r]+e}, v{D2[r]+e+1}")
            A(f"v_permlane32_swap_b32 v{base}, v{base+2}")
            A(f"v_permlane32_swap_b32 v{base+1}, v{base+3}")
            for i in range(0 if F3O else 4):
                sreg, greg, xreg = base + i, PP + 8*r + 4*t + i, XX + 8*r + 4*t + i
                a0, a1, b0, b1 = T[0], T[1], T[2], T[3]
                A(f"v_lshlrev_b32 v{a0}, 16, v{sreg}")
                A(f"v_and_b32 v{a1}, s34, v{sreg}")
                A(f"v_lshlrev_b32 v{b0}, 16, v{greg}")
                A(f"v_and_b32 v{b1}, s34, v{greg}")
                A(f"v_mul_f32 v{a0}, v{a0}, v{b0}")
                A(f"v_mul_f32 v{a1}, v{a1}, v{b1}")
                A(f"v_cvt_pk_bf16_f32 v{a0}, v{a0}, v{a1}")
                A(f"v_lshlrev_b32 v{b0}, 16, v{a0}")
                A(f"v_and_b32 v{b1}, s34, v{a0}")
                A(f"v_lshlrev_b32 v{a0}, 16, v{xreg}")
                A(f"v_and_b32 v{a1}, s34, v{xreg}")
                A(f"v_add_f32 v{a0}, v{a0}, v{b0}")
                A(f"v_add_f32 v{a1}, v{a1}, v{b1}")
                A(f"v_cvt_pk_bf16_f32 v{sreg}, v{a0}, v{a1}")
            A(f"buffer_store_dwordx4 {v(base,4)}, v5, s[52:55], {'s21' if r == 0 else 's22'} offen offset:{32*t}{ST}")
    A.label(f"{L}_done")
    A("s_endpgm")
```

```python
MB = 1 << 20
XN_OFF = 0
XN_SZ = 4 * MB
X1_OFF = 4 * MB
X1_SZ = 257 * 16384
WT_OFF = 9 * MB
WT_SZ = 514 * 8192
Y1_OFF = 14 * MB
Y1_SZ = 257 * 16384
H_OFF = 20 * MB
H_SZ = 8 * 56 * 32768
P_OFF = 36 * MB
P_SZ = 4 * 2048 * 2048
ARG_X, ARG_WR, ARG_WI, ARG_W1, ARG_W2, ARG_OUT, ARG_DBG, ARG_WS = 0, 8, 16, 32, 40, 48, 56, 64
S_OFF = 54 * MB
S_SZ = 4 * MB

E_OFF = 36 * MB
E_SZ = 4 * MB
W2I_OFF = 40 * MB
W2I_SZ = 3584 * 2048
```

```python
import sys
sys.path.insert(0,'gen')
from asmlib import *
from layout import *
from k1 import *
from f2 import *
from gemm import *
from k4 import *
from gemm2 import *
from gemm3 import gen_gemm3
from gemm4 import gen_gemm4
import gemm4

K3MAP = {
 0: '''s_and_b32 s22, s20, 3
    s_lshl_b32 s22, s22, 2
    s_and_b32 s23, s21, 3
    s_add_u32 s22, s22, s23          ; rb
    s_lshr_b32 s23, s20, 2
    s_lshl_b32 s23, s23, 3
    s_lshr_b32 s24, s21, 2
    s_add_u32 s23, s23, s24          ; cb''',
 1: '''s_lshl_b32 s22, s20, 1
    s_and_b32 s23, s21, 1
    s_add_u32 s22, s22, s23
    s_lshr_b32 s23, s21, 1''',
 3: '''s_lshr_b32 s22, s20, 1
    s_lshl_b32 s22, s22, 2
    s_and_b32 s23, s21, 3
    s_add_u32 s22, s22, s23
    s_lshr_b32 s23, s21, 2
    s_and_b32 s24, s20, 1''',
 2: '''s_lshr_b32 s22, s20, 1
    s_lshl_b32 s22, s22, 2
    s_and_b32 s23, s21, 3
    s_add_u32 s22, s22, s23
    s_lshr_b32 s23, s21, 2
    s_lshl_b32 s23, s23, 1
    s_and_b32 s24, s20, 1
    s_add_u32 s23, s23, s24''',
}

G1MAP = {
 0: """s_and_b32 s22, s20, 1
    s_lshl_b32 s22, s22, 2
    s_and_b32 s23, s21, 3
    s_add_u32 s22, s22, s23          ; mb
    s_lshr_b32 s23, s20, 1
    s_mul_i32 s23, s23, 7
    s_lshr_b32 s24, s21, 2
    s_add_u32 s23, s23, s24          ; nb""",
 1: """s_lshr_b32 s22, s20, 1
    s_lshl_b32 s22, s22, 1
    s_and_b32 s23, s21, 1
    s_add_u32 s22, s22, s23
    s_and_b32 s23, s20, 1
    s_mul_i32 s23, s23, 14
    s_lshr_b32 s24, s21, 1
    s_add_u32 s23, s23, s24""",
}

def build_ka(path, cfg):
    import ka
    A = Asm()
    hdr = f"""; recurrent_scan / spectral gfnet / dense silu
; @launch kernel=ka_kernel grid=(256,1,1) block=(512,1,1) lds={ka.LDS_KA}
; @launch kernel=k3_kernel grid=(256,1,1) block=(512,1,1) lds={gemm4.LDS_K3}
"""
    A.raw(hdr)
    A.raw('.amdgcn_target "amdgcn-amd-amdhsa--gfx950"\n.text')
    kernel_header(A, "ka_kernel")
    ka.gen_ka(A, "ka", dict(stamps=cfg.get('stamps'), st=cfg.get('st2', ''), stf2=cfg.get('stf2', ''), pk=cfg.get('pk', True),
                            wst=cfg.get('wst', ''), relayw2=cfg.get('relay', True), poison=cfg.get('poison', True), **cfg.get('kax', {})))
    kernel_header(A, "k3_kernel")
    A(f"""
    s_cmp_ge_u32 s2, 256
    s_cbranch_scc1 k3_done
    s_and_b32 s20, s2, 7             ; xcd
    s_lshr_b32 s21, s2, 3            ; slot
    {K3MAP[3]}
    s_lshl_b32 s20, s20, 5
    s_add_u32 s20, s20, s21          ; rho
    """)
    g2cfg = dict(stamps=cfg.get('stamps'), st=cfg.get('st3', ''), wimg=cfg.get('relay', True), pack=cfg.get('kax', {}).get('pack'), y32=cfg.get('kax', {}).get('y32'))
    g2cfg.update(cfg.get('k3x', {}))
    gen_gemm4(A, "g4", g2cfg)
    A.label("k3_done")
    A("s_endpgm")
    A.label("code_end")
    if cfg.get('stamps'):
        add_timing(A, ['ka_kernel', 'k3_kernel'])
    A.fix_hazards(verbose=True)
    txt = A.text()
    txt += kernel_descriptor("ka_kernel", 256)
    txt += kernel_descriptor("k3_kernel", 192, agpr=64, accum=192)
    txt += table_text("tab_f1", f1_table()) + table_text("tab_f2", f2_table()) + table_text("tab_f3", f3_table())
    open(path, 'w').write(txt)
    print(path, len(txt), 'bytes')

def build(path, cfg=None):
    cfg = cfg or {}
    if cfg.get('ka'):
        return build_ka(path, cfg)
    v4 = cfg.get('v4', False)
    s2 = cfg.get('s2', False) or v4
    fused = cfg.get('fused', False) or s2
    A = Asm()
    hdr = """; recurrent_scan / spectral gfnet / dense silu
; @launch kernel=k1_kernel grid=(512,1,1) block=(256,1,1) lds=33024
; @launch kernel=k2_kernel grid=(256,1,1) block=(512,1,1) lds=147456
"""
    if not fused:
        hdr += "; @launch kernel=k4_kernel grid=(256,1,1) block=(256,1,1) lds=16384\n"
    hdr += f"; @launch kernel=k3_kernel grid=(256,1,1) block=(512,1,1) lds={gemm4.LDS_K3 if v4 else 163840 if fused else 147456}"
    A.raw(hdr)
    A.raw('.amdgcn_target "amdgcn-amd-amdhsa--gfx950"\n.text')
    kernel_header(A, "k1_kernel")
    gen_k1(A, "k1", dict(st=cfg.get('st1', ''), stamps=cfg.get('stamps'), pfw1=cfg.get('k1w1'), pfw2=cfg.get('k1w2')))
    kernel_header(A, "k2_kernel")
    A(f"""
    s_cmp_ge_u32 s2, 256
    s_cbranch_scc1 k2_done
    s_and_b32 s20, s2, 7
    s_lshr_b32 s21, s2, 3
    s_cmp_ge_u32 s21, 28
    s_cbranch_scc1 k2_f2
    {G1MAP[cfg.get('map1', 0)]}
    s_mov_b32 s24, 0
    """)
    gen_gemm(A, "g1", dict(mode='g1', rawx=cfg.get('rawx'), pfw2=cfg.get('k2w2'), poison=s2, hfrag=v4, relayw2=cfg.get('wimg'), stamps=cfg.get('stamps'), st=cfg.get('st2', ''), timing=cfg.get('timing', False), snake=cfg.get('snake', True)))
    A.label("k2_f2")
    A(f"""
    s_load_dwordx2 s[6:7], s[0:1], {ARG_WS}
    v_readfirstlane_b32 s25, v0
    v_and_b32 v1, 63, v0
    s_lshr_b32 s25, s25, 6
    s_lshl_b32 s26, s20, 2
    s_sub_u32 s21, s21, 28
    s_add_u32 s26, s26, s21
    s_waitcnt lgkmcnt(0)
    """)
    gen_f2(A, "f2", dict(st=cfg.get('stf2', ''), stamps=cfg.get('stamps')))
    A.label("k2_done")
    A("s_endpgm")
    names = ['k1_kernel','k2_kernel']
    if not fused:
        kernel_header(A, "k4_kernel")
        gen_k4(A, "k4", dict(st=cfg.get('st4', ''), stamps=cfg.get('stamps'), f3only=True))
        names.append('k4_kernel')
    kernel_header(A, "k3_kernel")
    names.append('k3_kernel')
    A(f"""
    s_cmp_ge_u32 s2, 256
    s_cbranch_scc1 k3_done
    s_and_b32 s20, s2, 7             ; xcd
    s_lshr_b32 s21, s2, 3            ; slot
    {K3MAP[3 if s2 else cfg.get('map3', 0)]}
    s_lshl_b32 s20, s20, 5
    s_add_u32 s20, s20, s21          ; rho
    """)
    g2cfg = dict(stamps=cfg.get('stamps'), st=cfg.get('st3', ''), pf=cfg.get('pf'), fakew=cfg.get('fakew'))
    if v4:
        g2cfg['wimg'] = bool(cfg.get('wimg'))
        for k_ in ('fixx', 'fixw'): g2cfg[k_] = cfg.get(k_)
        gen_gemm4(A, "g4", g2cfg)
    elif s2:
        gen_gemm3(A, "g3", g2cfg)
    else:
        if fused:
            from f3 import make_f3
            g2cfg['f3'] = make_f3(cfg)
        gen_gemm2(A, "g2", g2cfg)
    A.label("k3_done")
    A("s_endpgm")
    if cfg.get('stamps'):
        add_timing(A, names)
    A.fix_hazards(verbose=True)
    txt = A.text()
    txt += kernel_descriptor("k1_kernel", 224)
    txt += kernel_descriptor("k2_kernel", 256)
    txt += kernel_descriptor("k3_kernel", 192, agpr=64, accum=192)
    if not fused:
        txt += kernel_descriptor("k4_kernel", 256)
    txt += table_text("tab_f1", f1_table()) + table_text("tab_f2", f2_table()) + table_text("tab_f3", f3_table())
    open(path, 'w').write(txt)
    print(path, len(txt), 'bytes')

if __name__ == '__main__':
    E = 'exp/'
    build(E+'c1.s', dict(v4=True, wimg=True))
    build(E+'c1_t.s', dict(stamps=True, v4=True, wimg=True))
    build(E+'d1_t.s', dict(stamps=True, v4=True, wimg=True, fixw=True))
    build(E+'d2_t.s', dict(stamps=True, v4=True, wimg=True, fixx=True))
    build(E+'d3_t.s', dict(stamps=True, v4=True, wimg=True, fixx=True, fixw=True))
```

```python
from asmlib import *
from layout import *
from consts import *
from k1 import srd_from, srd_table, tw_quads, table_text
import numpy as np

NFR = 42
def f2_table():
    fr, tw = f2_tables()
    fl = []
    def tri(c):
        return [c.real, c.imag, -c.imag]
    for g in range(2):
        for qb in range(2):
            fl += tri(fr['B1', g, qb])
    for a in range(2):
        for b in range(2):
            for beta in range(2):
                fl += tri(fr['F64', a, b, beta])
    for beta in range(2):
        fl += tri(fr['A4', 1, beta])
    assert len(fl) == NFR
    a = np.stack([pack_frag(f) for f in fl])
    return np.concatenate([a.reshape(-1), tw_quads(tw.real, tw.imag).reshape(-1)])

def iB1(g, qb): return (g * 2 + qb) * 3
def iF64(a, b, beta): return 12 + ((a * 2 + b) * 2 + beta) * 3
def iA4(beta): return 36 + beta * 3
R_, I_, N_ = 0, 1, 2


def schedule(A, groups, blocks, per_gap, tail=()):
    done = set()
    pend = [dict(b, pos=0) for b in blocks]
    nm = 0
    gend = {}
    def emit_block(b, n=None):
        k = 0
        while b['pos'] < len(b['ins']) and (n is None or k < n):
            A(b['ins'][b['pos']]); b['pos'] += 1; k += 1
        if b['pos'] == len(b['ins']):
            done.add(b['name'])
        return k
    def avail(b):
        a = b['after']
        return a in gend and nm >= gend[a] + b.get('delay', 1)
    def fill(n):
        for b in pend:
            if b['name'] in done:
                continue
            if not avail(b):
                break
            n -= emit_block(b, n)
            if n <= 0:
                break
    for gi, g in enumerate(groups):
        for d in g.get('deps', []):
            for b in pend:
                if b['name'] in done: continue
                assert b['after'] in gend, (gi, d, b['name'])
                emit_block(b)
                if b['name'] == d: break
            assert d in done
        for p in g.get('pre', []): A(p)
        A("s_waitcnt lgkmcnt(0)")
        for mi, m in enumerate(g['mf']):
            A(m); nm += 1
            if mi == 0 and gi + 1 < len(groups):
                for r in groups[gi + 1]['reads']: A(r)
                fill(max(0, per_gap - 3))
            else:
                fill(per_gap)
        gend[gi] = nm
        for p in g.get('post', []): A(p)
    for b in pend:
        if b['name'] not in done: emit_block(b)
    for t in tail: A(t)


def gen_f2(A, name, cfg):
    L = name
    ST = cfg.get('st', '')
    KA = cfg.get('ka')
    LD = ' sc1' if KA else ''
    per_gap = cfg.get('per_gap', 5)
    XI = 8
    DA, DB = 40, 72
    PA = 104
    PB = 136
    W = 152
    T0 = 184
    CB = [216, 228]
    TMP = 240
    vL16, vL64, vLds = 2, 3, 4
    A(f"""
    v_lshlrev_b32 v{vL16}, 4, v1
    v_lshlrev_b32 v{vL64}, 6, v1
    """)
    srd_table(A, 16, "tab_f2", NFR * 1024 + 8192)
    srd_from(A, 8, 6, 7, X1_OFF, X1_SZ)
    srd_from(A, 12, 6, 7, WT_OFF, WT_SZ)
    srd_from(A, 20, 6, 7, Y1_OFF, Y1_SZ)
    A(f"""
    s_lshl_b32 s27, s26, 3
    s_add_u32 s27, s27, s25            ; cp
    s_lshl_b32 s40, s27, 14
    s_lshl_b32 s41, s27, 14
    s_add_u32 s42, s40, 32             ; col B
    s_add_u32 s43, s41, 8192
    s_mov_b32 s44, s42                 ; third
    s_mov_b32 s45, s43
    s_mov_b32 s46, 2
    s_cmp_eq_u32 s27, {cfg.get('extra_cp', 0)}
    s_cselect_b32 s44, {256*16384}, s44
    s_cselect_b32 s45, {512*8192}, s45
    s_cselect_b32 s46, 3, s46
    """)
    def xloads(so):
        out = []
        out.append(f"s_add_u32 s47, {so}, 4096")
        out.append(f"s_add_u32 s48, {so}, 8192")
        out.append(f"s_add_u32 s49, {so}, 12288")
        for qb in range(2):
            for g in range(2):
                sreg = [so, "s47", "s48", "s49"][g * 2 + qb]
                for part in range(2):
                    r = XI + ((qb * 2 + g) * 2 + part) * 4
                    out.append(f"buffer_load_dwordx4 {v(r,4)}, v{vL64}, s[8:11], {sreg} offen offset:{16*part}{LD}")
        return out
    def wloads(so):
        out = [f"s_add_u32 s50, {so}, 4096"]
        for blk in range(2):
            for g in range(4):
                out.append(f"buffer_load_dwordx4 {v(W+16*blk+4*g,4)}, v{vL16}, s[12:15], {so if blk == 0 else 's50'} offen offset:{1024*g}{LD}")
        return out
    if not KA:
        for t in xloads("s40"): A(t)
        for t in wloads("s41"): A(t)
    for i in range(0 if KA else 6):
        A(f"s_add_u32 s28, s25, {8*i}")
        if i == 5:
            A(f"s_min_u32 s28, s28, {NFR-1}")
        A(f"s_lshl_b32 s28, s28, 10")
        A(f"s_mov_b32 m0, s28")
        A(f"buffer_load_dwordx4 v{vL16}, s[16:19], s28 offen lds")
    A(f"s_mov_b32 s28, {NFR*1024}\ns_add_u32 s29, s28, 4096")
    for i in range(8):
        A(f"buffer_load_dwordx4 {v(T0+4*i,4)}, v{vL16}, s[16:19], {'s28' if i < 4 else 's29'} offen offset:{1024*(i&3)}")
    A(f"v_mov_b32 v{vLds}, v{vL16}")
    A("s_mov_b32 s34, 0xffff0000")
    if KA:
        KA()
        stamp(A, cfg, 5)
        for t in xloads("s40"): A(t)
        for t in wloads("s41"): A(t)
        A("s_waitcnt vmcnt(8)")
    else:
        A("s_waitcnt vmcnt(0)")
        A("s_barrier")
    stamp(A, cfg, 0); stamp(A, cfg, 2, True)

    def creads(setn, base, order=(R_, I_, N_)):
        return [f"ds_read_b128 {v(CB[setn]+4*k,4)}, v{vLds} offset:{(base+order[k])*1024}" for k in range(3)]
    CONJ = (R_, N_, I_)
    def mf(D, X, setn, first, constA):
        cr, ci, cn = (v(CB[setn] + 4 * k, 4) for k in range(3))
        Dr, Di = v(D, 16), v(D + 16, 16)
        xr, xi = v(X[0], 4), v(X[1], 4)
        def one(d, x, c, zero):
            a, b = (c, x) if constA else (x, c)
            return f"v_mfma_f32_32x32x16_bf16 {d}, {a}, {b}, {'0' if zero else d}"
        return [one(Dr, xr, cr, first), one(Di, xr, ci, first), one(Dr, xi, cn, False), one(Di, xi, cr, False)]
    groups = []
    def add(reads_base, order, D, X, first, constA, deps=(), **kw):
        n = len(groups) & 1
        groups.append(dict(reads=creads(n, reads_base, order), mf=mf(D, X, n, first, constA), deps=list(deps), **kw))
    Dq = [DA, DB]
    xin = lambda g, qb: (XI + ((qb * 2 + g) * 2) * 4, XI + ((qb * 2 + g) * 2 + 1) * 4)
    Tp = lambda qb, b: (PA + ((qb * 2 + b) * 2) * 4, PA + ((qb * 2 + b) * 2 + 1) * 4)
    Pp = lambda blk, b: ((PB if blk == 0 else PA) + (b * 2) * 4, (PB if blk == 0 else PA) + (b * 2 + 1) * 4)
    Up = lambda qb, b: ((PA + 16 if qb == 0 else PB) + (b * 2) * 4, (PA + 16 if qb == 0 else PB) + (b * 2 + 1) * 4)
    for qb in range(2):
        for g in range(2):
            add(iB1(g, qb), (R_, I_, N_), Dq[qb], xin(g, qb), g == 0, False)
    groups[3]['post'] = xloads("s42")
    for blk in range(2):
        for qb in range(2):
            for b in range(2):
                deps = []
                if blk == 0 and b == 0: deps = [f"TW{qb}"]
                add(iF64(blk, qb, b), (R_, I_, N_), Dq[blk], Tp(qb, b), qb == 0 and b == 0, True, deps)
    for qb in range(2):
        for blk in range(2):
            for b in range(2):
                deps = []
                if qb == 0 and b == 0: deps = [f"WM{blk}"]
                add(iF64(qb, blk, b), CONJ, Dq[qb], Pp(blk, b), blk == 0 and b == 0, False, deps)
    groups[14]['post'] = wloads("s43")
    for qb in range(2):
        for b in range(2):
            deps = [f"TI{qb}"] if b == 0 else []
            if qb == 0:
                add(iB1(b, 0), CONJ, Dq[0], Up(0, b), b == 0, True, deps)
            else:
                add(iA4(b), (R_, I_, N_), Dq[1], Up(1, b), b == 0, True, deps)
    blocks = []
    def tw_block(nm, D, dst, after, conj):
        ins = []
        Dr, Di = D, D + 16
        for e in range(16):
            t1, t2 = TMP + 2 * (e & 1), TMP + 2 * (e & 1) + 1
            br, bi = T0 + e, T0 + 16 + e
            ins.append(f"v_mul_f32 v{t1}, v{Di+e}, v{bi}")
            ins.append(f"v_mul_f32 v{t2}, v{Di+e}, v{br}")
            if not conj:
                ins.append(f"v_fma_f32 v{Di+e}, v{Dr+e}, v{bi}, v{t2}")
                ins.append(f"v_fma_f32 v{Dr+e}, v{Dr+e}, v{br}, -v{t1}")
            else:
                ins.append(f"v_fma_f32 v{Di+e}, -v{Dr+e}, v{bi}, v{t2}")
                ins.append(f"v_fma_f32 v{Dr+e}, v{Dr+e}, v{br}, v{t1}")
            if e & 1:
                b, q = e >> 3, (e & 7) >> 1
                ins.append(f"v_cvt_pk_bf16_f32 v{dst(b)[0]+q}, v{Dr+e-1}, v{Dr+e}")
                ins.append(f"v_cvt_pk_bf16_f32 v{dst(b)[1]+q}, v{Di+e-1}, v{Di+e}")
        blocks.append(dict(name=nm, ins=ins, after=after, delay=2))
    def wm_block(nm, D, blk, after):
        ins = []
        if blk == 0:
            ins.append("s_waitcnt vmcnt(8)")
        Dr, Di = D, D + 16
        for e in range(16):
            o = 4 * (e & 1)
            t1, t2, wr, wi = TMP + o, TMP + o + 1, TMP + o + 2, TMP + o + 3
            w = W + 16 * blk + e
            ins.append(f"v_lshlrev_b32 v{wr}, 16, v{w}")
            ins.append(f"v_and_b32 v{wi}, s34, v{w}")
            ins.append(f"v_mul_f32 v{t1}, v{Di+e}, v{wi}")
            ins.append(f"v_mul_f32 v{t2}, v{Di+e}, v{wr}")
            ins.append(f"v_fma_f32 v{Di+e}, v{Dr+e}, v{wi}, v{t2}")
            ins.append(f"v_fma_f32 v{Dr+e}, v{Dr+e}, v{wr}, -v{t1}")
            if e & 1:
                b, q = e >> 3, (e & 7) >> 1
                ins.append(f"v_cvt_pk_bf16_f32 v{Pp(blk,b)[0]+q}, v{Dr+e-1}, v{Dr+e}")
                ins.append(f"v_cvt_pk_bf16_f32 v{Pp(blk,b)[1]+q}, v{Di+e-1}, v{Di+e}")
        blocks.append(dict(name=nm, ins=ins, after=after, delay=2))
    def out_block(nm, D, qb, after):
        ins = []
        base = PA if qb == 0 else PA + 16
        for part in range(2):
            for g in range(2):
                r = base + (part * 2 + g) * 4
                for q in range(4):
                    s_ = D + 16 * part + 8 * g + 2 * q
                    ins.append(f"v_cvt_pk_bf16_f32 v{r+q}, v{s_}, v{s_+1}")
                so = ["s51", "s52", "s53", "s54"][g * 2 + qb]
                ins.append(f"buffer_store_dwordx4 {v(r,4)}, v{vL64}, s[20:23], {so} offen offset:{16*part}{ST}")
        blocks.append(dict(name=nm, ins=ins, after=after, delay=2))
    tw_block("TW0", DA, lambda b: Tp(0, b), 1, False)
    tw_block("TW1", DB, lambda b: Tp(1, b), 3, False)
    wm_block("WM0", DA, 0, 7)
    wm_block("WM1", DB, 1, 11)
    tw_block("TI0", DA, lambda b: Up(0, b), 15, True)
    tw_block("TI1", DB, lambda b: Up(1, b), 19, True)
    out_block("OUT0", DA, 0, 21)
    out_block("OUT1", DB, 1, 23)

    A.label(f"{L}_col")
    A(f"""
    s_mov_b32 s51, s40
    s_add_u32 s52, s40, 4096
    s_add_u32 s53, s40, 8192
    s_add_u32 s54, s40, 12288
    """)
    for r in groups[0]['reads']: A(r)
    A("s_waitcnt vmcnt(8)")
    schedule(A, groups, blocks, per_gap)
    A(f"""
    s_mov_b32 s40, s42
    s_mov_b32 s41, s43
    s_mov_b32 s42, s44
    s_mov_b32 s43, s45
    s_sub_u32 s46, s46, 1
    s_cmp_lg_u32 s46, 0
    s_cbranch_scc1 {L}_col
    """)
    stamp(A, cfg, 1); stamp(A, cfg, 3, True)
    A("s_endpgm")
```

```python
from asmlib import *
from layout import *
from k1 import srd_from

STAGE = 49152
XSZ = 32768

def gen_gemm(A, name, cfg):
    mode = cfg['mode']
    NS = cfg.get('nst', 3)
    L = name
    timing = cfg.get('timing', False)
    agpr = cfg.get('agpr', False)
    snake = cfg.get('snake', True)
    ST = cfg.get('st', '')
    if mode == 'g1':
        KSTEPS, WSTRIDE, w_arg, x_off, x_sz, w_sz = 16, 7168, ARG_W1, XN_OFF, XN_SZ, 1024 * 7168
    else:
        KSTEPS, WSTRIDE, w_arg, x_off, x_sz, w_sz = 14, 2048, ARG_W2, H_OFF, H_SZ, 3584 * 2048
    A(f"""
    s_load_dwordx2 s[6:7], s[0:1], {w_arg}
    s_load_dwordx2 s[8:9], s[0:1], {ARG_WS}
    v_readfirstlane_b32 s25, v0
    s_lshr_b32 s25, s25, 6
    v_and_b32 v1, 63, v0             ; lane
    s_waitcnt lgkmcnt(0)
    """)
    if timing:
        A("s_memrealtime s[60:61]")
    A(f"""
    s_cmp_ge_u32 s25, 4
    s_cbranch_scc1 {L}_loader
    """)
    if agpr:
        XA, WA, XB, WB = 0, 32, 48, 80
        xa0, xa1, wa = 96, 97, 98
        lane, t0, t1, t2, t3 = 102, 103, 104, 105, 106
        acc = lambda i, n=1: a(i, n)
    else:
        XA, WA, XB, WB = 128, 160, 176, 208
        xa0, xa1, wa = 224, 225, 226
        lane, t0, t1, t2, t3 = 230, 231, 232, 233, 234
        acc = lambda i, n=1: v(i, n)
    A(f"""
    v_mov_b32 v{lane}, v1
    s_and_b32 s26, s25, 1            ; wm
    s_lshr_b32 s27, s25, 1           ; wf
    v_and_b32 v{t0}, 15, v{lane}     ; i = l&15
    v_lshrrev_b32 v{t1}, 4, v{lane}  ; G
    v_lshrrev_b32 v{t2}, 1, v{t0}    ; sw
    v_xor_b32 v{t2}, v{t2}, v{t1}    ; G ^ sw
    v_lshlrev_b32 v{t2}, 4, v{t2}
    v_lshlrev_b32 v{t3}, 7, v{t0}    ; row*128
    v_add_u32 v{t2}, v{t2}, v{t3}
    s_lshl_b32 s28, s26, 14          ; wm*128*128
    v_add_u32 v{xa0}, s28, v{t2}
    v_xor_b32 v{xa1}, 64, v{xa0}
    ; W addresses
    v_lshrrev_b32 v{t2}, 2, v{t0}    ; r'
    v_and_b32 v{t3}, 1, v{t1}
    v_lshlrev_b32 v{t3}, 2, v{t3}
    v_or_b32 v{t3}, v{t3}, v{t2}     ; f(k)
    v_lshlrev_b32 v{t1}, 3, v{t1}    ; 8G
    v_add_u32 v{t1}, v{t1}, v{t2}    ; 8G + r'
    v_lshlrev_b32 v{t1}, 8, v{t1}    ; *256
    v_and_b32 v{t0}, 3, v{t0}        ; cc
    v_lshlrev_b32 v{t0}, 3, v{t0}
    v_add_u32 v{t1}, v{t1}, v{t0}
    v_add_u32 v{t1}, {XSZ}, v{t1}
    s_lshl_b32 s28, s27, 2           ; wf*4
    """)
    for tf in range(4):
        A(f"""
        s_add_u32 s29, s28, {tf}
        v_xor_b32 v{t0}, s29, v{t3}
        v_lshlrev_b32 v{t0}, 5, v{t0}
        v_add_u32 v{wa+tf}, v{t0}, v{t1}
        """)
    for i in range(128):
        A(f"v_accvgpr_write_b32 a{i}, 0" if agpr else f"v_mov_b32 v{i}, 0")

    def reads(xset, wset, xreg, h):
        r = []
        xs = [f"ds_read_b128 {v(xset+4*tm,4)}, v{xreg} offset:{2048*tm}" for tm in range(8)]
        ws = []
        for tf in range(4):
            for u in range(2):
                ws.append(f"ds_read_b64_tr_b16 {v(wset+4*tf+2*u,2)}, v{wa+tf} offset:{h*8192+u*1024}")
        for i in range(8):
            r.append(ws[i]); r.append(xs[i])
        return r

    def unit(xset, wset, rd, extra=()):
        mf = []
        for tm in range(8):
            order = range(4) if (not snake or tm % 2 == 0) else range(3, -1, -1)
            for tf in order:
                d = acc(4*(tf*8+tm), 4)
                mf.append(f"v_mfma_f32_16x16x32_bf16 {d}, {v(wset+4*tf,4)}, {v(xset+4*tm,4)}, {d}")
        rd = list(rd); extra = list(extra)
        for i, m in enumerate(mf):
            A(m)
            if i < len(rd):
                A(rd[i])
            elif extra:
                A(extra.pop(0))
        for e in extra: A(e)

    if cfg.get('poison'):
        srd_from(A, 44, 8, 9, E_OFF, E_SZ)
        A(f"""
        s_mul_i32 s50, s22, 28
        s_add_u32 s50, s50, s23
        s_lshl_b32 s51, s50, 14
        s_lshl_b32 s28, s25, 12
        s_add_u32 s51, s51, s28
        v_lshlrev_b32 v{t0}, 4, v{lane}
        v_mov_b32 v240, -1
        v_mov_b32 v241, -1
        v_mov_b32 v242, -1
        v_mov_b32 v243, -1
        """)
        for i in range(4):
            A(f"buffer_store_dwordx4 v[240:243], v{t0}, s[44:47], s51 offen offset:{1024*i} sc1")
        A(f"""
        s_cmp_lt_u32 s50, 32
        s_cbranch_scc0 {L}_nopois
        s_add_u32 s51, s51, {224*16384}
        """)
        for i in range(4):
            A(f"buffer_store_dwordx4 v[240:243], v{t0}, s[44:47], s51 offen offset:{1024*i} sc1")
        A.label(f"{L}_nopois")
    if cfg.get('pfw2'):
        A(f"""
        s_load_dwordx2 s[48:49], s[0:1], {ARG_W2}
        s_mul_i32 s50, s22, 28
        s_add_u32 s50, s50, s23
        s_lshl_b32 s50, s50, 2
        s_add_u32 s50, s50, s25
        s_lshl_b32 s50, s50, 13
        s_add_u32 s51, s50, 4096
        v_lshlrev_b32 v{t0}, 6, v{lane}
        s_waitcnt lgkmcnt(0)
        """)
        srd_from(A, 52, 48, 49, 0, 3584 * 2048)
    A("s_barrier")
    stamp(A, cfg, 0); stamp(A, cfg, 2, True)
    if cfg.get('pfw2'):
        A(f"buffer_load_dword v236, v{t0}, s[52:55], s50 offen")
        A(f"buffer_load_dword v236, v{t0}, s[52:55], s51 offen")
    if timing:
        A("s_memtime s[66:67]")
        A("s_memrealtime s[70:71]")
    for r in reads(XA, WA, xa0, 0): A(r)
    A(f"""
    s_mov_b32 s30, 0                 ; step
    s_mov_b32 s31, 0
    s_waitcnt lgkmcnt(0)
    """)
    A.label(f"{L}_cloop")
    A(f"""
    s_add_u32 s32, s31, {STAGE}
    s_cmp_eq_u32 s32, {STAGE*NS}
    s_cselect_b32 s32, 0, s32
    s_sub_u32 s33, s32, s31          ; delta
    s_mov_b32 s31, s32
    """)
    unit(XA, WA, reads(XB, WB, xa1, 1))
    adv = [f"v_add_u32 v{xa0}, s33, v{xa0}"] + [f"v_add_u32 v{wa+t}, s33, v{wa+t}" for t in range(4)]
    for e in adv: A(e)
    A("s_waitcnt lgkmcnt(0)")
    A("s_barrier")
    unit(XB, WB, reads(XA, WA, xa0, 0), extra=[f"v_xor_b32 v{xa1}, 64, v{xa0}"])
    A(f"""
    s_add_u32 s30, s30, 1
    s_cmp_lt_u32 s30, {KSTEPS}
    s_waitcnt lgkmcnt(0)
    s_cbranch_scc1 {L}_cloop
    """)
    stamp(A, cfg, 1); stamp(A, cfg, 3, True)
    if timing:
        A("s_memrealtime s[62:63]")
        A("s_memtime s[68:69]")
    P = 0 if agpr else 128
    if mode == 'g1' and not cfg.get('hfrag'):
        srd_from(A, 12, 8, 9, H_OFF, H_SZ)
        A(f"""
        s_mul_i32 s28, s22, {56*32768}
        s_lshl_b32 s29, s23, 1
        s_add_u32 s29, s29, s27          ; s2
        s_lshl_b32 s29, s29, 15
        s_add_u32 s34, s28, s29
        s_lshl_b32 s28, s26, 14
        s_add_u32 s34, s34, s28
        v_and_b32 v{t0}, 15, v{lane}
        v_lshrrev_b32 v{t1}, 4, v{lane}  ; G
        v_and_b32 v{t2}, 1, v{t1}
        v_lshlrev_b32 v{t2}, 1, v{t2}
        v_lshrrev_b32 v{t1}, 1, v{t1}
        v_or_b32 v{t1}, v{t1}, v{t2}     ; cG
        v_lshrrev_b32 v{t2}, 1, v{t0}    ; sw
        v_xor_b32 v{t1}, v{t1}, v{t2}
        v_lshlrev_b32 v{t1}, 4, v{t1}
        v_lshlrev_b32 v{t0}, 7, v{t0}
        v_add_u32 v{xa0}, v{t0}, v{t1}
        v_xor_b32 v{xa1}, 64, v{xa0}
        s_mov_b32 s35, 0xbfb8aa3b        ; -log2(e)
        """)
        rowstep = 2048
    elif mode == 'g1':
        srd_from(A, 12, 8, 9, H_OFF, H_SZ)
        A(f"""
        s_lshl_b32 s28, s22, 4
        s_lshl_b32 s29, s26, 3
        s_add_u32 s28, s28, s29
        s_mul_i32 s28, s28, 112
        s_lshl_b32 s29, s23, 2
        s_add_u32 s28, s28, s29
        s_lshl_b32 s29, s27, 1
        s_add_u32 s28, s28, s29
        s_lshl_b32 s34, s28, 10
        v_and_b32 v{t0}, 15, v{lane}
        v_lshrrev_b32 v{t1}, 4, v{lane}  ; G
        v_and_b32 v{t2}, 1, v{t1}
        v_lshlrev_b32 v{t2}, 1, v{t2}
        v_lshrrev_b32 v{t1}, 1, v{t1}
        v_or_b32 v{t1}, v{t1}, v{t2}     ; cG
        v_lshlrev_b32 v{t1}, 8, v{t1}
        v_lshlrev_b32 v{t0}, 4, v{t0}
        v_add_u32 v{xa0}, v{t0}, v{t1}
        v_add_u32 v{xa1}, 1024, v{xa0}
        s_mov_b32 s35, 0xbfb8aa3b        ; -log2(e)
        """)
        rowstep = 112 * 1024
    else:
        srd_from(A, 12, 8, 9, P_OFF, P_SZ)
        A(f"""
        s_lshl_b32 s28, s24, 22
        s_lshl_b32 s29, s22, 8
        s_lshl_b32 s35, s26, 7
        s_add_u32 s29, s29, s35
        s_lshl_b32 s29, s29, 11
        s_add_u32 s34, s28, s29
        s_lshl_b32 s29, s23, 8           ; nb*256 B
        s_add_u32 s34, s34, s29
        s_lshl_b32 s29, s27, 7           ; wf*128 B
        s_add_u32 s34, s34, s29
        v_and_b32 v{t0}, 15, v{lane}
        v_lshrrev_b32 v{t1}, 4, v{lane}  ; G
        v_and_b32 v{t2}, 1, v{t1}
        v_lshlrev_b32 v{t2}, 1, v{t2}
        v_lshrrev_b32 v{t1}, 1, v{t1}
        v_or_b32 v{t1}, v{t1}, v{t2}     ; cG
        v_lshlrev_b32 v{t1}, 4, v{t1}
        v_lshlrev_b32 v{t0}, 11, v{t0}
        v_add_u32 v{xa0}, v{t0}, v{t1}
        v_add_u32 v{xa1}, 64, v{xa0}
        """)
        rowstep = 16 * 2048
    nbuf = 0
    for tm in range(8):
        for fp in range(2):
            base = P + (nbuf % 4) * 24
            nbuf += 1
            Tidx = [4*((2*fp+t)*8+tm) + r for t in range(2) for r in range(4)]
            if agpr:
                T = [base + 16 + i for i in range(8)]
                for i in range(8): A(f"v_accvgpr_read_b32 v{T[i]}, a{Tidx[i]}")
            else:
                T = Tidx
            E = [base + 8 + i for i in range(8)]
            if mode == 'g1':
                for i in range(8): A(f"v_mul_f32 v{E[i]}, s35, v{T[i]}")
                for i in range(8): A(f"v_exp_f32 v{E[i]}, v{E[i]}")
                for i in range(8): A(f"v_add_f32 v{E[i]}, 1.0, v{E[i]}")
                for i in range(8): A(f"v_rcp_f32 v{E[i]}, v{E[i]}")
                for i in range(8): A(f"v_mul_f32 v{E[i]}, v{T[i]}, v{E[i]}")
            else:
                E = T
            for i in range(4): A(f"v_cvt_pk_bf16_f32 v{base+i}, v{E[2*i]}, v{E[2*i+1]}")
            A(f"v_permlane16_swap_b32 v{base}, v{base+2}")
            A(f"v_permlane16_swap_b32 v{base+1}, v{base+3}")
            A(f"s_add_u32 s36, s34, {rowstep*tm}")
            A(f"buffer_store_dwordx4 {v(base,4)}, v{xa1 if fp else xa0}, s[12:15], s36 offen{ST}")
    if timing:
        A(f"""
        s_waitcnt vmcnt(0)
        s_memrealtime s[64:65]
        s_load_dwordx2 s[40:41], s[0:1], 48
        s_waitcnt lgkmcnt(0)
        s_lshl_b32 s42, s2, 5
        s_cmp_eq_u32 s25, 0
        s_cbranch_scc0 {L}_notim
        v_mov_b32 v2, s42
        v_mov_b32 v4, s60
        v_mov_b32 v5, s62
        v_mov_b32 v6, s64
        s_sub_u32 s68, s68, s66
        v_mov_b32 v7, s68
        global_store_dwordx4 v2, v[4:7], s[40:41]
        v_mov_b32 v4, s70
        global_store_dword v2, v4, s[40:41] offset:16
        {L}_notim:
        """)
    A("s_endpgm")

    A.label(f"{L}_loader")
    vx, vw = 2, 3
    A("s_sub_u32 s25, s25, 4            ; lw")
    rawx = cfg.get('rawx')
    if rawx:
        A(f"s_load_dwordx2 s[10:11], s[0:1], {ARG_X}")
        A("s_waitcnt lgkmcnt(0)")
        srd_from(A, 12, 10, 11, 0, 4 * MB)
    else:
        srd_from(A, 12, 8, 9, x_off, x_sz)
    srd_from(A, 16, 6, 7, 0, w_sz)
    if rawx:
        A(f"""
        s_lshr_b32 s40, s22, 2
        s_lshl_b32 s40, s40, 4
        s_and_b32 s41, s22, 1
        s_lshl_b32 s41, s41, 2
        s_add_u32 s40, s40, s41          ; p base
        s_lshl_b32 s40, s40, 6
        s_lshr_b32 s41, s22, 1
        s_and_b32 s41, s41, 1
        s_lshl_b32 s41, s41, 5
        s_add_u32 s40, s40, s41
        s_lshl_b32 s41, s25, 3
        s_add_u32 s40, s40, s41          ; n base
        s_lshl_b32 s40, s40, 11
        s_lshl_b32 s41, s23, 8
        v_lshrrev_b32 v24, 5, v1
        v_lshlrev_b32 v24, 3, v24
        v_bfe_u32 v25, v1, 4, 1
        v_lshlrev_b32 v25, 1, v25
        v_add_u32 v24, v24, v25
        v_bfe_u32 v25, v1, 3, 1
        v_add_u32 v24, v24, v25          ; p lane
        v_lshlrev_b32 v24, 17, v24       ; * 64 rows * 2048
        v_and_b32 v25, 7, v1
        v_lshrrev_b32 v26, 4, v1
        """)
        for i in range(8):
            A(f"""
            v_or_b32 v27, {4*(i&1)}, v26
            v_xor_b32 v27, v27, v25
            v_lshlrev_b32 v27, 4, v27
            v_add_u32 v27, v27, v24
            v_add_u32 v{16+i}, {2048*i - 1024*(i&3)}, v27
            """)
    elif mode == 'g1':
        A(f"""
        s_lshl_b32 s40, s22, 19
        s_lshl_b32 s41, s23, 8
        """)
    else:
        A(f"""
        s_mul_i32 s40, s22, 56
        s_mul_i32 s41, s24, 14
        s_add_u32 s40, s40, s41
        s_lshl_b32 s40, s40, 15
        s_mul_i32 s41, s24, {896*2048}
        s_lshl_b32 s42, s23, 8
        s_add_u32 s41, s41, s42
        """)
    A(f"""
    s_lshl_b32 s26, s25, 13          ; lw*8192
    v_lshlrev_b32 v{vx}, 4, v1
    v_add_u32 v{vx}, s26, v{vx}
    v_lshrrev_b32 v8, 4, v1          ; l>>4
    v_and_b32 v9, 15, v1             ; p16
    v_lshrrev_b32 v10, 1, v9         ; c32'
    v_and_b32 v9, 1, v9
    v_lshlrev_b32 v9, 4, v9          ; half*16
    s_lshl_b32 s27, s25, 4           ; 16 lw
    v_add_u32 v11, s27, v8           ; 16lw + (l>>4)
    s_mov_b32 s28, {WSTRIDE}
    v_mul_lo_u32 v11, v11, s28
    v_add_u32 v11, v11, v9
    """)
    for i in range(4):
        A(f"""
        v_or_b32 v12, {((i>>1)&1)<<2}, v8
        v_xor_b32 v12, v12, v10
        v_lshlrev_b32 v12, 5, v12
        v_add_u32 v12, v12, v11
        v_add_u32 v{vw+i}, {4*i*WSTRIDE - 1024*i}, v12
        """)
    A(f"""
    s_lshl_b32 s29, s25, 12
    s_add_u32 s29, s29, {XSZ}
    s_mov_b32 s31, 0
    """)
    def issue():
        if rawx:
            A("s_add_u32 m0, s31, s26")
            for i in range(8):
                if i == 4: A("s_add_u32 m0, m0, 4096")
                A(f"buffer_load_dwordx4 v{16+i}, s[12:15], s40 offen offset:{1024*(i&3)} lds")
            A(f"""
            s_add_u32 m0, s31, s29
            s_add_u32 s40, s40, 128
            s_add_u32 s31, s31, {STAGE}
            buffer_load_dwordx4 v{vw}, s[16:19], s41 offen lds
            buffer_load_dwordx4 v{vw+1}, s[16:19], s41 offen offset:1024 lds
            buffer_load_dwordx4 v{vw+2}, s[16:19], s41 offen offset:2048 lds
            buffer_load_dwordx4 v{vw+3}, s[16:19], s41 offen offset:3072 lds
            s_add_u32 s41, s41, {64*WSTRIDE}
            s_cmp_eq_u32 s31, {STAGE*NS}
            s_cselect_b32 s31, 0, s31
            """)
            return
        A(f"""
        s_add_u32 m0, s31, s26
        s_add_u32 s42, s40, 4096
        buffer_load_dwordx4 v{vx}, s[12:15], s40 offen lds
        buffer_load_dwordx4 v{vx}, s[12:15], s40 offen offset:1024 lds
        buffer_load_dwordx4 v{vx}, s[12:15], s40 offen offset:2048 lds
        buffer_load_dwordx4 v{vx}, s[12:15], s40 offen offset:3072 lds
        s_add_u32 m0, m0, 4096
        s_add_u32 s40, s40, 32768
        buffer_load_dwordx4 v{vx}, s[12:15], s42 offen lds
        buffer_load_dwordx4 v{vx}, s[12:15], s42 offen offset:1024 lds
        buffer_load_dwordx4 v{vx}, s[12:15], s42 offen offset:2048 lds
        buffer_load_dwordx4 v{vx}, s[12:15], s42 offen offset:3072 lds
        s_add_u32 m0, s31, s29
        s_add_u32 s31, s31, {STAGE}
        buffer_load_dwordx4 v{vw}, s[16:19], s41 offen lds
        buffer_load_dwordx4 v{vw+1}, s[16:19], s41 offen offset:1024 lds
        buffer_load_dwordx4 v{vw+2}, s[16:19], s41 offen offset:2048 lds
        buffer_load_dwordx4 v{vw+3}, s[16:19], s41 offen offset:3072 lds
        s_add_u32 s41, s41, {64*WSTRIDE}
        s_cmp_eq_u32 s31, {STAGE*NS}
        s_cselect_b32 s31, 0, s31
        """)
    for i in range(NS): issue()
    A(f"s_waitcnt vmcnt({12*(NS-1)})")
    A("s_barrier")
    relay = cfg.get('relayw2')
    NLOOP = KSTEPS - NS - (1 if relay else 0)
    A("s_mov_b32 s30, 0")
    A.label(f"{L}_lloop")
    A(f"s_waitcnt vmcnt({12*(NS-2)})")
    A("s_barrier")
    issue()
    A(f"""
    s_add_u32 s30, s30, 1
    s_cmp_lt_u32 s30, {NLOOP}
    s_cbranch_scc1 {L}_lloop
    """)
    nx = 0
    if relay:
        A(f"s_waitcnt vmcnt({12*(NS-2)})")
        A("s_barrier")
        issue()
        CBS = 3584 * 256
        A(f"""
        s_load_dwordx2 s[48:49], s[0:1], {ARG_W2}
        s_mul_i32 s50, s22, 28
        s_add_u32 s50, s50, s23          ; idx
        s_lshl_b32 s50, s50, 4
        s_lshl_b32 s51, s25, 2
        s_add_u32 s50, s50, s51
        s_lshl_b32 s51, s50, 11
        s_lshl_b32 s50, s50, 8
        v_lshlrev_b32 v16, 4, v1         ; lane*16
        v_lshrrev_b32 v17, 4, v1
        v_mul_u32_u24 v17, {CBS // 256}, v17
        v_lshlrev_b32 v17, 8, v17        ; (lane>>4)*CBS
        v_and_b32 v18, 1, v1
        v_lshlrev_b32 v18, 4, v18
        v_add_u32 v17, v17, v18
        v_bfe_u32 v18, v1, 1, 3          ; c32
        s_lshr_b32 s28, s25, 1
        s_lshl_b32 s28, s28, 2           ; ((k>>3)&1)<<2
        s_waitcnt lgkmcnt(0)
        """)
        for r in range(4):
            A(f"""
            s_or_b32 s29, s28, {r}
            v_xor_b32 v19, s29, v18
            v_lshlrev_b32 v19, 5, v19
            v_add_u32 v{20+r}, v17, v19
            """)
        srd_from(A, 52, 48, 49, 0, 3584 * 2048)
        srd_from(A, 56, 8, 9, W2I_OFF, W2I_SZ)
        for r in range(4):
            for hf in range(2):
                A(f"s_add_u32 s29, s51, {r*2048}")
                A(f"buffer_load_dwordx4 {v(32+8*r+4*hf,4)}, v16, s[52:55], s29 offen offset:{1024*hf}")
        nx = 8
    for s_ in range(KSTEPS-NS, KSTEPS):
        rem = max(0, KSTEPS - 1 - (s_ + 1))
        if s_ < KSTEPS - 1:
            A(f"s_waitcnt vmcnt({12*rem + nx})")
        A("s_barrier")
    if relay:
        A("s_waitcnt vmcnt(0)")
        for r in range(4):
            for hf in range(2):
                A(f"s_add_u32 s29, s50, {r*256 + hf*4*3584*256}")
                A(f"buffer_store_dwordx4 {v(32+8*r+4*hf,4)}, v{20+r}, s[56:59], s29 offen{relay if isinstance(relay, str) else ''}")
    A("s_endpgm")
```

```python
from asmlib import *
from layout import *
from consts import *
from k1 import srd_from, srd_table, wave_reduce
import f2 as F2

STAGE = 49152
XSZ = 32768
NS = 3
KSTEPS = 16
WSTRIDE = 7168
PAO = 2 * STAGE
XS, NYQ, STL = 16384, 32768, 32768 + 64
STATL = NS * STAGE
CSL = STATL + 4096
LDS_KA = CSL + 8192
SPIN = 400000
STAT_OFF, STAT_SZ = 0, 16384
SMB, SNB, SSLOT, SRHO = 70, 71, 72, 73

def gen_ka(A, L, cfg):
    SC = ' sc1'
    A(f"""
    s_cmp_ge_u32 s2, 256
    s_cbranch_scc1 {L}_done
    s_load_dwordx2 s[4:5], s[0:1], {ARG_X}
    s_load_dwordx4 s[8:11], s[0:1], {ARG_WR}
    s_load_dwordx2 s[6:7], s[0:1], {ARG_WS}
    s_load_dwordx4 s[60:63], s[0:1], {ARG_W1}
    s_load_dwordx2 s[64:65], s[0:1], {ARG_DBG}
    v_readfirstlane_b32 s25, v0
    v_and_b32 v1, 63, v0
    s_lshr_b32 s25, s25, 6
    s_and_b32 s20, s2, 7             ; xcd
    s_lshr_b32 s{SSLOT}, s2, 3       ; slot
    s_and_b32 s22, s20, 1
    s_lshl_b32 s22, s22, 2
    s_and_b32 s23, s{SSLOT}, 3
    s_add_u32 s{SMB}, s22, s23       ; mb
    s_lshr_b32 s23, s20, 1
    s_mul_i32 s23, s23, 7
    s_lshr_b32 s24, s{SSLOT}, 2
    s_add_u32 s{SNB}, s23, s24       ; nb
    s_lshl_b32 s20, s20, 5
    s_add_u32 s20, s20, s{SSLOT}     ; rho
    s_mov_b32 s{SRHO}, s20
    s_cmp_ge_u32 s25, 4
    s_cbranch_scc1 {L}_hi
    """)
    rows(A, L, cfg)
    A(f"""
    s_cmp_ge_u32 s{SSLOT}, 28
    s_cbranch_scc1 {L}_f2lo
    """)
    consumer(A, L, cfg)
    A.label(f"{L}_hi")
    hi(A, L, cfg)
    loader(A, L, cfg)
    A.label(f"{L}_f2hi")
    A("s_add_u32 s25, s25, 4")
    A("s_waitcnt vmcnt(0)")
    A.label(f"{L}_f2lo")
    A("s_barrier")
    A(f"""
    s_and_b32 s20, s2, 7
    s_lshl_b32 s26, s20, 2
    s_sub_u32 s21, s{SSLOT}, 28
    s_add_u32 s26, s26, s21          ; f
    """)
    def sync():
        A(f"""
        s_cmp_lg_u32 s25, 4
        s_cbranch_scc1 {L}_f2go
        s_and_b32 s28, s{SRHO}, 0xfc
        v_mov_b32 v6, s28
        v_mov_b32 v7, 1
        s_mov_b64 exec, 1
        global_atomic_add v6, v7, s[64:65] sc1
        s_mov_b64 exec, -1
        v_lshlrev_b32 v6, 2, v1
        s_mov_b32 s29, 0
        {L}_f2poll:
        {('s_sleep %d' % cfg['sleep']) if cfg.get('sleep') else ''}
        {('s_branch %s_f2go' % L) if cfg.get('nopoll') else ''}
        global_load_dword v7, v6, s[64:65] sc1
        s_add_u32 s29, s29, 1
        s_cmp_ge_u32 s29, {SPIN}
        s_cbranch_scc1 {L}_f2go
        s_waitcnt vmcnt(0)
        v_cmp_gt_u32 vcc, 4, v7
        s_cmp_lg_u64 vcc, 0
        s_cbranch_scc1 {L}_f2poll
        {L}_f2go:
        s_waitcnt vmcnt(0)
        s_barrier
        """)
    c = dict(st=cfg.get('stf2', ''), stamps=cfg.get('stamps'), ka=sync)
    F2.gen_f2(A, f"{L}f", c)
    A.label(f"{L}_done")
    A("s_endpgm")


def rows(A, L, cfg):
    RAW = [8, 16]
    F = [24, 40]
    TAB = 64
    TW = 96
    D1 = [128, 160]
    D2 = [128, 160]
    A(f"""
    s_lshr_b32 s21, s20, 7             ; gamma
    s_lshl_b32 s21, s21, 4
    s_lshr_b32 s22, s20, 5
    s_and_b32 s22, s22, 1              ; hi
    s_lshl_b32 s22, s22, 2
    s_add_u32 s21, s21, s22
    s_lshr_b32 s22, s25, 1
    s_lshl_b32 s22, s22, 3
    s_add_u32 s21, s21, s22
    s_and_b32 s22, s25, 1
    s_lshl_b32 s22, s22, 1
    s_add_u32 s21, s21, s22
    s_lshl_b32 s21, s21, 6
    s_lshr_b32 s22, s20, 6
    s_and_b32 s22, s22, 1
    s_lshl_b32 s22, s22, 5
    s_add_u32 s21, s21, s22
    s_and_b32 s22, s20, 31
    s_add_u32 s21, s21, s22
    s_lshl_b32 s21, s21, 11
    s_add_u32 s22, s21, 131072         ; row B
    v_lshlrev_b32 v2, 4, v1            ; lane*16
    s_waitcnt lgkmcnt(0)
    """)
    srd_from(A, 12, 4, 5, 0, 4 * MB)
    A(f"""
    buffer_load_dwordx4 v[{RAW[0]}:{RAW[0]+3}], v2, s[12:15], s21 offen
    buffer_load_dwordx4 v[{RAW[0]+4}:{RAW[0]+7}], v2, s[12:15], s21 offen offset:1024
    buffer_load_dwordx4 v[{RAW[1]}:{RAW[1]+3}], v2, s[12:15], s22 offen
    buffer_load_dwordx4 v[{RAW[1]+4}:{RAW[1]+7}], v2, s[12:15], s22 offen offset:1024
    """)
    srd_table(A, 16, "tab_f1", 16384)
    A("s_mov_b32 s26, 4096\ns_mov_b32 s27, 8192\ns_mov_b32 s28, 12288")
    for i in range(16):
        so = ["0", "s26", "s27", "s28"][i >> 2]
        A(f"buffer_load_dwordx4 v[{TAB+4*i}:{TAB+4*i+3}], v2, s[16:19], {so} offen offset:{1024*(i&3)}")
    A(f"""
    s_lshl_b32 s33, s25, 12
    s_add_u32 s33, s33, {PAO}
    v_add_u32 v4, s33, v2
    v_lshrrev_b32 v5, 5, v1
    v_lshlrev_b32 v5, 3, v5
    v_bfe_u32 v6, v1, 2, 2
    v_add_u32 v5, v5, v6
    v_lshlrev_b32 v5, 6, v5
    v_bfe_u32 v6, v1, 4, 1
    v_lshlrev_b32 v6, 5, v6
    v_add_u32 v5, v5, v6
    v_and_b32 v6, 3, v1
    v_lshlrev_b32 v6, 3, v6
    v_add_u32 v5, v5, v6
    v_add_u32 v5, s33, v5
    v_and_b32 v6, 31, v1
    v_lshlrev_b32 v6, 4, v6
    v_lshrrev_b32 v7, 5, v1
    v_lshlrev_b32 v7, 11, v7
    v_add_u32 v6, v6, v7
    s_lshl_b32 s33, s25, 2
    s_add_u32 s33, s33, {PAO + XS}
    v_add_u32 v6, s33, v6
    s_lshl_b32 s33, s25, 4
    s_add_u32 s33, s33, {PAO + STL}
    v_mov_b32 v3, s33
    """)
    A("s_mov_b32 s34, 0xffff0000")
    A("s_waitcnt vmcnt(16)")
    for r in range(2):
        for i in range(8):
            A(f"v_lshlrev_b32 v{F[r]+2*i}, 16, v{RAW[r]+i}")
            A(f"v_and_b32 v{F[r]+2*i+1}, s34, v{RAW[r]+i}")
    S = [56, 57]
    T = [58, 59, 60, 61]
    for r in range(2):
        A(f"v_add_f32 v{S[r]}, v{F[r]}, v{F[r]+1}")
    for i in range(2, 16):
        for r in range(2):
            A(f"v_add_f32 v{S[r]}, v{S[r]}, v{F[r]+i}")
    wave_reduce(A, S)
    for r in range(2):
        A(f"v_readlane_b32 s{44+r}, v{S[r]}, 63")
    for r in range(2):
        A(f"v_mov_b32 v{T[r]}, 0x3a800000")
        A(f"v_mul_f32 v{T[r]}, s{44+r}, v{T[r]}")
    for i in range(16):
        for r in range(2):
            A(f"v_sub_f32 v{T[2+r]}, v{F[r]+i}, v{T[r]}")
            if i == 0:
                A(f"v_mul_f32 v{S[r]}, v{T[2+r]}, v{T[2+r]}")
            else:
                A(f"v_fmac_f32 v{S[r]}, v{T[2+r]}, v{T[2+r]}")
    wave_reduce(A, S)
    for r in range(2):
        A(f"v_readlane_b32 s{46+r}, v{S[r]}, 63")
    for r in range(2):
        A(f"v_cvt_pk_bf16_f32 v{T[r]}, v{T[r]}, v{T[r]}")
        A(f"v_and_b32 v{T[r]}, s34, v{T[r]}")
        A(f"v_mov_b32 v{T[2+r]}, 0x3a800000")
        A(f"v_mul_f32 v{T[2+r]}, s{46+r}, v{T[2+r]}")
        A(f"v_cvt_pk_bf16_f32 v{T[2+r]}, v{T[2+r]}, v{T[2+r]}")
        A(f"v_and_b32 v{T[2+r]}, s34, v{T[2+r]}")
        A(f"v_add_f32 v{T[2+r]}, 0x3727c5ac, v{T[2+r]}")
        A(f"v_cvt_pk_bf16_f32 v{T[2+r]}, v{T[2+r]}, v{T[2+r]}")
        A(f"v_and_b32 v{T[2+r]}, s34, v{T[2+r]}")
        A(f"v_sqrt_f32 v{T[2+r]}, v{T[2+r]}")
        A(f"v_cvt_pk_bf16_f32 v{T[2+r]}, v{T[2+r]}, v{T[2+r]}")
        A(f"v_and_b32 v{T[2+r]}, s34, v{T[2+r]}")
        A(f"v_rcp_f32 v{T[2+r]}, v{T[2+r]}")
    A(f"""
    s_mov_b64 exec, 1
    ds_write_b128 v3, v[58:61]
    s_mov_b64 exec, -1
    """)
    U = [62, 63]
    for i in range(8):
        for r in range(2):
            a0, a1 = F[r]+2*i, F[r]+2*i+1
            A(f"v_sub_f32 v{a0}, v{a0}, v{T[r]}")
            A(f"v_sub_f32 v{a1}, v{a1}, v{T[r]}")
            A(f"v_cvt_pk_bf16_f32 v{U[r]}, v{a0}, v{a1}")
            A(f"v_lshlrev_b32 v{a0}, 16, v{U[r]}")
            A(f"v_and_b32 v{a1}, s34, v{U[r]}")
            A(f"v_mul_f32 v{a0}, v{a0}, v{T[2+r]}")
            A(f"v_mul_f32 v{a1}, v{a1}, v{T[2+r]}")
            A(f"v_cvt_pk_bf16_f32 v{RAW[r]+i}, v{a0}, v{a1}")
    for r in range(2):
        A(f"ds_write_b128 v4, v[{RAW[r]}:{RAW[r]+3}] offset:{2048*r}")
        A(f"ds_write_b128 v4, v[{RAW[r]+4}:{RAW[r]+7}] offset:{2048*r + 1024}")
    A("s_waitcnt lgkmcnt(0)")
    AF = [24, 40]
    for r in range(2):
        for t in range(2):
            for u in range(2):
                A(f"ds_read_b64_tr_b16 v[{AF[r]+4*t+2*u}:{AF[r]+4*t+2*u+1}], v5 offset:{2048*r + 1024*t + 256*u}")
    A("s_waitcnt vmcnt(0) lgkmcnt(0)")
    for r in range(2):
        for part in range(2):
            for t in range(2):
                d = v(D1[r] + 16*part, 16)
                A(f"v_mfma_f32_32x32x16_bf16 {d}, {v(AF[r]+4*t,4)}, {v(TAB+8*part+4*t,4)}, {'0' if t == 0 else d}")
    T = [58, 59, 60, 61]
    NY = [56, 57]
    PK = [192, 208]
    for r in range(2):
        Dr, Di = D1[r], D1[r] + 16
        A(f"v_sub_f32 v{NY[r]}, v{Dr}, v{Dr+1}")
        for i in range(2, 16):
            A(f"v_{'add' if i % 2 == 0 else 'sub'}_f32 v{NY[r]}, v{NY[r]}, v{Dr+i}")
    for r in range(2):
        Dr, Di = D1[r], D1[r] + 16
        for e in range(16):
            t1, t2 = T[0] + (e & 1) * 2, T[1] + (e & 1) * 2
            A(f"v_mul_f32 v{t1}, v{Di+e}, v{TW+16+e}")
            A(f"v_mul_f32 v{t2}, v{Di+e}, v{TW+e}")
            A(f"v_fma_f32 v{Di+e}, v{Dr+e}, v{TW+16+e}, v{t2}")
            A(f"v_fma_f32 v{Dr+e}, v{Dr+e}, v{TW+e}, -v{t1}")
            if e & 1:
                b, q = e >> 3, (e & 7) >> 1
                A(f"v_cvt_pk_bf16_f32 v{PK[r]+4*b+q}, v{Dr+e-1}, v{Dr+e}")
                A(f"v_cvt_pk_bf16_f32 v{PK[r]+8+4*b+q}, v{Di+e-1}, v{Di+e}")
    for r in range(2):
        d = v(D2[r], 16)
        first = True
        for pin in range(2):
            for b in range(2):
                A(f"v_mfma_f32_32x32x16_bf16 {d}, {v(TAB+16+8*pin+4*b,4)}, {v(PK[r]+8*pin+4*b,4)}, {'0' if first else d}")
                first = False
    for r in range(2):
        A(f"v_readlane_b32 s{44+r}, v{NY[r]}, 32")
    for r in range(2):
        A(f"v_add_f32 v{NY[r]}, s{44+r}, v{NY[r]}")
    A(f"v_cvt_pk_bf16_f32 v{NY[0]}, v{NY[0]}, v{NY[1]}")
    A(f"""
    s_lshl_b32 s33, s25, 2
    s_add_u32 s33, s33, {PAO + NYQ}
    v_mov_b32 v58, s33
    v_cmp_eq_u32 vcc, 0, v1
    v_mov_b32 v59, 1.0
    v_mov_b32 v60, 0.5
    v_cndmask_b32 v59, v59, v60, vcc
    s_mov_b64 exec, 1
    ds_write_b32 v58, v{NY[0]}
    s_mov_b64 exec, -1
    """)
    for r in range(2):
        A(f"v_mul_f32 v{D2[r]}, v{D2[r]}, v59")
    for e in range(8):
        o0 = 2 * (8 * (e >> 2) + (e & 3))
        a_, b_ = 60 + 2 * (e & 1), 61 + 2 * (e & 1)
        A(f"v_cvt_pk_bf16_f32 v{a_}, v{D2[0]+e}, v{D2[1]+e}")
        A(f"v_cvt_pk_bf16_f32 v{b_}, v{D2[0]+8+e}, v{D2[1]+8+e}")
        A(f"ds_write2st64_b32 v6, v{a_}, v{b_} offset0:{o0} offset1:{o0+32}")
    A("s_waitcnt lgkmcnt(0)")
    A("s_barrier")
    stamp(A, cfg, 4)


def hi(A, L, cfg):
    SC = cfg.get('scx', ' sc1')
    SCW = cfg.get('scw', ' sc1')
    A(f"""
    s_sub_u32 s25, s25, 4              ; lw
    s_and_b32 s21, s2, 63              ; combo
    s_lshr_b32 s22, s2, 6              ; crange
    s_lshr_b32 s23, s21, 2
    s_and_b32 s24, s21, 3              ; oct
    s_lshl_b32 s26, s24, 3
    s_lshl_b32 s27, s23, 7
    s_add_u32 s27, s27, s26
    s_mul_i32 s28, s27, 1026
    s_add_u32 s29, s28, 32832
    s_add_u32 s30, s28, {2*32832}
    s_add_u32 s31, s28, {3*32832}
    s_lshl_b32 s33, s22, 7
    s_lshl_b32 s34, s25, 5
    s_add_u32 s33, s33, s34
    v_and_b32 v2, 31, v1
    v_add_u32 v2, s33, v2              ; c
    v_lshrrev_b32 v4, 5, v1            ; half
    v_mul_u32_u24 v3, 4104, v4
    v_lshl_add_u32 v3, v2, 1, v3
    s_waitcnt lgkmcnt(0)
    """)
    srd_from(A, 12, 8, 9, 0, 2048 * 1026)
    srd_from(A, 16, 10, 11, 0, 2048 * 1026)
    srd_from(A, 36, 6, 7, WT_OFF, WT_SZ)
    so = ["s28", "s29", "s30", "s31"]
    for i in range(4):
        for r in range(4):
            A(f"buffer_load_ushort v{8+4*i+r}, v3, s[12:15], {so[r]} offen offset:{1026*i}")
            A(f"buffer_load_ushort v{24+4*i+r}, v3, s[16:19], {so[r]} offen offset:{1026*i}")
    A(f"""
    s_cmp_eq_u32 s22, 3
    s_cselect_b32 s40, 1, 0
    s_cmp_eq_u32 s25, 0
    s_cselect_b32 s40, s40, 0
    s_cmp_eq_u32 s40, 0
    s_cbranch_scc1 {L}_noex1
    v_and_b32 v5, 7, v1
    v_mul_u32_u24 v6, 1026, v5
    v_add_u32 v6, 1024, v6
    s_mov_b64 exec, 0xff
    """)
    for r in range(4):
        A(f"buffer_load_ushort v{40+r}, v6, s[12:15], {so[r]} offen")
        A(f"buffer_load_ushort v{44+r}, v6, s[16:19], {so[r]} offen")
    A("s_mov_b64 exec, -1")
    A.label(f"{L}_noex1")
    A(f"""
    s_cmp_ge_u32 s{SSLOT}, 28
    s_cbranch_scc1 {L}_hitab
    """)
    srd_from(A, 48, 4, 5, 0, 4 * MB)
    srd_from(A, 52, 60, 61, 0, 1024 * WSTRIDE)
    vx, vw = 64, 72
    A(f"""
    s_lshr_b32 s56, s{SMB}, 2
    s_lshl_b32 s56, s56, 4
    s_and_b32 s57, s{SMB}, 1
    s_lshl_b32 s57, s57, 2
    s_add_u32 s56, s56, s57          ; p base
    s_lshl_b32 s56, s56, 6
    s_lshr_b32 s57, s{SMB}, 1
    s_and_b32 s57, s57, 1
    s_lshl_b32 s57, s57, 5
    s_add_u32 s56, s56, s57
    s_lshl_b32 s57, s25, 3
    s_add_u32 s56, s56, s57          ; n base
    s_lshl_b32 s56, s56, 11          ; X soffset
    s_lshl_b32 s57, s{SNB}, 8
    v_lshrrev_b32 v76, 5, v1
    v_lshlrev_b32 v76, 3, v76
    v_bfe_u32 v77, v1, 4, 1
    v_lshlrev_b32 v77, 1, v77
    v_add_u32 v76, v76, v77
    v_bfe_u32 v77, v1, 3, 1
    v_add_u32 v76, v76, v77          ; p lane
    v_lshlrev_b32 v76, 17, v76       ; * 64 rows * 2048
    v_and_b32 v77, 7, v1
    v_lshrrev_b32 v78, 4, v1
    """)
    for i in range(8):
        A(f"""
        v_or_b32 v79, {4*(i&1)}, v78
        v_xor_b32 v79, v79, v77
        v_lshlrev_b32 v79, 4, v79
        v_add_u32 v79, v79, v76
        v_add_u32 v{vx+i}, {2048*i - 1024*(i&3)}, v79
        """)
    A(f"""
    v_and_b32 v76, 15, v1             ; p16
    v_lshrrev_b32 v77, 1, v76         ; c32'
    v_and_b32 v76, 1, v76
    v_lshlrev_b32 v76, 4, v76         ; half*16
    s_lshl_b32 s58, s25, 4            ; 16 lw
    v_add_u32 v79, s58, v78           ; 16lw + (l>>4)
    s_mov_b32 s59, {WSTRIDE}
    v_mul_lo_u32 v79, v79, s59
    v_add_u32 v79, v79, v76
    """)
    for i in range(4):
        A(f"""
        v_or_b32 v76, {((i>>1)&1)<<2}, v78
        v_xor_b32 v76, v76, v77
        v_lshlrev_b32 v76, 5, v76
        v_add_u32 v76, v76, v79
        v_add_u32 v{vw+i}, {4*i*WSTRIDE - 1024*i}, v76
        """)
    A(f"""
    s_lshl_b32 s58, s25, 13
    s_lshl_b32 s59, s25, 12
    s_add_u32 s59, s59, {XSZ}
    s_mov_b32 s66, 0
    """)
    issue(A); issue(A)
    A(f"s_branch {L}_hiw")
    A.label(f"{L}_hitab")
    srd_table(A, 48, "tab_f2", F2.NFR * 1024 + 8192)
    A("v_lshlrev_b32 v64, 4, v1")
    for i in range(11):
        A(f"s_add_u32 s56, s25, {4*i}")
        if i == 10:
            A(f"s_min_u32 s56, s56, {F2.NFR-1}")
        A("s_lshl_b32 s56, s56, 10")
        A("s_mov_b32 m0, s56")
        A("buffer_load_dwordx4 v64, s[48:51], s56 offen lds")
    A.label(f"{L}_hiw")
    WTL = PAO + 33280
    A(f"""
    s_lshr_b32 s34, s23, 1
    s_lshl_b32 s34, s34, 10
    s_and_b32 s35, s23, 1
    s_lshl_b32 s35, s35, 9
    s_add_u32 s34, s34, s35
    s_lshl_b32 s35, s26, 4
    s_add_u32 s35, s35, s34
    s_lshl_b32 s34, s25, 12
    s_add_u32 s34, s34, {WTL}
    v_and_b32 v48, 31, v1
    v_lshlrev_b32 v48, 7, v48
    v_lshrrev_b32 v49, 5, v1
    v_lshlrev_b32 v49, 6, v49
    v_add_u32 v48, v48, v49
    v_add_u32 v48, s34, v48
    v_lshlrev_b32 v49, 4, v1
    v_add_u32 v49, s34, v49
    v_lshrrev_b32 v4, 3, v1
    v_add_u32 v4, s33, v4
    v_lshlrev_b32 v4, 13, v4
    v_and_b32 v50, 7, v1
    v_lshlrev_b32 v50, 4, v50
    v_add_u32 v4, v4, v50              ; (c0 + (l >> 3)) * 8192 + (l & 7) * 16
    s_waitcnt vmcnt(0)
    s_cmp_eq_u32 s40, 0
    s_cbranch_scc1 {L}_noex2
    v_lshlrev_b32 v5, 4, v5
    v_add_u32 v5, {512*8192}, v5
    v_lshl_or_b32 v40, v44, 16, v40
    v_lshl_or_b32 v41, v45, 16, v41
    v_lshl_or_b32 v42, v46, 16, v42
    v_lshl_or_b32 v43, v47, 16, v43
    s_mov_b64 exec, 0xff
    buffer_store_dwordx4 v[40:43], v5, s[36:39], s35 offen{SCW}
    s_mov_b64 exec, -1
    """)
    A.label(f"{L}_noex2")
    for i in range(4):
        for r in range(4):
            A(f"v_lshl_or_b32 v{8+4*i+r}, v{24+4*i+r}, 16, v{8+4*i+r}")
        A(f"ds_write_b128 v48, v[{8+4*i}:{11+4*i}] offset:{16*i}")
    A("s_waitcnt lgkmcnt(0)")
    for j in range(4):
        A(f"ds_read_b128 v[{24+4*j}:{27+4*j}], v49 offset:{1024*j}")
    for j in range(4):
        A(f"s_waitcnt lgkmcnt({3-j})")
        A(f"s_add_u32 s34, s35, {j*8*8192}")
        A(f"buffer_store_dwordx4 v[{24+4*j}:{27+4*j}], v4, s[36:39], s34 offen{SCW}")
    srd_from(A, 40, 6, 7, X1_OFF, X1_SZ)
    srd_from(A, 44, 6, 7, STAT_OFF, STAT_SZ)
    A(f"""
    v_and_b32 v80, 255, v0             ; t
    v_and_b32 v81, 1, v80
    v_lshlrev_b32 v81, 13, v81
    v_lshrrev_b32 v82, 1, v80
    v_lshlrev_b32 v82, 4, v82
    v_add_u32 v81, v81, v82
    v_add_u32 v81, {PAO + XS}, v81
    v_lshrrev_b32 v82, 2, v80
    v_lshlrev_b32 v82, 14, v82
    v_and_b32 v83, 3, v80
    v_lshlrev_b32 v83, 4, v83
    v_add_u32 v82, v82, v83
    s_lshl_b32 s33, s{SRHO}, 6          ; rho*64
    s_add_u32 s26, s33, {1*MB}
    s_add_u32 s27, s33, {2*MB}
    s_add_u32 s28, s33, {3*MB}
    s_add_u32 s29, s33, {4*MB}
    v_lshlrev_b32 v83, 4, v1            ; lane*16
    v_mov_b32 v104, {PAO + NYQ}
    v_add_u32 v105, {PAO + STL}, v83
    s_barrier                           ; B1
    """)
    for i in range(4):
        A(f"ds_read_b128 v[{84+4*i}:{87+4*i}], v81 offset:{2048*i}")
    A("ds_read_b128 v[100:103], v104")
    A("ds_read_b128 v[108:111], v105")
    for i in range(4):
        A(f"s_waitcnt lgkmcnt({5-i})")
        so_ = ["s33", "s26", "s27", "s28"][i]
        A(f"buffer_store_dwordx4 v[{84+4*i}:{87+4*i}], v82, s[40:43], {so_} offen{SC}")
    A(f"""
    s_waitcnt lgkmcnt(0)
    s_cmp_eq_u32 s25, 0
    s_cbranch_scc0 {L}_nony
    v_cmp_eq_u32 vcc, 0, v1
    v_cndmask_b32 v100, 0, v100, vcc
    v_cndmask_b32 v101, 0, v101, vcc
    v_cndmask_b32 v102, 0, v102, vcc
    v_cndmask_b32 v103, 0, v103, vcc
    s_mov_b64 exec, 3
    buffer_store_dwordx4 v[100:103], v83, s[40:43], s29 offen{SC}
    s_mov_b64 exec, 15
    buffer_store_dwordx4 v[108:111], v83, s[44:47], s33 offen{SC}
    s_mov_b64 exec, -1
    {L}_nony:
    s_cmp_ge_u32 s{SSLOT}, 28
    s_cbranch_scc1 {L}_f2hi
    """)


VX, VW = 64, 72
def issue(A):
    A("s_add_u32 m0, s66, s58")
    for i in range(8):
        if i == 4: A("s_add_u32 m0, m0, 4096")
        A(f"buffer_load_dwordx4 v{VX+i}, s[48:51], s56 offen offset:{1024*(i&3)} lds")
    A(f"""
    s_add_u32 m0, s66, s59
    s_add_u32 s56, s56, 128
    s_add_u32 s66, s66, {STAGE}
    buffer_load_dwordx4 v{VW}, s[52:55], s57 offen lds
    buffer_load_dwordx4 v{VW+1}, s[52:55], s57 offen offset:1024 lds
    buffer_load_dwordx4 v{VW+2}, s[52:55], s57 offen offset:2048 lds
    buffer_load_dwordx4 v{VW+3}, s[52:55], s57 offen offset:3072 lds
    s_add_u32 s57, s57, {64*WSTRIDE}
    s_cmp_eq_u32 s66, {STAGE*NS}
    s_cselect_b32 s66, 0, s66
    """)


def loader(A, L, cfg):
    A("s_barrier")
    issue(A)
    relay = cfg.get('relayw2', True)
    poison = cfg.get('poison', True)
    q = []
    q.append(('s2', 12))
    def wait_for(tag, alt=0):
        idx = max(i for i, (t, n) in enumerate(q) if t == tag)
        n = sum(c for t, c in q[idx+1:] if t != 'sig')
        sig = any(t == 'sig' for t, c in q[idx+1:])
        if sig:
            lab = A.uid(L + "_w") if hasattr(A, 'uid') else None
            A(f"""
            s_cmp_eq_u32 s25, 0
            s_cbranch_scc1 {L}_wa{tag}
            s_waitcnt vmcnt({n})
            s_branch {L}_wb{tag}
            {L}_wa{tag}:
            s_waitcnt vmcnt({n+1})
            {L}_wb{tag}:
            """)
        else:
            A(f"s_waitcnt vmcnt({n})")
        del q[:idx+1]
    A(f"""
    s_mul_i32 s26, s{SMB}, 28
    s_add_u32 s26, s26, s{SNB}       ; idx
    """)
    if relay:
        CBS = 3584 * 256
        A(f"""
        s_lshl_b32 s27, s26, 4
        s_lshl_b32 s28, s25, 2
        s_add_u32 s27, s27, s28
        s_lshl_b32 s28, s27, 11
        s_lshl_b32 s27, s27, 8
        v_lshlrev_b32 v16, 4, v1         ; lane*16
        v_lshrrev_b32 v17, 4, v1
        v_mul_u32_u24 v17, {CBS // 256}, v17
        v_lshlrev_b32 v17, 8, v17        ; (lane>>4)*CBS
        v_and_b32 v18, 1, v1
        v_lshlrev_b32 v18, 4, v18
        v_add_u32 v17, v17, v18
        v_bfe_u32 v18, v1, 1, 3          ; c32
        s_lshr_b32 s29, s25, 1
        s_lshl_b32 s29, s29, 2           ; ((k>>3)&1)<<2
        """)
        for r in range(4):
            A(f"""
            s_or_b32 s30, s29, {r}
            v_xor_b32 v19, s30, v18
            v_lshlrev_b32 v19, 5, v19
            v_add_u32 v{20+r}, v17, v19
            """)
        srd_from(A, 12, 62, 63, 0, 3584 * 2048)
        srd_from(A, 16, 6, 7, W2I_OFF, W2I_SZ)
    if poison:
        srd_from(A, 36, 6, 7, E_OFF, E_SZ)
        A(f"""
        s_lshl_b32 s30, s26, 2
        s_add_u32 s30, s30, s25
        s_lshl_b32 s30, s30, 10
        v_lshlrev_b32 v24, 4, v1
        v_add_u32 v24, s30, v24
        """)
        for i in range(1, 5):
            A(f"v_add_u32 v{24+i}, {896*1024}, v{24+i-1}")
        for i in range(4):
            A(f"v_mov_b32 v{100+i}, -1")
    for b in range(KSTEPS):
        if 1 <= b < KSTEPS - 1 and b != 14:
            wait_for(f's{b+1}')
        ls = cfg.get('lst', {0: 0, 1: 1, 4: 4, 9: 5})
        if b in ls: stamp(A, cfg, ls[b])
        if b == 14:
            A(f"""
            s_waitcnt vmcnt(0)
            s_mov_b32 s31, 0
            {L}_spoll:
            v_cmp_gt_u32 vcc, 4, v9
            s_cmp_eq_u64 vcc, 0
            s_cbranch_scc1 {L}_sready
            s_add_u32 s31, s31, 1
            s_cmp_ge_u32 s31, {SPIN}
            s_cbranch_scc1 {L}_sready
            s_sleep 1
            global_load_dword v9, v8, s[64:65] sc1
            s_waitcnt vmcnt(0)
            s_branch {L}_spoll
            {L}_sready:
            buffer_load_dwordx2 v[12:13], v10, s[44:47], s33 offen sc1
            """)
            q.clear()
        A("s_barrier")
        if b + 3 < KSTEPS:
            issue(A); q.append((f's{b+3}', 12))
        if relay and b == 3:
            for r in range(4):
                for hf in range(2):
                    A(f"s_add_u32 s30, s28, {r*2048}")
                    A(f"buffer_load_dwordx4 {v(32+8*r+4*hf,4)}, v16, s[12:15], s30 offen offset:{1024*hf}")
            q.append(('w2l', 8))
        if relay and b == 6:
            for r in range(4):
                for hf in range(2):
                    A(f"s_add_u32 s30, s27, {r*256 + hf*4*3584*256}")
                    A(f"buffer_store_dwordx4 {v(32+8*r+4*hf,4)}, v{20+r}, s[16:19], s30 offen{cfg.get('wst', ' sc1')}")
            q.append(('w2s', 8))
        if poison and b == 9:
            for i in range(5):
                A(f"buffer_store_dwordx4 v[100:103], v{24+i}, s[36:39], 0 offen{cfg.get('pst', '')}")
            q.append(('poi', 5))
        if b == 12:
            A(f"""
            s_lshl_b32 s30, s{SMB}, 5
            v_and_b32 v8, 7, v1
            v_lshlrev_b32 v8, 2, v8
            v_add_u32 v8, s30, v8
            global_load_dword v9, v8, s[64:65] sc1
            s_lshl_b32 s33, s{SMB}, 11
            s_lshl_b32 s30, s25, 9
            s_add_u32 s33, s33, s30
            v_lshlrev_b32 v10, 3, v1
            s_add_u32 s30, s30, {STATL}
            v_add_u32 v11, s30, v10
            """)
            q.append(('poll', 1))
    A(f"""
    s_waitcnt vmcnt(0)
    ds_write_b64 v11, v[12:13]
    s_waitcnt lgkmcnt(0)
    s_barrier
    s_endpgm
    """)


def consumer(A, L, cfg):
    XA, WA, XB, WB = 128, 160, 176, 208
    xa0, xa1, wa = 224, 225, 226
    lane, t0, t1, t2, t3 = 230, 231, 232, 233, 234
    ONES, CS = 236, 240
    acc = lambda i, n=1: v(i, n)
    A(f"""
    v_mov_b32 v{lane}, v1
    s_and_b32 s26, s25, 1            ; wm
    s_lshr_b32 s27, s25, 1           ; wf
    v_and_b32 v{t0}, 15, v{lane}     ; i = l&15
    v_lshrrev_b32 v{t1}, 4, v{lane}  ; G
    v_lshrrev_b32 v{t2}, 1, v{t0}    ; sw
    v_xor_b32 v{t2}, v{t2}, v{t1}    ; G ^ sw
    v_lshlrev_b32 v{t2}, 4, v{t2}
    v_lshlrev_b32 v{t3}, 7, v{t0}    ; row*128
    v_add_u32 v{t2}, v{t2}, v{t3}
    s_lshl_b32 s28, s26, 14          ; wm*128*128
    v_add_u32 v{xa0}, s28, v{t2}
    v_xor_b32 v{xa1}, 64, v{xa0}
    v_lshrrev_b32 v{t2}, 2, v{t0}    ; r'
    v_and_b32 v{t3}, 1, v{t1}
    v_lshlrev_b32 v{t3}, 2, v{t3}
    v_or_b32 v{t3}, v{t3}, v{t2}     ; f(k)
    v_lshlrev_b32 v{t1}, 3, v{t1}    ; 8G
    v_add_u32 v{t1}, v{t1}, v{t2}    ; 8G + r'
    v_lshlrev_b32 v{t1}, 8, v{t1}    ; *256
    v_and_b32 v{t0}, 3, v{t0}        ; cc
    v_lshlrev_b32 v{t0}, 3, v{t0}
    v_add_u32 v{t1}, v{t1}, v{t0}
    v_add_u32 v{t1}, {XSZ}, v{t1}
    s_lshl_b32 s28, s27, 2           ; wf*4
    s_lshl_b32 s29, s26, 1
    s_add_u32 s28, s28, s29
    """)
    for tf in range(4):
        A(f"""
        s_xor_b32 s29, s28, {tf}
        v_xor_b32 v{t0}, s29, v{t3}
        v_lshlrev_b32 v{t0}, 5, v{t0}
        v_add_u32 v{wa+tf}, v{t0}, v{t1}
        """)
    for i in range(128):
        A(f"v_mov_b32 v{i}, 0")
    for i in range(4): A(f"v_mov_b32 v{ONES+i}, 0x3f803f80")
    for i in range(8): A(f"v_mov_b32 v{CS+i}, 0")
    A(f"""
    s_and_b32 s28, s{SRHO}, 0xfc
    v_mov_b32 v248, s28
    v_mov_b32 v249, 1
    s_cmp_eq_u32 s25, 0
    s_cselect_b32 s37, {cfg.get('sigstep', 1)}, -1     ; wave 0 signals behind the barrier of this step
    """)

    def reads(xset, wset, xreg, h):
        r = []
        xs = [f"ds_read_b128 {v(xset+4*tm,4)}, v{xreg} offset:{2048*tm}" for tm in range(8)]
        ws = []
        for tf in range(4):
            for u in range(2):
                ws.append(f"ds_read_b64_tr_b16 {v(wset+4*tf+2*u,2)}, v{wa+tf} offset:{h*8192+u*1024}")
        for i in range(8):
            r.append(ws[i]); r.append(xs[i])
        return r

    def unit(xset, wset, rd, extra=()):
        mf = []
        for tm in range(8):
            order = range(4) if tm % 2 == 0 else range(3, -1, -1)
            for tf in order:
                d = acc(4*(tf*8+tm), 4)
                mf.append(f"v_mfma_f32_16x16x32_bf16 {d}, {v(wset+4*tf,4)}, {v(xset+4*tm,4)}, {d}")
            if tm in (3, 6):
                tf = 0 if tm == 3 else 1
                d = v(CS + 4*tf, 4)
                mf.append(f"v_mfma_f32_16x16x32_bf16 {d}, {v(wset+4*tf,4)}, {v(ONES,4)}, {d}")
        rd = list(rd); extra = list(extra)
        for i, m in enumerate(mf):
            A(m)
            if i < len(rd):
                A(rd[i])
            elif extra:
                A(extra.pop(0))
        for e in extra: A(e)

    A("s_barrier")
    stamp(A, cfg, 0); stamp(A, cfg, 2, True)
    for r in reads(XA, WA, xa0, 0): A(r)
    A(f"""
    s_mov_b32 s30, 0                 ; step
    s_mov_b32 s31, 0
    s_waitcnt lgkmcnt(0)
    """)
    A.label(f"{L}_cloop")
    A(f"""
    s_add_u32 s32, s31, {STAGE}
    s_cmp_eq_u32 s32, {STAGE*NS}
    s_cselect_b32 s32, 0, s32
    s_sub_u32 s33, s32, s31          ; delta
    s_mov_b32 s31, s32
    """)
    unit(XA, WA, reads(XB, WB, xa1, 1))
    adv = [f"v_add_u32 v{xa0}, s33, v{xa0}"] + [f"v_add_u32 v{wa+t}, s33, v{wa+t}" for t in range(4)]
    for e in adv: A(e)
    A("s_waitcnt lgkmcnt(0)")
    A("s_barrier")
    A(f"""
    s_cmp_lg_u32 s30, s37
    s_cbranch_scc1 {L}_nosig
    s_mov_b64 exec, 1
    global_atomic_add v248, v249, s[64:65] sc1
    s_mov_b64 exec, -1
    {L}_nosig:
    """)
    unit(XB, WB, reads(XA, WA, xa0, 0), extra=[f"v_xor_b32 v{xa1}, 64, v{xa0}"])
    A(f"""
    s_add_u32 s30, s30, 1
    s_cmp_lt_u32 s30, {KSTEPS}
    s_waitcnt lgkmcnt(0)
    s_cbranch_scc1 {L}_cloop
    """)
    stamp(A, cfg, 1); stamp(A, cfg, 3, True)
    CS2, ST, C1, ONE = 160, 176, 192, 194
    A(f"""
    s_lshl_b32 s28, s25, 11
    s_add_u32 s28, s28, {CSL}
    v_lshlrev_b32 v{t0}, 5, v{lane}
    v_add_u32 v{t1}, s28, v{t0}
    v_xor_b32 v{t2}, 2048, v{t1}
    ds_write_b128 v{t1}, {v(CS,4)}
    ds_write_b128 v{t1}, {v(CS+4,4)} offset:16
    v_and_b32 v{t0}, 15, v{lane}
    v_lshrrev_b32 v{t3}, 1, v{t0}
    v_lshlrev_b32 v{t3}, 4, v{t3}
    v_and_b32 v{t0}, 1, v{t0}
    v_lshlrev_b32 v{t0}, 2, v{t0}
    v_add_u32 v{t3}, v{t3}, v{t0}
    s_lshl_b32 s28, s26, 10
    s_add_u32 s28, s28, {STATL}
    v_add_u32 v{t3}, s28, v{t3}
    """)
    srd_from(A, 12, 6, 7, H_OFF, H_SZ)
    A(f"""
    s_lshl_b32 s28, s{SMB}, 4
    s_lshl_b32 s29, s26, 3
    s_add_u32 s28, s28, s29
    s_mul_i32 s28, s28, 112
    s_lshl_b32 s29, s{SNB}, 2
    s_add_u32 s28, s28, s29
    s_lshl_b32 s29, s27, 1
    s_add_u32 s28, s28, s29
    s_lshl_b32 s34, s28, 10
    v_and_b32 v{t0}, 15, v{lane}
    v_lshrrev_b32 v{xa1}, 4, v{lane}  ; G
    v_and_b32 v{xa0}, 1, v{xa1}
    v_lshlrev_b32 v{xa0}, 1, v{xa0}
    v_lshrrev_b32 v{xa1}, 1, v{xa1}
    v_or_b32 v{xa1}, v{xa1}, v{xa0}     ; cG
    v_lshlrev_b32 v{xa1}, 8, v{xa1}
    v_lshlrev_b32 v{t0}, 4, v{t0}
    v_add_u32 v{xa0}, v{t0}, v{xa1}
    s_lshl_b32 s28, s26, 10
    v_add_u32 v{xa0}, s28, v{xa0}
    v_xor_b32 v{xa1}, 1024, v{xa0}
    s_mov_b32 s35, 0xbfb8aa3b        ; -log2(e)
    v_mov_b32 v{ONE}, 1.0
    v_mov_b32 v{ONE+1}, 1.0
    s_waitcnt lgkmcnt(0)
    s_barrier
    """)
    for i in range(8): A(f"v_mov_b32 v{CS2+i}, v{CS+i}")
    A(f"ds_read_b128 {v(CS2+8,4)}, v{t2}")
    A(f"ds_read_b128 {v(CS2+12,4)}, v{t2} offset:16")
    for tm in range(8):
        A(f"ds_read2_b32 {v(ST+2*tm,2)}, v{t3} offset0:{32*tm} offset1:{32*tm+2}")
    A("s_waitcnt lgkmcnt(0)")
    rowstep = 112 * 1024
    P = 196
    nbuf = 0
    pk = cfg.get('pk', True)
    for tm in range(8):
        mu = ST + 2*tm
        A(f"v_mul_f32 v{C1}, s35, v{mu+1}")
        for fp in range(2):
            base = (128, 196)[nbuf % 2]
            nbuf += 1
            U = base + 8
            E = base + 16
            prs = [(4*((2*fp+t)*8+tm) + 2*h, CS2 + 4*(2*fp+t) + 2*h) for t in range(2) for h in range(2)]
            if pk:
                for i, (T, c) in enumerate(prs):
                    A(f"v_pk_fma_f32 {v(U+2*i,2)}, {v(c,2)}, {v(mu,2)}, {v(T,2)} op_sel_hi:[1,0,1] neg_lo:[0,1,0] neg_hi:[0,1,0]")
                for i in range(4):
                    A(f"v_pk_mul_f32 {v(E+2*i,2)}, {v(U+2*i,2)}, {v(C1,2)} op_sel_hi:[1,0]")
                for i in range(8): A(f"v_exp_f32 v{E+i}, v{E+i}")
                for i in range(4):
                    A(f"v_pk_mul_f32 {v(U+2*i,2)}, {v(U+2*i,2)}, {v(mu,2)} op_sel:[0,1] op_sel_hi:[1,1]")
                for i in range(4):
                    A(f"v_pk_add_f32 {v(E+2*i,2)}, {v(E+2*i,2)}, {v(ONE,2)}")
                for i in range(8): A(f"v_rcp_f32 v{E+i}, v{E+i}")
                for i in range(4):
                    A(f"v_pk_mul_f32 {v(E+2*i,2)}, {v(U+2*i,2)}, {v(E+2*i,2)}")
            else:
                for i, (T, c) in enumerate(prs):
                    for h in range(2):
                        A(f"v_fma_f32 v{U+2*i+h}, -v{mu}, v{c+h}, v{T+h}")
                for i in range(8): A(f"v_mul_f32 v{E+i}, v{C1}, v{U+i}")
                for i in range(8): A(f"v_exp_f32 v{E+i}, v{E+i}")
                for i in range(8): A(f"v_mul_f32 v{U+i}, v{mu+1}, v{U+i}")
                for i in range(8): A(f"v_add_f32 v{E+i}, 1.0, v{E+i}")
                for i in range(8): A(f"v_rcp_f32 v{E+i}, v{E+i}")
                for i in range(8): A(f"v_mul_f32 v{E+i}, v{U+i}, v{E+i}")
            for i in range(4): A(f"v_cvt_pk_bf16_f32 v{base+i}, v{E+2*i}, v{E+2*i+1}")
            A(f"v_permlane16_swap_b32 v{base}, v{base+2}")
            A(f"v_permlane16_swap_b32 v{base+1}, v{base+3}")
            A(f"s_add_u32 s36, s34, {rowstep*tm}")
            A(f"buffer_store_dwordx4 {v(base,4)}, v{xa1 if fp else xa0}, s[12:15], s36 offen{cfg.get('st', '')}")
    A("s_endpgm")
```

```python
from asmlib import *
from layout import *
from consts import *
from k1 import srd_from, srd_table, wave_reduce
import f2 as F2

STAGE = 49152
XSZ = 32768
NS = 3
KSTEPS = 16
WSTRIDE = 7168
PAO = 2 * STAGE
XS, NYQ, STL = 16384, 32768, 32768 + 64
STATL = NS * STAGE
CSL = STATL + 4096
LDS_KA = CSL + 8192
SPIN = 400000
STAT_OFF, STAT_SZ = 0, 16384
SMB, SNB, SSLOT, SRHO = 70, 71, 72, 73

def gen_ka(A, L, cfg):
    SC = ' sc1'
    A(f"""
    s_cmp_ge_u32 s2, 256
    s_cbranch_scc1 {L}_done
    s_load_dwordx2 s[4:5], s[0:1], {ARG_X}
    s_load_dwordx4 s[8:11], s[0:1], {ARG_WR}
    s_load_dwordx2 s[6:7], s[0:1], {ARG_WS}
    s_load_dwordx4 s[60:63], s[0:1], {ARG_W1}
    s_load_dwordx2 s[64:65], s[0:1], {ARG_DBG}
    v_readfirstlane_b32 s25, v0
    v_and_b32 v1, 63, v0
    s_lshr_b32 s25, s25, 6
    s_and_b32 s20, s2, 7             ; xcd
    s_lshr_b32 s{SSLOT}, s2, 3       ; slot
    s_and_b32 s22, s20, 1
    s_lshl_b32 s22, s22, 2
    s_and_b32 s23, s{SSLOT}, 3
    s_add_u32 s{SMB}, s22, s23       ; mb
    s_lshr_b32 s23, s20, 1
    s_mul_i32 s23, s23, 7
    s_lshr_b32 s24, s{SSLOT}, 2
    s_add_u32 s{SNB}, s23, s24       ; nb
    s_lshl_b32 s20, s20, 5
    s_add_u32 s20, s20, s{SSLOT}     ; rho
    s_mov_b32 s{SRHO}, s20
    s_cmp_ge_u32 s25, 4
    s_cbranch_scc1 {L}_hi
    """)
    rows(A, L, cfg)
    A(f"""
    s_cmp_ge_u32 s{SSLOT}, 28
    s_cbranch_scc1 {L}_f2lo
    """)
    consumer(A, L, cfg)
    A.label(f"{L}_hi")
    hi(A, L, cfg)
    loader(A, L, cfg)
    A.label(f"{L}_f2hi")
    A("s_add_u32 s25, s25, 4")
    A("s_waitcnt vmcnt(0)")
    A.label(f"{L}_f2lo")
    A("s_barrier")
    A(f"""
    s_and_b32 s20, s2, 7
    s_lshl_b32 s26, s20, 2
    s_sub_u32 s21, s{SSLOT}, 28
    s_add_u32 s26, s26, s21          ; f
    """)
    def sync():
        A(f"""
        s_cmp_lg_u32 s25, 4
        s_cbranch_scc1 {L}_f2go
        s_and_b32 s28, s{SRHO}, 0xfc
        v_mov_b32 v6, s28
        v_mov_b32 v7, 1
        s_mov_b64 exec, 1
        global_atomic_add v6, v7, s[64:65] sc1
        s_mov_b64 exec, -1
        v_lshlrev_b32 v6, 2, v1
        s_mov_b32 s29, 0
        {L}_f2poll:
        {('s_sleep %d' % cfg['sleep']) if cfg.get('sleep') else ''}
        {('s_branch %s_f2go' % L) if cfg.get('nopoll') else ''}
        global_load_dword v7, v6, s[64:65] sc1
        s_add_u32 s29, s29, 1
        s_cmp_ge_u32 s29, {SPIN}
        s_cbranch_scc1 {L}_f2go
        s_waitcnt vmcnt(0)
        v_cmp_gt_u32 vcc, 4, v7
        s_cmp_lg_u64 vcc, 0
        s_cbranch_scc1 {L}_f2poll
        {L}_f2go:
        s_waitcnt vmcnt(0)
        s_barrier
        """)
    c = dict(st=cfg.get('stf2', ''), stamps=cfg.get('stamps'), ka=sync)
    F2.gen_f2(A, f"{L}f", c)
    A.label(f"{L}_done")
    A("s_endpgm")


def rows(A, L, cfg):
    RAW = [8, 16]
    F = [24, 40]
    TAB = 64
    TW = 96
    D1 = [128, 160]
    D2 = [128, 160]
    A(f"""
    s_lshr_b32 s21, s20, 7             ; gamma
    s_lshl_b32 s21, s21, 4
    s_lshr_b32 s22, s20, 5
    s_and_b32 s22, s22, 1              ; hi
    s_lshl_b32 s22, s22, 2
    s_add_u32 s21, s21, s22
    s_lshr_b32 s22, s25, 1
    s_lshl_b32 s22, s22, 3
    s_add_u32 s21, s21, s22
    s_and_b32 s22, s25, 1
    s_lshl_b32 s22, s22, 1
    s_add_u32 s21, s21, s22
    s_lshl_b32 s21, s21, 6
    s_lshr_b32 s22, s20, 6
    s_and_b32 s22, s22, 1
    s_lshl_b32 s22, s22, 5
    s_add_u32 s21, s21, s22
    s_and_b32 s22, s20, 31
    s_add_u32 s21, s21, s22
    s_lshl_b32 s21, s21, 11
    s_add_u32 s22, s21, 131072         ; row B
    v_lshlrev_b32 v2, 4, v1            ; lane*16
    s_waitcnt lgkmcnt(0)
    """)
    srd_from(A, 12, 4, 5, 0, 4 * MB)
    A(f"""
    buffer_load_dwordx4 v[{RAW[0]}:{RAW[0]+3}], v2, s[12:15], s21 offen
    buffer_load_dwordx4 v[{RAW[0]+4}:{RAW[0]+7}], v2, s[12:15], s21 offen offset:1024
    buffer_load_dwordx4 v[{RAW[1]}:{RAW[1]+3}], v2, s[12:15], s22 offen
    buffer_load_dwordx4 v[{RAW[1]+4}:{RAW[1]+7}], v2, s[12:15], s22 offen offset:1024
    """)
    srd_table(A, 16, "tab_f1", 16384)
    A("s_mov_b32 s26, 4096\ns_mov_b32 s27, 8192\ns_mov_b32 s28, 12288")
    for i in range(16):
        so = ["0", "s26", "s27", "s28"][i >> 2]
        A(f"buffer_load_dwordx4 v[{TAB+4*i}:{TAB+4*i+3}], v2, s[16:19], {so} offen offset:{1024*(i&3)}")
    A(f"""
    s_lshl_b32 s33, s25, 12
    s_add_u32 s33, s33, {PAO}
    v_add_u32 v4, s33, v2
    v_lshrrev_b32 v5, 5, v1
    v_lshlrev_b32 v5, 3, v5
    v_bfe_u32 v6, v1, 2, 2
    v_add_u32 v5, v5, v6
    v_lshlrev_b32 v5, 6, v5
    v_bfe_u32 v6, v1, 4, 1
    v_lshlrev_b32 v6, 5, v6
    v_add_u32 v5, v5, v6
    v_and_b32 v6, 3, v1
    v_lshlrev_b32 v6, 3, v6
    v_add_u32 v5, v5, v6
    v_add_u32 v5, s33, v5
    v_and_b32 v6, 31, v1
    v_lshlrev_b32 v6, 4, v6
    v_lshrrev_b32 v7, 5, v1
    v_lshlrev_b32 v7, 11, v7
    v_add_u32 v6, v6, v7
    s_lshl_b32 s33, s25, 2
    s_add_u32 s33, s33, {PAO + XS}
    v_add_u32 v6, s33, v6
    s_lshl_b32 s33, s25, 4
    s_add_u32 s33, s33, {PAO + STL}
    v_mov_b32 v3, s33
    """)
    A("s_mov_b32 s34, 0xffff0000")
    A("s_waitcnt vmcnt(16)")
    for r in range(2):
        for i in range(8):
            A(f"v_lshlrev_b32 v{F[r]+2*i}, 16, v{RAW[r]+i}")
            A(f"v_and_b32 v{F[r]+2*i+1}, s34, v{RAW[r]+i}")
    S = [56, 57]
    T = [58, 59, 60, 61]
    for r in range(2):
        A(f"v_add_f32 v{S[r]}, v{F[r]}, v{F[r]+1}")
    for i in range(2, 16):
        for r in range(2):
            A(f"v_add_f32 v{S[r]}, v{S[r]}, v{F[r]+i}")
    wave_reduce(A, S)
    for r in range(2):
        A(f"v_readlane_b32 s{44+r}, v{S[r]}, 63")
    for r in range(2):
        A(f"v_mov_b32 v{T[r]}, 0x3a800000")
        A(f"v_mul_f32 v{T[r]}, s{44+r}, v{T[r]}")
    for i in range(16):
        for r in range(2):
            A(f"v_sub_f32 v{T[2+r]}, v{F[r]+i}, v{T[r]}")
            if i == 0:
                A(f"v_mul_f32 v{S[r]}, v{T[2+r]}, v{T[2+r]}")
            else:
                A(f"v_fmac_f32 v{S[r]}, v{T[2+r]}, v{T[2+r]}")
    wave_reduce(A, S)
    for r in range(2):
        A(f"v_readlane_b32 s{46+r}, v{S[r]}, 63")
    for r in range(2):
        A(f"v_cvt_pk_bf16_f32 v{T[r]}, v{T[r]}, v{T[r]}")
        A(f"v_and_b32 v{T[r]}, s34, v{T[r]}")
        A(f"v_mov_b32 v{T[2+r]}, 0x3a800000")
        A(f"v_mul_f32 v{T[2+r]}, s{46+r}, v{T[2+r]}")
        A(f"v_cvt_pk_bf16_f32 v{T[2+r]}, v{T[2+r]}, v{T[2+r]}")
        A(f"v_and_b32 v{T[2+r]}, s34, v{T[2+r]}")
        A(f"v_add_f32 v{T[2+r]}, 0x3727c5ac, v{T[2+r]}")
        A(f"v_cvt_pk_bf16_f32 v{T[2+r]}, v{T[2+r]}, v{T[2+r]}")
        A(f"v_and_b32 v{T[2+r]}, s34, v{T[2+r]}")
        A(f"v_sqrt_f32 v{T[2+r]}, v{T[2+r]}")
        A(f"v_cvt_pk_bf16_f32 v{T[2+r]}, v{T[2+r]}, v{T[2+r]}")
        A(f"v_and_b32 v{T[2+r]}, s34, v{T[2+r]}")
        A(f"v_rcp_f32 v{T[2+r]}, v{T[2+r]}")
    A(f"""
    s_mov_b64 exec, 1
    ds_write_b128 v3, v[58:61]
    s_mov_b64 exec, -1
    """)
    U = [62, 63]
    for i in range(8):
        for r in range(2):
            a0, a1 = F[r]+2*i, F[r]+2*i+1
            A(f"v_sub_f32 v{a0}, v{a0}, v{T[r]}")
            A(f"v_sub_f32 v{a1}, v{a1}, v{T[r]}")
            A(f"v_cvt_pk_bf16_f32 v{U[r]}, v{a0}, v{a1}")
            A(f"v_lshlrev_b32 v{a0}, 16, v{U[r]}")
            A(f"v_and_b32 v{a1}, s34, v{U[r]}")
            A(f"v_mul_f32 v{a0}, v{a0}, v{T[2+r]}")
            A(f"v_mul_f32 v{a1}, v{a1}, v{T[2+r]}")
            A(f"v_cvt_pk_bf16_f32 v{RAW[r]+i}, v{a0}, v{a1}")
    for r in range(2):
        A(f"ds_write_b128 v4, v[{RAW[r]}:{RAW[r]+3}] offset:{2048*r}")
        A(f"ds_write_b128 v4, v[{RAW[r]+4}:{RAW[r]+7}] offset:{2048*r + 1024}")
    A("s_waitcnt lgkmcnt(0)")
    AF = [24, 40]
    for r in range(2):
        for t in range(2):
            for u in range(2):
                A(f"ds_read_b64_tr_b16 v[{AF[r]+4*t+2*u}:{AF[r]+4*t+2*u+1}], v5 offset:{2048*r + 1024*t + 256*u}")
    A("s_waitcnt vmcnt(0) lgkmcnt(0)")
    for r in range(2):
        for part in range(2):
            for t in range(2):
                d = v(D1[r] + 16*part, 16)
                A(f"v_mfma_f32_32x32x16_bf16 {d}, {v(AF[r]+4*t,4)}, {v(TAB+8*part+4*t,4)}, {'0' if t == 0 else d}")
    T = [58, 59, 60, 61]
    NY = [56, 57]
    PK = [192, 208]
    for r in range(2):
        Dr, Di = D1[r], D1[r] + 16
        A(f"v_sub_f32 v{NY[r]}, v{Dr}, v{Dr+1}")
        for i in range(2, 16):
            A(f"v_{'add' if i % 2 == 0 else 'sub'}_f32 v{NY[r]}, v{NY[r]}, v{Dr+i}")
    for r in range(2):
        Dr, Di = D1[r], D1[r] + 16
        for e in range(16):
            t1, t2 = T[0] + (e & 1) * 2, T[1] + (e & 1) * 2
            A(f"v_mul_f32 v{t1}, v{Di+e}, v{TW+16+e}")
            A(f"v_mul_f32 v{t2}, v{Di+e}, v{TW+e}")
            A(f"v_fma_f32 v{Di+e}, v{Dr+e}, v{TW+16+e}, v{t2}")
            A(f"v_fma_f32 v{Dr+e}, v{Dr+e}, v{TW+e}, -v{t1}")
            if e & 1:
                b, q = e >> 3, (e & 7) >> 1
                A(f"v_cvt_pk_bf16_f32 v{PK[r]+4*b+q}, v{Dr+e-1}, v{Dr+e}")
                A(f"v_cvt_pk_bf16_f32 v{PK[r]+8+4*b+q}, v{Di+e-1}, v{Di+e}")
    for r in range(2):
        d = v(D2[r], 16)
        first = True
        for pin in range(2):
            for b in range(2):
                A(f"v_mfma_f32_32x32x16_bf16 {d}, {v(TAB+16+8*pin+4*b,4)}, {v(PK[r]+8*pin+4*b,4)}, {'0' if first else d}")
                first = False
    for r in range(2):
        A(f"v_readlane_b32 s{44+r}, v{NY[r]}, 32")
    for r in range(2):
        A(f"v_add_f32 v{NY[r]}, s{44+r}, v{NY[r]}")
    A(f"v_cvt_pk_bf16_f32 v{NY[0]}, v{NY[0]}, v{NY[1]}")
    A(f"""
    s_lshl_b32 s33, s25, 2
    s_add_u32 s33, s33, {PAO + NYQ}
    v_mov_b32 v58, s33
    v_cmp_eq_u32 vcc, 0, v1
    v_mov_b32 v59, 1.0
    v_mov_b32 v60, 0.5
    v_cndmask_b32 v59, v59, v60, vcc
    s_mov_b64 exec, 1
    ds_write_b32 v58, v{NY[0]}
    s_mov_b64 exec, -1
    """)
    for r in range(2):
        A(f"v_mul_f32 v{D2[r]}, v{D2[r]}, v59")
    for e in range(8):
        o0 = 2 * (8 * (e >> 2) + (e & 3))
        a_, b_ = 60 + 2 * (e & 1), 61 + 2 * (e & 1)
        A(f"v_cvt_pk_bf16_f32 v{a_}, v{D2[0]+e}, v{D2[1]+e}")
        A(f"v_cvt_pk_bf16_f32 v{b_}, v{D2[0]+8+e}, v{D2[1]+8+e}")
        A(f"ds_write2st64_b32 v6, v{a_}, v{b_} offset0:{o0} offset1:{o0+32}")
    A("s_waitcnt lgkmcnt(0)")
    A("s_barrier")
    stamp(A, cfg, 4)


def hi(A, L, cfg):
    SC = cfg.get('scx', ' sc1')
    SCW = cfg.get('scw', ' sc1')
    A(f"""
    s_sub_u32 s25, s25, 4              ; lw
    s_and_b32 s21, s2, 63              ; combo
    s_lshr_b32 s22, s2, 6              ; crange
    s_lshr_b32 s23, s21, 2
    s_and_b32 s24, s21, 3              ; oct
    s_lshl_b32 s26, s24, 3
    s_lshl_b32 s27, s23, 7
    s_add_u32 s27, s27, s26
    s_mul_i32 s28, s27, 1026
    s_add_u32 s29, s28, 32832
    s_add_u32 s30, s28, {2*32832}
    s_add_u32 s31, s28, {3*32832}
    s_lshl_b32 s33, s22, 7
    s_lshl_b32 s34, s25, 5
    s_add_u32 s33, s33, s34
    v_and_b32 v2, 31, v1
    v_add_u32 v2, s33, v2              ; c
    v_lshrrev_b32 v4, 5, v1            ; half
    v_mul_u32_u24 v3, 4104, v4
    v_lshl_add_u32 v3, v2, 1, v3
    s_waitcnt lgkmcnt(0)
    """)
    srd_from(A, 12, 8, 9, 0, 2048 * 1026)
    srd_from(A, 16, 10, 11, 0, 2048 * 1026)
    srd_from(A, 36, 6, 7, WT_OFF, WT_SZ)
    if cfg.get('pfcode'):
        srd_table(A, 40, "ka_kernel", "code_end-ka_kernel")
        A(f"""
        s_mul_i32 s44, s25, {2*8192}
        v_lshlrev_b32 v51, 7, v1
        v_add_u32 v51, s44, v51
        buffer_load_dword v52, v51, s[40:43], 0 offen
        v_add_u32 v51, 8192, v51
        buffer_load_dword v52, v51, s[40:43], 0 offen
        """)
        if cfg['pfcode'] > 1:
            srd_table(A, 44, "tab_f3", 16384)
            A("v_lshlrev_b32 v51, 7, v1")
            A("s_lshl_b32 s56, s25, 13")
            A("v_add_u32 v51, s56, v51")
            A("buffer_load_dword v52, v51, s[44:47], 0 offen")
    so = ["s28", "s29", "s30", "s31"]
    for i in range(4):
        for r in range(4):
            A(f"buffer_load_ushort v{8+4*i+r}, v3, s[12:15], {so[r]} offen offset:{1026*i}")
            A(f"buffer_load_ushort v{24+4*i+r}, v3, s[16:19], {so[r]} offen offset:{1026*i}")
    A(f"""
    s_cmp_eq_u32 s22, 3
    s_cselect_b32 s40, 1, 0
    s_cmp_eq_u32 s25, 0
    s_cselect_b32 s40, s40, 0
    s_cmp_eq_u32 s40, 0
    s_cbranch_scc1 {L}_noex1
    v_and_b32 v5, 7, v1
    v_mul_u32_u24 v6, 1026, v5
    v_add_u32 v6, 1024, v6
    s_mov_b64 exec, 0xff
    """)
    for r in range(4):
        A(f"buffer_load_ushort v{40+r}, v6, s[12:15], {so[r]} offen")
        A(f"buffer_load_ushort v{44+r}, v6, s[16:19], {so[r]} offen")
    A("s_mov_b64 exec, -1")
    A.label(f"{L}_noex1")
    A(f"""
    s_cmp_ge_u32 s{SSLOT}, 28
    s_cbranch_scc1 {L}_hitab
    """)
    srd_from(A, 48, 4, 5, 0, 4 * MB)
    srd_from(A, 52, 60, 61, 0, 1024 * WSTRIDE)
    vx, vw = 64, 72
    A(f"""
    s_lshr_b32 s56, s{SMB}, 2
    s_lshl_b32 s56, s56, 4
    s_and_b32 s57, s{SMB}, 1
    s_lshl_b32 s57, s57, 2
    s_add_u32 s56, s56, s57          ; p base
    s_lshl_b32 s56, s56, 6
    s_lshr_b32 s57, s{SMB}, 1
    s_and_b32 s57, s57, 1
    s_lshl_b32 s57, s57, 5
    s_add_u32 s56, s56, s57
    s_lshl_b32 s57, s25, 3
    s_add_u32 s56, s56, s57          ; n base
    s_lshl_b32 s56, s56, 11          ; X soffset
    s_lshl_b32 s57, s{SNB}, 8
    v_lshrrev_b32 v76, 5, v1
    v_lshlrev_b32 v76, 3, v76
    v_bfe_u32 v77, v1, 4, 1
    v_lshlrev_b32 v77, 1, v77
    v_add_u32 v76, v76, v77
    v_bfe_u32 v77, v1, 3, 1
    v_add_u32 v76, v76, v77          ; p lane
    v_lshlrev_b32 v76, 17, v76       ; * 64 rows * 2048
    v_and_b32 v77, 7, v1
    v_lshrrev_b32 v78, 4, v1
    """)
    for i in range(8):
        A(f"""
        v_or_b32 v79, {4*(i&1)}, v78
        v_xor_b32 v79, v79, v77
        v_lshlrev_b32 v79, 4, v79
        v_add_u32 v79, v79, v76
        v_add_u32 v{vx+i}, {2048*i - 1024*(i&3)}, v79
        """)
    A(f"""
    v_and_b32 v76, 15, v1             ; p16
    v_lshrrev_b32 v77, 1, v76         ; c32'
    v_and_b32 v76, 1, v76
    v_lshlrev_b32 v76, 4, v76         ; half*16
    s_lshl_b32 s58, s25, 4            ; 16 lw
    v_add_u32 v79, s58, v78           ; 16lw + (l>>4)
    s_mov_b32 s59, {WSTRIDE}
    v_mul_lo_u32 v79, v79, s59
    v_add_u32 v79, v79, v76
    """)
    for i in range(4):
        A(f"""
        v_or_b32 v76, {((i>>1)&1)<<2}, v78
        v_xor_b32 v76, v76, v77
        v_lshlrev_b32 v76, 5, v76
        v_add_u32 v76, v76, v79
        v_add_u32 v{vw+i}, {4*i*WSTRIDE - 1024*i}, v76
        """)
    A(f"""
    s_lshl_b32 s58, s25, 13
    s_lshl_b32 s59, s25, 12
    s_add_u32 s59, s59, {XSZ}
    s_mov_b32 s66, 0
    """)
    issue(A); issue(A)
    A(f"s_branch {L}_hiw")
    A.label(f"{L}_hitab")
    srd_table(A, 48, "tab_f2", F2.NFR * 1024 + 8192)
    A("v_lshlrev_b32 v64, 4, v1")
    for i in range(11):
        A(f"s_add_u32 s56, s25, {4*i}")
        if i == 10:
            A(f"s_min_u32 s56, s56, {F2.NFR-1}")
        A("s_lshl_b32 s56, s56, 10")
        A("s_mov_b32 m0, s56")
        A("buffer_load_dwordx4 v64, s[48:51], s56 offen lds")
    A.label(f"{L}_hiw")
    WTL = PAO + 33280
    A(f"""
    s_lshr_b32 s34, s23, 1
    s_lshl_b32 s34, s34, 10
    s_and_b32 s35, s23, 1
    s_lshl_b32 s35, s35, 9
    s_add_u32 s34, s34, s35
    s_lshl_b32 s35, s26, 4
    s_add_u32 s35, s35, s34
    s_lshl_b32 s34, s25, 12
    s_add_u32 s34, s34, {WTL}
    v_and_b32 v48, 31, v1
    v_lshlrev_b32 v48, 7, v48
    v_lshrrev_b32 v49, 5, v1
    v_lshlrev_b32 v49, 6, v49
    v_add_u32 v48, v48, v49
    v_add_u32 v48, s34, v48
    v_lshlrev_b32 v49, 4, v1
    v_add_u32 v49, s34, v49
    v_lshrrev_b32 v4, 3, v1
    v_add_u32 v4, s33, v4
    v_lshlrev_b32 v4, 13, v4
    v_and_b32 v50, 7, v1
    v_lshlrev_b32 v50, 4, v50
    v_add_u32 v4, v4, v50              ; (c0 + (l >> 3)) * 8192 + (l & 7) * 16
    s_waitcnt vmcnt(0)
    s_cmp_eq_u32 s40, 0
    s_cbranch_scc1 {L}_noex2
    v_lshlrev_b32 v5, 4, v5
    v_add_u32 v5, {512*8192}, v5
    v_lshl_or_b32 v40, v44, 16, v40
    v_lshl_or_b32 v41, v45, 16, v41
    v_lshl_or_b32 v42, v46, 16, v42
    v_lshl_or_b32 v43, v47, 16, v43
    s_mov_b64 exec, 0xff
    buffer_store_dwordx4 v[40:43], v5, s[36:39], s35 offen{SCW}
    s_mov_b64 exec, -1
    """)
    A.label(f"{L}_noex2")
    for i in range(4):
        for r in range(4):
            A(f"v_lshl_or_b32 v{8+4*i+r}, v{24+4*i+r}, 16, v{8+4*i+r}")
        A(f"ds_write_b128 v48, v[{8+4*i}:{11+4*i}] offset:{16*i}")
    A("s_waitcnt lgkmcnt(0)")
    for j in range(4):
        A(f"ds_read_b128 v[{24+4*j}:{27+4*j}], v49 offset:{1024*j}")
    for j in range(4):
        A(f"s_waitcnt lgkmcnt({3-j})")
        A(f"s_add_u32 s34, s35, {j*8*8192}")
        A(f"buffer_store_dwordx4 v[{24+4*j}:{27+4*j}], v4, s[36:39], s34 offen{SCW}")
    srd_from(A, 40, 6, 7, X1_OFF, X1_SZ)
    srd_from(A, 44, 6, 7, STAT_OFF, STAT_SZ)
    A(f"""
    v_and_b32 v80, 255, v0             ; t
    v_and_b32 v81, 1, v80
    v_lshlrev_b32 v81, 13, v81
    v_lshrrev_b32 v82, 1, v80
    v_lshlrev_b32 v82, 4, v82
    v_add_u32 v81, v81, v82
    v_add_u32 v81, {PAO + XS}, v81
    v_lshrrev_b32 v82, 2, v80
    v_lshlrev_b32 v82, 14, v82
    v_and_b32 v83, 3, v80
    v_lshlrev_b32 v83, 4, v83
    v_add_u32 v82, v82, v83
    s_lshl_b32 s33, s{SRHO}, 6          ; rho*64
    s_add_u32 s26, s33, {1*MB}
    s_add_u32 s27, s33, {2*MB}
    s_add_u32 s28, s33, {3*MB}
    s_add_u32 s29, s33, {4*MB}
    v_lshlrev_b32 v83, 4, v1            ; lane*16
    v_mov_b32 v104, {PAO + NYQ}
    v_add_u32 v105, {PAO + STL}, v83
    s_barrier                           ; B1
    """)
    for i in range(4):
        A(f"ds_read_b128 v[{84+4*i}:{87+4*i}], v81 offset:{2048*i}")
    A("ds_read_b128 v[100:103], v104")
    A("ds_read_b128 v[108:111], v105")
    for i in range(4):
        A(f"s_waitcnt lgkmcnt({5-i})")
        so_ = ["s33", "s26", "s27", "s28"][i]
        A(f"buffer_store_dwordx4 v[{84+4*i}:{87+4*i}], v82, s[40:43], {so_} offen{SC}")
    A(f"""
    s_waitcnt lgkmcnt(0)
    s_cmp_eq_u32 s25, 0
    s_cbranch_scc0 {L}_nony
    v_cmp_eq_u32 vcc, 0, v1
    v_cndmask_b32 v100, 0, v100, vcc
    v_cndmask_b32 v101, 0, v101, vcc
    v_cndmask_b32 v102, 0, v102, vcc
    v_cndmask_b32 v103, 0, v103, vcc
    s_mov_b64 exec, 3
    buffer_store_dwordx4 v[100:103], v83, s[40:43], s29 offen{SC}
    s_mov_b64 exec, 15
    buffer_store_dwordx4 v[108:111], v83, s[44:47], s33 offen{SC}
    s_mov_b64 exec, -1
    {L}_nony:
    s_cmp_ge_u32 s{SSLOT}, 28
    s_cbranch_scc1 {L}_f2hi
    """)


VX, VW = 64, 72
def issue(A):
    A("s_add_u32 m0, s66, s58")
    for i in range(8):
        if i == 4: A("s_add_u32 m0, m0, 4096")
        A(f"buffer_load_dwordx4 v{VX+i}, s[48:51], s56 offen offset:{1024*(i&3)} lds")
    A(f"""
    s_add_u32 m0, s66, s59
    s_add_u32 s56, s56, 128
    s_add_u32 s66, s66, {STAGE}
    buffer_load_dwordx4 v{VW}, s[52:55], s57 offen lds
    buffer_load_dwordx4 v{VW+1}, s[52:55], s57 offen offset:1024 lds
    buffer_load_dwordx4 v{VW+2}, s[52:55], s57 offen offset:2048 lds
    buffer_load_dwordx4 v{VW+3}, s[52:55], s57 offen offset:3072 lds
    s_add_u32 s57, s57, {64*WSTRIDE}
    s_cmp_eq_u32 s66, {STAGE*NS}
    s_cselect_b32 s66, 0, s66
    """)


def loader(A, L, cfg):
    A("s_barrier")
    issue(A)
    relay = cfg.get('relayw2', True)
    poison = cfg.get('poison', True)
    q = []
    q.append(('s2', 12))
    def wait_for(tag, alt=0):
        idx = max(i for i, (t, n) in enumerate(q) if t == tag)
        n = sum(c for t, c in q[idx+1:] if t != 'sig')
        sig = any(t == 'sig' for t, c in q[idx+1:])
        if sig:
            lab = A.uid(L + "_w") if hasattr(A, 'uid') else None
            A(f"""
            s_cmp_eq_u32 s25, 0
            s_cbranch_scc1 {L}_wa{tag}
            s_waitcnt vmcnt({n})
            s_branch {L}_wb{tag}
            {L}_wa{tag}:
            s_waitcnt vmcnt({n+1})
            {L}_wb{tag}:
            """)
        else:
            A(f"s_waitcnt vmcnt({n})")
        del q[:idx+1]
    A(f"""
    s_mul_i32 s26, s{SMB}, 28
    s_add_u32 s26, s26, s{SNB}       ; idx
    """)
    if relay:
        CBS = 3584 * 256
        A(f"""
        s_lshl_b32 s27, s26, 4
        s_lshl_b32 s28, s25, 2
        s_add_u32 s27, s27, s28
        s_lshl_b32 s28, s27, 11
        s_lshl_b32 s27, s27, 8
        v_lshlrev_b32 v16, 4, v1         ; lane*16
        v_lshrrev_b32 v17, 4, v1
        v_mul_u32_u24 v17, {CBS // 256}, v17
        v_lshlrev_b32 v17, 8, v17        ; (lane>>4)*CBS
        v_and_b32 v18, 1, v1
        v_lshlrev_b32 v18, 4, v18
        v_add_u32 v17, v17, v18
        v_bfe_u32 v18, v1, 1, 3          ; c32
        s_lshr_b32 s29, s25, 1
        s_lshl_b32 s29, s29, 2           ; ((k>>3)&1)<<2
        """)
        for r in range(4):
            A(f"""
            s_or_b32 s30, s29, {r}
            v_xor_b32 v19, s30, v18
            v_lshlrev_b32 v19, 5, v19
            v_add_u32 v{20+r}, v17, v19
            """)
        srd_from(A, 12, 62, 63, 0, 3584 * 2048)
        srd_from(A, 16, 6, 7, W2I_OFF, W2I_SZ)
    if poison:
        srd_from(A, 36, 6, 7, E_OFF, E_SZ)
        A(f"""
        s_lshl_b32 s30, s26, 2
        s_add_u32 s30, s30, s25
        s_lshl_b32 s30, s30, 10
        v_lshlrev_b32 v24, 4, v1
        v_add_u32 v24, s30, v24
        """)
        for i in range(1, 5):
            A(f"v_add_u32 v{24+i}, {896*1024}, v{24+i-1}")
        for i in range(4):
            A(f"v_mov_b32 v{100+i}, -1")
    for b in range(KSTEPS):
        if 1 <= b < KSTEPS - 1 and b != 14:
            wait_for(f's{b+1}')
        ls = cfg.get('lst', {0: 0, 1: 1, 4: 4, 9: 5})
        if b in ls: stamp(A, cfg, ls[b])
        if b == 14:
            A(f"""
            s_waitcnt vmcnt(0)
            s_mov_b32 s31, 0
            {L}_spoll:
            v_cmp_gt_u32 vcc, 4, v9
            s_cmp_eq_u64 vcc, 0
            s_cbranch_scc1 {L}_sready
            s_add_u32 s31, s31, 1
            s_cmp_ge_u32 s31, {SPIN}
            s_cbranch_scc1 {L}_sready
            s_sleep 1
            global_load_dword v9, v8, s[64:65] sc1
            s_waitcnt vmcnt(0)
            s_branch {L}_spoll
            {L}_sready:
            buffer_load_dwordx2 v[12:13], v10, s[44:47], s33 offen sc1
            """)
            q.clear()
        A("s_barrier")
        if b + 3 < KSTEPS:
            issue(A); q.append((f's{b+3}', 12))
        if relay and b == 3:
            for r in range(4):
                for hf in range(2):
                    A(f"s_add_u32 s30, s28, {r*2048}")
                    A(f"buffer_load_dwordx4 {v(32+8*r+4*hf,4)}, v16, s[12:15], s30 offen offset:{1024*hf}")
            q.append(('w2l', 8))
        if relay and b == 6:
            for r in range(4):
                for hf in range(2):
                    A(f"s_add_u32 s30, s27, {r*256 + hf*4*3584*256}")
                    A(f"buffer_store_dwordx4 {v(32+8*r+4*hf,4)}, v{20+r}, s[16:19], s30 offen{cfg.get('wst', ' sc1')}")
            q.append(('w2s', 8))
        if poison and b == 9:
            for i in range(5):
                A(f"buffer_store_dwordx4 v[100:103], v{24+i}, s[36:39], 0 offen{cfg.get('pst', '')}")
            q.append(('poi', 5))
        if b == 12:
            A(f"""
            s_lshl_b32 s30, s{SMB}, 5
            v_and_b32 v8, 7, v1
            v_lshlrev_b32 v8, 2, v8
            v_add_u32 v8, s30, v8
            global_load_dword v9, v8, s[64:65] sc1
            s_lshl_b32 s33, s{SMB}, 11
            s_lshl_b32 s30, s25, 9
            s_add_u32 s33, s33, s30
            v_lshlrev_b32 v10, 3, v1
            s_add_u32 s30, s30, {STATL}
            v_add_u32 v11, s30, v10
            """)
            q.append(('poll', 1))
    A(f"""
    s_waitcnt vmcnt(0)
    ds_write_b64 v11, v[12:13]
    s_waitcnt lgkmcnt(0)
    s_barrier
    s_endpgm
    """)


def consumer(A, L, cfg):
    XA, WA, XB, WB = 128, 160, 176, 208
    xa0, xa1, wa = 224, 225, 226
    lane, t0, t1, t2, t3 = 230, 231, 232, 233, 234
    ONES, CS = 236, 240
    acc = lambda i, n=1: v(i, n)
    A(f"""
    v_mov_b32 v{lane}, v1
    s_and_b32 s26, s25, 1            ; wm
    s_lshr_b32 s27, s25, 1           ; wf
    v_and_b32 v{t0}, 15, v{lane}     ; i = l&15
    v_lshrrev_b32 v{t1}, 4, v{lane}  ; G
    v_lshrrev_b32 v{t2}, 1, v{t0}    ; sw
    v_xor_b32 v{t2}, v{t2}, v{t1}    ; G ^ sw
    v_lshlrev_b32 v{t2}, 4, v{t2}
    v_lshlrev_b32 v{t3}, 7, v{t0}    ; row*128
    v_add_u32 v{t2}, v{t2}, v{t3}
    s_lshl_b32 s28, s26, 14          ; wm*128*128
    v_add_u32 v{xa0}, s28, v{t2}
    v_xor_b32 v{xa1}, 64, v{xa0}
    v_lshrrev_b32 v{t2}, 2, v{t0}    ; r'
    v_and_b32 v{t3}, 1, v{t1}
    v_lshlrev_b32 v{t3}, 2, v{t3}
    v_or_b32 v{t3}, v{t3}, v{t2}     ; f(k)
    v_lshlrev_b32 v{t1}, 3, v{t1}    ; 8G
    v_add_u32 v{t1}, v{t1}, v{t2}    ; 8G + r'
    v_lshlrev_b32 v{t1}, 8, v{t1}    ; *256
    v_and_b32 v{t0}, 3, v{t0}        ; cc
    v_lshlrev_b32 v{t0}, 3, v{t0}
    v_add_u32 v{t1}, v{t1}, v{t0}
    v_add_u32 v{t1}, {XSZ}, v{t1}
    s_lshl_b32 s28, s27, 2           ; wf*4
    s_lshl_b32 s29, s26, 1
    s_add_u32 s28, s28, s29
    """)
    for tf in range(4):
        A(f"""
        s_xor_b32 s29, s28, {tf}
        v_xor_b32 v{t0}, s29, v{t3}
        v_lshlrev_b32 v{t0}, 5, v{t0}
        v_add_u32 v{wa+tf}, v{t0}, v{t1}
        """)
    for i in range(128):
        A(f"v_mov_b32 v{i}, 0")
    for i in range(4): A(f"v_mov_b32 v{ONES+i}, 0x3f803f80")
    for i in range(8): A(f"v_mov_b32 v{CS+i}, 0")
    A(f"""
    s_and_b32 s28, s{SRHO}, 0xfc
    v_mov_b32 v248, s28
    v_mov_b32 v249, 1
    s_cmp_eq_u32 s25, 0
    s_cselect_b32 s37, {cfg.get('sigstep', 1)}, -1     ; wave 0 signals behind the barrier of this step
    """)

    def reads(xset, wset, xreg, h):
        r = []
        xs = [f"ds_read_b128 {v(xset+4*tm,4)}, v{xreg} offset:{2048*tm}" for tm in range(8)]
        ws = []
        for tf in range(4):
            for u in range(2):
                ws.append(f"ds_read_b64_tr_b16 {v(wset+4*tf+2*u,2)}, v{wa+tf} offset:{h*8192+u*1024}")
        for i in range(8):
            r.append(ws[i]); r.append(xs[i])
        return r

    def unit(xset, wset, rd, extra=()):
        mf = []
        for tm in range(8):
            order = range(4) if tm % 2 == 0 else range(3, -1, -1)
            for tf in order:
                d = acc(4*(tf*8+tm), 4)
                mf.append(f"v_mfma_f32_16x16x32_bf16 {d}, {v(wset+4*tf,4)}, {v(xset+4*tm,4)}, {d}")
            if tm in (3, 6):
                tf = 0 if tm == 3 else 1
                d = v(CS + 4*tf, 4)
                mf.append(f"v_mfma_f32_16x16x32_bf16 {d}, {v(wset+4*tf,4)}, {v(ONES,4)}, {d}")
        rd = list(rd); extra = list(extra)
        for i, m in enumerate(mf):
            A(m)
            if i < len(rd):
                A(rd[i])
            elif extra:
                A(extra.pop(0))
        for e in extra: A(e)

    A("s_barrier")
    stamp(A, cfg, 0); stamp(A, cfg, 2, True)
    for r in reads(XA, WA, xa0, 0): A(r)
    A(f"""
    s_mov_b32 s30, 0                 ; step
    s_mov_b32 s31, 0
    s_waitcnt lgkmcnt(0)
    """)
    A.label(f"{L}_cloop")
    A(f"""
    s_add_u32 s32, s31, {STAGE}
    s_cmp_eq_u32 s32, {STAGE*NS}
    s_cselect_b32 s32, 0, s32
    s_sub_u32 s33, s32, s31          ; delta
    s_mov_b32 s31, s32
    """)
    unit(XA, WA, reads(XB, WB, xa1, 1))
    adv = [f"v_add_u32 v{xa0}, s33, v{xa0}"] + [f"v_add_u32 v{wa+t}, s33, v{wa+t}" for t in range(4)]
    for e in adv: A(e)
    A("s_waitcnt lgkmcnt(0)")
    A("s_barrier")
    A(f"""
    s_cmp_lg_u32 s30, s37
    s_cbranch_scc1 {L}_nosig
    s_mov_b64 exec, 1
    global_atomic_add v248, v249, s[64:65] sc1
    s_mov_b64 exec, -1
    {L}_nosig:
    """)
    unit(XB, WB, reads(XA, WA, xa0, 0), extra=[f"v_xor_b32 v{xa1}, 64, v{xa0}"])
    A(f"""
    s_add_u32 s30, s30, 1
    s_cmp_lt_u32 s30, {KSTEPS}
    s_waitcnt lgkmcnt(0)
    s_cbranch_scc1 {L}_cloop
    """)
    stamp(A, cfg, 1); stamp(A, cfg, 3, True)
    CS2, ST, C1, ONE = 160, 176, 192, 194
    A(f"""
    s_lshl_b32 s28, s25, 11
    s_add_u32 s28, s28, {CSL}
    v_lshlrev_b32 v{t0}, 5, v{lane}
    v_add_u32 v{t1}, s28, v{t0}
    v_xor_b32 v{t2}, 2048, v{t1}
    ds_write_b128 v{t1}, {v(CS,4)}
    ds_write_b128 v{t1}, {v(CS+4,4)} offset:16
    v_and_b32 v{t0}, 15, v{lane}
    v_lshrrev_b32 v{t3}, 1, v{t0}
    v_lshlrev_b32 v{t3}, 4, v{t3}
    v_and_b32 v{t0}, 1, v{t0}
    v_lshlrev_b32 v{t0}, 2, v{t0}
    v_add_u32 v{t3}, v{t3}, v{t0}
    s_lshl_b32 s28, s26, 10
    s_add_u32 s28, s28, {STATL}
    v_add_u32 v{t3}, s28, v{t3}
    """)
    srd_from(A, 12, 6, 7, H_OFF, H_SZ)
    A(f"""
    s_lshl_b32 s28, s{SMB}, 4
    s_lshl_b32 s29, s26, 3
    s_add_u32 s28, s28, s29
    s_mul_i32 s28, s28, 112
    s_lshl_b32 s29, s{SNB}, 2
    s_add_u32 s28, s28, s29
    s_lshl_b32 s29, s27, 1
    s_add_u32 s28, s28, s29
    s_lshl_b32 s34, s28, 10
    v_and_b32 v{t0}, 15, v{lane}
    v_lshrrev_b32 v{xa1}, 4, v{lane}  ; G
    v_and_b32 v{xa0}, 1, v{xa1}
    v_lshlrev_b32 v{xa0}, 1, v{xa0}
    v_lshrrev_b32 v{xa1}, 1, v{xa1}
    v_or_b32 v{xa1}, v{xa1}, v{xa0}     ; cG
    v_lshlrev_b32 v{xa1}, 8, v{xa1}
    v_lshlrev_b32 v{t0}, 4, v{t0}
    v_add_u32 v{xa0}, v{t0}, v{xa1}
    s_lshl_b32 s28, s26, 10
    v_add_u32 v{xa0}, s28, v{xa0}
    v_xor_b32 v{xa1}, 1024, v{xa0}
    s_mov_b32 s35, 0xbfb8aa3b        ; -log2(e)
    v_mov_b32 v{ONE}, 1.0
    v_mov_b32 v{ONE+1}, 1.0
    s_waitcnt lgkmcnt(0)
    s_barrier
    """)
    for i in range(8): A(f"v_mov_b32 v{CS2+i}, v{CS+i}")
    A(f"ds_read_b128 {v(CS2+8,4)}, v{t2}")
    A(f"ds_read_b128 {v(CS2+12,4)}, v{t2} offset:16")
    for tm in range(8):
        A(f"ds_read2_b32 {v(ST+2*tm,2)}, v{t3} offset0:{32*tm} offset1:{32*tm+2}")
    A("s_waitcnt lgkmcnt(0)")
    rowstep = 112 * 1024
    P = 196
    nbuf = 0
    pk = cfg.get('pk', True)
    for tm in range(8):
        mu = ST + 2*tm
        A(f"v_mul_f32 v{C1}, s35, v{mu+1}")
        for fp in range(2):
            base = (128, 196)[nbuf % 2]
            nbuf += 1
            U = base + 8
            E = base + 16
            prs = [(4*((2*fp+t)*8+tm) + 2*h, CS2 + 4*(2*fp+t) + 2*h) for t in range(2) for h in range(2)]
            if pk:
                for i, (T, c) in enumerate(prs):
                    A(f"v_pk_fma_f32 {v(U+2*i,2)}, {v(c,2)}, {v(mu,2)}, {v(T,2)} op_sel_hi:[1,0,1] neg_lo:[0,1,0] neg_hi:[0,1,0]")
                for i in range(4):
                    A(f"v_pk_mul_f32 {v(E+2*i,2)}, {v(U+2*i,2)}, {v(C1,2)} op_sel_hi:[1,0]")
                for i in range(8): A(f"v_exp_f32 v{E+i}, v{E+i}")
                for i in range(4):
                    A(f"v_pk_mul_f32 {v(U+2*i,2)}, {v(U+2*i,2)}, {v(mu,2)} op_sel:[0,1] op_sel_hi:[1,1]")
                for i in range(4):
                    A(f"v_pk_add_f32 {v(E+2*i,2)}, {v(E+2*i,2)}, {v(ONE,2)}")
                for i in range(8): A(f"v_rcp_f32 v{E+i}, v{E+i}")
                for i in range(4):
                    A(f"v_pk_mul_f32 {v(E+2*i,2)}, {v(U+2*i,2)}, {v(E+2*i,2)}")
            else:
                for i, (T, c) in enumerate(prs):
                    for h in range(2):
                        A(f"v_fma_f32 v{U+2*i+h}, -v{mu}, v{c+h}, v{T+h}")
                for i in range(8): A(f"v_mul_f32 v{E+i}, v{C1}, v{U+i}")
                for i in range(8): A(f"v_exp_f32 v{E+i}, v{E+i}")
                for i in range(8): A(f"v_mul_f32 v{U+i}, v{mu+1}, v{U+i}")
                for i in range(8): A(f"v_add_f32 v{E+i}, 1.0, v{E+i}")
                for i in range(8): A(f"v_rcp_f32 v{E+i}, v{E+i}")
                for i in range(8): A(f"v_mul_f32 v{E+i}, v{U+i}, v{E+i}")
            for i in range(4): A(f"v_cvt_pk_bf16_f32 v{base+i}, v{E+2*i}, v{E+2*i+1}")
            A(f"v_permlane16_swap_b32 v{base}, v{base+2}")
            A(f"v_permlane16_swap_b32 v{base+1}, v{base+3}")
            A(f"s_add_u32 s36, s34, {rowstep*tm}")
            A(f"buffer_store_dwordx4 {v(base,4)}, v{xa1 if fp else xa0}, s[12:15], s36 offen{cfg.get('st', '')}")
    A("s_endpgm")
```

```python
from asmlib import *
from layout import *
from consts import *
from k1 import srd_from, srd_table, tw_quads, table_text
import numpy as np

NFR = 42
def f2_table():
    fr, tw = f2_tables()
    fl = []
    def tri(c):
        return [c.real, c.imag, -c.imag]
    for g in range(2):
        for qb in range(2):
            fl += tri(fr['B1', g, qb])
    for a in range(2):
        for b in range(2):
            for beta in range(2):
                fl += tri(fr['F64', a, b, beta])
    for beta in range(2):
        fl += tri(fr['A4', 1, beta])
    assert len(fl) == NFR
    a = np.stack([pack_frag(f) for f in fl])
    return np.concatenate([a.reshape(-1), tw_quads(tw.real, tw.imag).reshape(-1)])

def iB1(g, qb): return (g * 2 + qb) * 3
def iF64(a, b, beta): return 12 + ((a * 2 + b) * 2 + beta) * 3
def iA4(beta): return 36 + beta * 3
R_, I_, N_ = 0, 1, 2


def schedule(A, groups, blocks, per_gap, tail=()):
    done = set()
    pend = [dict(b, pos=0) for b in blocks]
    nm = 0
    gend = {}
    def emit_block(b, n=None):
        k = 0
        while b['pos'] < len(b['ins']) and (n is None or k < n):
            A(b['ins'][b['pos']]); b['pos'] += 1; k += 1
        if b['pos'] == len(b['ins']):
            done.add(b['name'])
        return k
    def avail(b):
        a = b['after']
        return a in gend and nm >= gend[a] + b.get('delay', 1)
    def fill(n):
        for b in pend:
            if b['name'] in done:
                continue
            if not avail(b):
                break
            n -= emit_block(b, n)
            if n <= 0:
                break
    for gi, g in enumerate(groups):
        for d in g.get('deps', []):
            for b in pend:
                if b['name'] in done: continue
                assert b['after'] in gend, (gi, d, b['name'])
                emit_block(b)
                if b['name'] == d: break
            assert d in done
        for p in g.get('pre', []): A(p)
        A("s_waitcnt lgkmcnt(0)")
        for mi, m in enumerate(g['mf']):
            A(m); nm += 1
            if mi == 0 and gi + 1 < len(groups):
                for r in groups[gi + 1]['reads']: A(r)
                fill(max(0, per_gap - 3))
            else:
                fill(per_gap)
        gend[gi] = nm
        for p in g.get('post', []): A(p)
    for b in pend:
        if b['name'] not in done: emit_block(b)
    for t in tail: A(t)


def gen_f2(A, name, cfg):
    L = name
    ST = cfg.get('st', '')
    KA = cfg.get('ka')
    LD = ' sc1' if KA else ''
    per_gap = cfg.get('per_gap', 5)
    XI = 8
    DA, DB = 40, 72
    PA = 104
    PB = 136
    W = 152
    T0 = 184
    CB = [216, 228]
    TMP = 240
    vL16, vL64, vLds = 2, 3, 4
    A(f"""
    v_lshlrev_b32 v{vL16}, 4, v1
    v_lshlrev_b32 v{vL64}, 6, v1
    """)
    Y32 = cfg.get('y32')
    vLo = vL64
    if Y32:
        vLo = 7

    srd_table(A, 16, "tab_f2", NFR * 1024 + 8192)
    srd_from(A, 8, 6, 7, X1_OFF, X1_SZ)
    srd_from(A, 12, 6, 7, WT_OFF, WT_SZ)
    srd_from(A, 20, 6, 7, Y1_OFF, Y1_SZ)
    A(f"""
    s_lshl_b32 s27, s26, 3
    s_add_u32 s27, s27, s25            ; cp
    s_lshl_b32 s40, s27, 14
    s_lshl_b32 s41, s27, 14
    s_add_u32 s42, s40, 32             ; col B
    s_add_u32 s43, s41, 8192
    s_mov_b32 s44, s42                 ; third
    s_mov_b32 s45, s43
    s_mov_b32 s46, 2
    """)
    PACK = cfg.get('pack')
    if PACK:
        A(f"""
        s_cmp_eq_u32 s27, 0
        s_cselect_b32 s41, {513*8192}, s41
        """)
    else:
        A(f"""
        s_cmp_eq_u32 s27, {cfg.get('extra_cp', 0)}
        s_cselect_b32 s44, {256*16384}, s44
        s_cselect_b32 s45, {512*8192}, s45
        s_cselect_b32 s46, 3, s46
        """)
    def xloads(so):
        out = []
        out.append(f"s_add_u32 s47, {so}, 4096")
        out.append(f"s_add_u32 s48, {so}, 8192")
        out.append(f"s_add_u32 s49, {so}, 12288")
        for qb in range(2):
            for g in range(2):
                sreg = [so, "s47", "s48", "s49"][g * 2 + qb]
                for part in range(2):
                    r = XI + ((qb * 2 + g) * 2 + part) * 4
                    out.append(f"buffer_load_dwordx4 {v(r,4)}, v{vL64}, s[8:11], {sreg} offen offset:{16*part}{LD}")
        return out
    def wloads(so):
        out = [f"s_add_u32 s50, {so}, 4096"]
        for blk in range(2):
            for g in range(4):
                out.append(f"buffer_load_dwordx4 {v(W+16*blk+4*g,4)}, v{vL16}, s[12:15], {so if blk == 0 else 's50'} offen offset:{1024*g}{LD}")
        return out
    if not KA:
        for t in xloads("s40"): A(t)
        for t in wloads("s41"): A(t)
    for i in range(0 if KA else 6):
        A(f"s_add_u32 s28, s25, {8*i}")
        if i == 5:
            A(f"s_min_u32 s28, s28, {NFR-1}")
        A(f"s_lshl_b32 s28, s28, 10")
        A(f"s_mov_b32 m0, s28")
        A(f"buffer_load_dwordx4 v{vL16}, s[16:19], s28 offen lds")
    A(f"s_mov_b32 s28, {NFR*1024}\ns_add_u32 s29, s28, 4096")
    for i in range(8):
        A(f"buffer_load_dwordx4 {v(T0+4*i,4)}, v{vL16}, s[16:19], {'s28' if i < 4 else 's29'} offen offset:{1024*(i&3)}")
    A(f"v_mov_b32 v{vLds}, v{vL16}")
    A("s_mov_b32 s34, 0xffff0000")
    CONT = cfg.get('cont')
    AT, BT = 43008, 43008 + 8 * 4352
    vAw, vBw, vAr, vBr = 248, 249, 250, 251
    if KA and CONT:
        A(f"""
        s_mul_i32 s28, s25, 4352
        s_add_u32 s28, s28, {AT}
        s_mul_i32 s29, s25, 8448
        s_add_u32 s29, s29, {BT}
        v_lshrrev_b32 v5, 2, v1
        v_lshlrev_b32 v5, 4, v5              ; (l >> 2) * 16
        v_and_b32 v6, 1, v1                  ; part
        v_bfe_u32 v7, v1, 1, 1               ; column
        v_mul_u32_u24 v{vAw}, {2048 + 64}, v6
        v_add_u32 v{vAw}, s28, v{vAw}
        v_mul_u32_u24 v{vBw}, {4096 + 64}, v6
        v_add_u32 v{vBw}, s29, v{vBw}
        v_add_u32 v{vBw}, 128, v{vBw}
        v_cmp_eq_u32 vcc, 0, v7
        v_cndmask_b32 v{vAw}, v{vBw}, v{vAw}, vcc
        v_add_u32 v{vAw}, v5, v{vAw}
        v_lshlrev_b32 v5, 11, v7
        v_add_u32 v{vBw}, v5, v{vAw}
        v_add_u32 v{vAr}, s28, v{vL16}
        s_add_u32 s29, s29, 128
        v_add_u32 v{vBr}, s29, v{vL16}
        """)
        KA()
        stamp(A, cfg, 5)
        A("s_and_b32 s47, s40, 0xffffc000")
        for k in range(4):
            if k: A("s_add_u32 s47, s47, 4096")
            for q in range(4):
                A(f"buffer_load_dwordx4 {v(DA+16*k+4*q,4)}, v{vL16}, s[8:11], s47 offen offset:{1024*q}{LD}")
        for t in wloads("s41"): A(t)
        def areads(j, half):
            g, qb = j >> 1, j & 1
            return [f"ds_read_b128 {v(XI + ((qb*2+g)*2 + part)*4, 4)}, v{vAr} offset:{(2048+64)*part + 1024*(j - 2*half)}" for part in range(2)]
        for half in range(2):
            for q in range(8):
                A(f"s_waitcnt vmcnt({8 + 15 - (8*half + q)})")
                A(f"ds_write_b128 v{vBw if half else vAw}, {v(DA+4*(8*half+q),4)} offset:{256*q}")
            A("s_waitcnt lgkmcnt(0)")
            for j in (2*half, 2*half + 1):
                for t in areads(j, half): A(t)
            A("s_waitcnt lgkmcnt(0)")
    elif KA:
        KA()
        stamp(A, cfg, 5)
        for t in xloads("s40"): A(t)
        for t in wloads("s41"): A(t)
        A("s_waitcnt vmcnt(8)")
    else:
        A("s_waitcnt vmcnt(0)")
        A("s_barrier")
    stamp(A, cfg, 0); stamp(A, cfg, 2, True)

    def creads(setn, base, order=(R_, I_, N_)):
        return [f"ds_read_b128 {v(CB[setn]+4*k,4)}, v{vLds} offset:{(base+order[k])*1024}" for k in range(3)]
    CONJ = (R_, N_, I_)
    def mf(D, X, setn, first, constA):
        cr, ci, cn = (v(CB[setn] + 4 * k, 4) for k in range(3))
        Dr, Di = v(D, 16), v(D + 16, 16)
        xr, xi = v(X[0], 4), v(X[1], 4)
        def one(d, x, c, zero):
            a, b = (c, x) if constA else (x, c)
            return f"v_mfma_f32_32x32x16_bf16 {d}, {a}, {b}, {'0' if zero else d}"
        return [one(Dr, xr, cr, first), one(Di, xr, ci, first), one(Dr, xi, cn, False), one(Di, xi, cr, False)]
    def make(special):
        groups = []
        def add(reads_base, order, D, X, first, constA, deps=(), **kw):
            n = len(groups) & 1
            groups.append(dict(reads=creads(n, reads_base, order), mf=mf(D, X, n, first, constA), deps=list(deps), **kw))
        Dq = [DA, DB]
        xin = lambda g, qb: (XI + ((qb * 2 + g) * 2) * 4, XI + ((qb * 2 + g) * 2 + 1) * 4)
        Tp = lambda qb, b: (PA + ((qb * 2 + b) * 2) * 4, PA + ((qb * 2 + b) * 2 + 1) * 4)
        Pp = lambda blk, b: ((PB if blk == 0 else PA) + (b * 2) * 4, (PB if blk == 0 else PA) + (b * 2 + 1) * 4)
        Up = lambda qb, b: ((PA + 16 if qb == 0 else PB) + (b * 2) * 4, (PA + 16 if qb == 0 else PB) + (b * 2 + 1) * 4)
        for qb in range(2):
            for g in range(2):
                add(iB1(g, qb), (R_, I_, N_), Dq[qb], xin(g, qb), g == 0, False)
        def breads():
            out = []
            for j in range(4):
                g, qb = j >> 1, j & 1
                for part in range(2):
                    out.append(f"ds_read_b128 {v(XI + ((qb*2+g)*2 + part)*4, 4)}, v{vBr} offset:{(4096+64)*part + 1024*j}")
            return out
        if special:
            q = ["s_mov_b32 s47, %d" % (512*8192), "s_add_u32 s48, s47, 4096"]
            for blk in range(2):
                for g in range(4):
                    q.append(f"buffer_load_dwordx4 {v(XI+16*blk+4*g,4)}, v{vL16}, s[12:15], {'s47' if blk == 0 else 's48'} offen offset:{1024*g}{LD}")
            groups[3]['post'] = q
        elif CONT:
            groups[3]['post'] = (["s_cmp_eq_u32 s46, s55", f"s_cbranch_scc0 {L}_xg"] + breads() + [f"s_branch {L}_xd", f"{L}_xg:",
                                  "s_cmp_lt_u32 s46, 2", f"s_cbranch_scc1 {L}_xd"] + xloads("s42") + [f"{L}_xd:"])
        else:
            groups[3]['post'] = xloads("s42")
        for blk in range(2):
            for qb in range(2):
                for b in range(2):
                    deps = []
                    if blk == 0 and b == 0: deps = [f"TW{qb}"]
                    add(iF64(blk, qb, b), (R_, I_, N_), Dq[blk], Tp(qb, b), qb == 0 and b == 0, True, deps)
        for qb in range(2):
            for blk in range(2):
                for b in range(2):
                    deps = []
                    if qb == 0 and b == 0: deps = [f"WM{blk}"]
                    add(iF64(qb, blk, b), CONJ, Dq[qb], Pp(blk, b), blk == 0 and b == 0, False, deps)
        groups[14]['post'] = wloads("s43")
        if special:
            groups[14]['post'] += breads()
        elif CONT:
            groups[14]['post'] = ["s_cmp_lt_u32 s46, 2", f"s_cbranch_scc1 {L}_wd"] + wloads("s43") + [f"{L}_wd:"]
        for qb in range(2):
            for b in range(2):
                deps = [f"TI{qb}"] if b == 0 else []
                if qb == 0:
                    add(iB1(b, 0), CONJ, Dq[0], Up(0, b), b == 0, True, deps)
                else:
                    add(iA4(b), (R_, I_, N_), Dq[1], Up(1, b), b == 0, True, deps)
        blocks = []
        def tw_block(nm, D, dst, after, conj):
            ins = []
            Dr, Di = D, D + 16
            for e in range(16):
                t1, t2 = TMP + 2 * (e & 1), TMP + 2 * (e & 1) + 1
                br, bi = T0 + e, T0 + 16 + e
                ins.append(f"v_mul_f32 v{t1}, v{Di+e}, v{bi}")
                ins.append(f"v_mul_f32 v{t2}, v{Di+e}, v{br}")
                if not conj:
                    ins.append(f"v_fma_f32 v{Di+e}, v{Dr+e}, v{bi}, v{t2}")
                    ins.append(f"v_fma_f32 v{Dr+e}, v{Dr+e}, v{br}, -v{t1}")
                else:
                    ins.append(f"v_fma_f32 v{Di+e}, -v{Dr+e}, v{bi}, v{t2}")
                    ins.append(f"v_fma_f32 v{Dr+e}, v{Dr+e}, v{br}, v{t1}")
                if e & 1:
                    b, q = e >> 3, (e & 7) >> 1
                    ins.append(f"v_cvt_pk_bf16_f32 v{dst(b)[0]+q}, v{Dr+e-1}, v{Dr+e}")
                    ins.append(f"v_cvt_pk_bf16_f32 v{dst(b)[1]+q}, v{Di+e-1}, v{Di+e}")
            blocks.append(dict(name=nm, ins=ins, after=after, delay=2))
        def wm_block(nm, D, blk, after):
            ins = []
            if blk == 0:
                ins.append("s_waitcnt vmcnt(0)" if CONT else "s_waitcnt vmcnt(8)")
            Dr, Di = D, D + 16
            for e in range(16):
                o = 4 * (e & 1)
                t1, t2, wr, wi = TMP + o, TMP + o + 1, TMP + o + 2, TMP + o + 3
                w = W + 16 * blk + e
                ins.append(f"v_lshlrev_b32 v{wr}, 16, v{w}")
                ins.append(f"v_and_b32 v{wi}, s34, v{w}")
                ins.append(f"v_mul_f32 v{t1}, v{Di+e}, v{wi}")
                ins.append(f"v_mul_f32 v{t2}, v{Di+e}, v{wr}")
                ins.append(f"v_fma_f32 v{Di+e}, v{Dr+e}, v{wi}, v{t2}")
                ins.append(f"v_fma_f32 v{Dr+e}, v{Dr+e}, v{wr}, -v{t1}")
                if e & 1:
                    b, q = e >> 3, (e & 7) >> 1
                    ins.append(f"v_cvt_pk_bf16_f32 v{Pp(blk,b)[0]+q}, v{Dr+e-1}, v{Dr+e}")
                    ins.append(f"v_cvt_pk_bf16_f32 v{Pp(blk,b)[1]+q}, v{Di+e-1}, v{Di+e}")
            blocks.append(dict(name=nm, ins=ins, after=after, delay=2))
        def out_block(nm, D, qb, after):
            ins = []
            base = PA if qb == 0 else PA + 16
            for part in range(2):
                for g in range(2):
                    r = base + (part * 2 + g) * 4
                    for q in range(4):
                        s_ = D + 16 * part + 8 * g + 2 * q
                        ins.append(f"v_cvt_pk_bf16_f32 v{r+q}, v{s_}, v{s_+1}")
                    so = ["s51", "s52", "s53", "s54"][g * 2 + qb]
                    ins.append(f"buffer_store_dwordx4 {v(r,4)}, v{vLo}, s[20:23], {so} offen offset:{16*part}{ST}")
            blocks.append(dict(name=nm, ins=ins, after=after, delay=2))
        tw_block("TW0", DA, lambda b: Tp(0, b), 1, False)
        tw_block("TW1", DB, lambda b: Tp(1, b), 3, False)
        def zw_block(nm, D, blk, after):
            ins = []
            for e in range(16):
                u = ((e & 3) >> 1) + 4 * (e >> 2) + 16 * blk
                ins.append(f"ds_write2st64_b32 v{vZ + (e & 1)}, v{D+e}, v{D+16+e} offset0:{u} offset1:{u+IMO}")
            if blk == 0:
                ins.append(f"ds_write2st64_b32 v{vZ}, v{D}, v{D+16} offset0:32 offset1:{32+IMO}")
            blocks.append(dict(name=nm, ins=ins, after=after, delay=2))
        def wms_block(nm, D, blk, after):
            ins = []
            Dr, Di = D, D + 16
            RB = PA + 16
            def rd(c):
                out = []
                for e in range(4*c, 4*c + 4):
                    j = 3 - (e & 3)
                    u = (j >> 1) + 4 * (3 - (e >> 2)) + 16 * (1 - blk)
                    out.append(f"ds_read2st64_b32 {v(RB + 8*(c&1) + 2*(e&3), 2)}, v{vZ + 2 + (j & 1)} offset0:{u} offset1:{u+IMO}")
                return out
            if blk == 0:
                ins.append("s_waitcnt vmcnt(0)")
            ins += rd(0)
            for c in range(4):
                ins.append("s_waitcnt lgkmcnt(0)")
                if c < 3: ins += rd(c + 1)
                for e in range(4*c, 4*c + 4):
                    t1, t2, pr, pi, qr, qi = (TMP + k for k in range(6))
                    rr = RB + 8*(c&1) + 2*(e&3); ri = rr + 1
                    w = W + 16 * blk + e; q = XI + 16 * blk + e
                    ins += [f"v_lshlrev_b32 v{qr}, 16, v{q}", f"v_and_b32 v{qi}, s34, v{q}",
                            f"v_lshlrev_b32 v{pr}, 16, v{w}", f"v_and_b32 v{pi}, s34, v{w}",
                            f"v_mul_f32 v{t1}, v{rr}, v{qr}", f"v_mul_f32 v{t2}, v{rr}, v{qi}",
                            f"v_fma_f32 v{t1}, v{ri}, v{qi}, v{t1}", f"v_fma_f32 v{t2}, -v{ri}, v{qr}, v{t2}",
                            f"v_fma_f32 v{t1}, -v{Di+e}, v{pi}, v{t1}", f"v_fma_f32 v{t2}, v{Dr+e}, v{pi}, v{t2}",
                            f"v_fma_f32 v{Dr+e}, v{Dr+e}, v{pr}, v{t1}", f"v_fma_f32 v{Di+e}, v{Di+e}, v{pr}, v{t2}"]
                    if e & 1:
                        b, qq = e >> 3, (e & 7) >> 1
                        ins.append(f"v_cvt_pk_bf16_f32 v{Pp(blk,b)[0]+qq}, v{Dr+e-1}, v{Dr+e}")
                        ins.append(f"v_cvt_pk_bf16_f32 v{Pp(blk,b)[1]+qq}, v{Di+e-1}, v{Di+e}")
            blocks.append(dict(name=nm, ins=ins, after=after, delay=2))
        if special:
            zw_block("ZW0", DA, 0, 7)
            zw_block("ZW1", DB, 1, 11)
            wms_block("WM0", DA, 0, 11)
            wms_block("WM1", DB, 1, 11)
        else:
            wm_block("WM0", DA, 0, 7)
            wm_block("WM1", DB, 1, 11)
        tw_block("TI0", DA, lambda b: Up(0, b), 15, True)
        tw_block("TI1", DB, lambda b: Up(1, b), 19, True)
        out_block("OUT0", DA, 0, 21)
        out_block("OUT1", DB, 1, 23)

        return groups, blocks
    ZP, IMO, vZ = BT + 8 * 8448, 35, 252
    if Y32:
        A(f"v_lshlrev_b32 v{vLo}, 5, v1")
    A("s_mov_b32 s55, s46")
    def head(groups):
        if Y32:
            A(f"""
            s_and_b32 s51, s40, 32
            s_lshl_b32 s51, s51, 8
            s_and_b32 s52, s40, 0xffffffc0
            s_add_u32 s51, s51, s52
            s_add_u32 s52, s51, 2048
            s_add_u32 s53, s51, 4096
            s_add_u32 s54, s51, 6144
            """)
        else:
            A(f"""
            s_mov_b32 s51, s40
            s_add_u32 s52, s40, 4096
            s_add_u32 s53, s40, 8192
            s_add_u32 s54, s40, 12288
            """)
        for r in groups[0]['reads']: A(r)
        A("s_waitcnt vmcnt(8)")
    def nextcol():
        A(f"""
        s_mov_b32 s40, s42
        s_mov_b32 s41, s43
        s_mov_b32 s42, s44
        s_mov_b32 s43, s45
        s_sub_u32 s46, s46, 1
        """)
    if PACK:
        assert CONT
        A(f"""
        s_cmp_eq_u32 s27, 0
        s_cbranch_scc0 {L}_col
        v_and_b32 v5, 31, v1
        v_lshrrev_b32 v6, 5, v1
        v_lshlrev_b32 v6, 7, v6
        v_add_u32 v5, v5, v6                 ; ml
        v_lshlrev_b32 v5, 2, v5
        v_add_u32 v{vZ}, {ZP}, v5
        v_add_u32 v{vZ+1}, 128, v{vZ}
        v_sub_u32 v{vZ+2}, {ZP + 640}, v5
        v_add_u32 v{vZ+3}, 128, v{vZ+2}
        """)
        groups, blocks = make(True)
        head(groups)
        schedule(A, groups, blocks, per_gap)
        nextcol()
    A.label(f"{L}_col")
    groups, blocks = make(False)
    head(groups)
    schedule(A, groups, blocks, per_gap)
    nextcol()
    A(f"""
    s_cmp_lg_u32 s46, 0
    s_cbranch_scc1 {L}_col
    """)
    stamp(A, cfg, 1); stamp(A, cfg, 3, True)
    A("s_endpgm")
```

```python
from asmlib import *
from layout import *
from k1 import srd_from, srd_table

STAGE = 16384
NS = 8
NSTEP = 28
TABL = NS * STAGE
STG = TABL + 16384
LDS_K3 = STG + 16384
SPIN = 400000

def f3_consumer(A, cfg):
    Y32 = cfg.get('y32')
    D1 = [0, 32]
    TW, YP, RD = 112, 144, 160
    TAB = 0
    SP = RD
    T = [176, 177, 178, 179, 180, 181]
    vny, vw_, vr_, vt_, vy, vz = 182, 183, 184, 185, 186, 187
    lane = 72
    def part0():
        srd_from(A, 44, 8, 9, Y1_OFF, Y1_SZ)
        A(f"""
        s_lshl_b32 s60, s25, 6
        v_add_u32 v{T[0]}, s60, v{lane}            ; t = w*64 + lane
        v_lshrrev_b32 v{vy}, {1 if Y32 else 2}, v{T[0]}
        v_lshlrev_b32 v{vy}, {13 if Y32 else 14}, v{vy}
        v_and_b32 v{T[1]}, {1 if Y32 else 3}, v{T[0]}
        v_lshlrev_b32 v{T[1]}, 4, v{T[1]}
        v_add_u32 v{vy}, v{vy}, v{T[1]}            ; Y voffset
        s_lshl_b32 s60, s20, {5 if Y32 else 6}               ; rho*64
        s_add_u32 s61, s60, {1*MB}
        s_add_u32 s62, s60, {2*MB}
        s_add_u32 s63, s60, {3*MB}
        s_add_u32 s64, s60, {16 if cfg.get('pack') else 4*MB}
        s_lshl_b32 s65, s25, 2
        s_add_u32 s64, s64, s65
        v_mov_b32 v{vz}, 0
        """)
        for i in range(4):
            A(f"buffer_load_dwordx4 {v(YP+4*i,4)}, v{vy}, s[44:47], s{60+i} offen")
        A(f"buffer_load_dword v{vny}, v{vz}, s[44:47], s64 offen")
        A(f"""
        v_and_b32 v{vw_}, 1, v{T[0]}
        v_lshlrev_b32 v{vw_}, 13, v{vw_}
        v_lshrrev_b32 v{T[1]}, 1, v{T[0]}
        v_lshlrev_b32 v{T[1]}, 4, v{T[1]}
        v_add_u32 v{vw_}, v{vw_}, v{T[1]}
        v_add_u32 v{vw_}, {STG}, v{vw_}
        v_and_b32 v{vr_}, 31, v{lane}
        v_lshlrev_b32 v{vr_}, 4, v{vr_}
        v_lshrrev_b32 v{T[1]}, 5, v{lane}
        v_lshlrev_b32 v{T[1]}, 11, v{T[1]}
        v_add_u32 v{vr_}, v{vr_}, v{T[1]}
        s_add_u32 s65, s65, {STG}
        v_add_u32 v{vr_}, s65, v{vr_}
        v_lshlrev_b32 v{vt_}, 4, v{lane}
        v_add_u32 v{vt_}, {TABL}, v{vt_}
        s_mov_b32 s67, 0x05040100
        s_mov_b32 s68, 0x07060302
        s_mov_b32 s69, 0xffff0000
        """)
    def part1():
        A("s_waitcnt vmcnt(8)")
        for i in range(4):
            A(f"ds_write_b128 v{vw_}, {v(YP+4*i,4)} offset:{2048*i}")
        A("s_waitcnt lgkmcnt(0)")
    def part2(after_twiddle):
        for t in range(2):
            for q in range(4):
                o0 = 2 * (8 * t + q)
                A(f"ds_read2st64_b32 {v(RD+8*t+2*q,2)}, v{vr_} offset0:{o0} offset1:{o0+32}")
        order = [0, 1, 2, 3, 8, 9, 10, 11, 12, 13, 14, 15, 4, 5, 6, 7]
        for i in order:
            dst = a(TAB+4*i,4) if i < 8 else v(TW+4*(i-8),4)
            A(f"ds_read_b128 {dst}, v{vt_} offset:{1024*i}")
        AF = YP
        A("s_waitcnt lgkmcnt(12)")
        for t in range(2):
            for q in range(4):
                a_, b_ = RD + 8*t + 2*q, RD + 8*t + 2*q + 1
                A(f"v_perm_b32 v{AF+4*t+q}, v{b_}, v{a_}, s67")
                A(f"v_perm_b32 v{AF+8+4*t+q}, v{b_}, v{a_}, s68")
        for t in range(2):
            for r in range(2):
                for part in range(2):
                    d = v(D1[r] + 16*part, 16)
                    A(f"v_mfma_f32_32x32x16_bf16 {d}, {v(AF+8*r+4*t,4)}, {a(TAB+8*part+4*t,4)}, {'0' if t == 0 else d}")
        A(f"""
        v_and_b32 v{vw_}, 31, v{lane}
        v_lshlrev_b32 v{vw_}, 6, v{vw_}
        v_lshrrev_b32 v{vr_}, 5, v{lane}
        v_lshlrev_b32 v{vr_}, 4, v{vr_}
        v_add_u32 v{vw_}, v{vw_}, v{vr_}
        s_lshl_b32 s60, s20, 3
        s_lshl_b32 s61, s25, 1
        s_add_u32 s60, s60, s61
        s_lshl_b32 s60, s60, 11
        s_add_u32 s61, s60, 2048
        v_lshlrev_b32 v{T[4]}, 16, v{vny}
        v_and_b32 v{T[5]}, s69, v{vny}
        v_mul_f32 v{T[4]}, 0x35000000, v{T[4]}
        v_mul_f32 v{T[5]}, 0x35000000, v{T[5]}
        s_waitcnt lgkmcnt(0)
        """)
        PK = [RD, YP]
        for r in range(2):
            Dr, Di = D1[r], D1[r] + 16
            for e in range(16):
                t1, t2 = T[(e & 1) * 2], T[(e & 1) * 2 + 1]
                A(f"v_mul_f32 v{t1}, v{Di+e}, v{TW+16+e}")
                A(f"v_mul_f32 v{t2}, v{Di+e}, v{TW+e}")
                A(f"v_fma_f32 v{Di+e}, v{Dr+e}, v{TW+16+e}, v{t2}")
                A(f"v_fma_f32 v{Dr+e}, v{Dr+e}, v{TW+e}, -v{t1}")
                if e & 1:
                    b, q = e >> 3, (e & 7) >> 1
                    A(f"v_cvt_pk_bf16_f32 v{PK[r]+4*b+q}, v{Dr+e-1}, v{Dr+e}")
                    A(f"v_cvt_pk_bf16_f32 v{PK[r]+8+4*b+q}, v{Di+e-1}, v{Di+e}")
            if r == 0:
                seq = [(pin, b) for pin in range(2) for b in range(2)]
                for k, (pin, b) in enumerate(seq):
                    d = v(D1[0], 16)
                    A(f"v_mfma_f32_32x32x16_bf16 {d}, {v(PK[0]+8*pin+4*b,4)}, {a(TAB+16+8*pin+4*b,4)}, {'0' if k == 0 else d}")
        after_twiddle()
        for k, (pin, b) in enumerate(seq):
            d = v(D1[1], 16)
            A(f"v_mfma_f32_32x32x16_bf16 {d}, {v(PK[1]+8*pin+4*b,4)}, {a(TAB+16+8*pin+4*b,4)}, {'0' if k == 0 else d}")
        for r in range(2):
            for e in range(16):
                A(f"v_{'add' if e % 2 == 0 else 'sub'}_f32 v{D1[r]+e}, v{D1[r]+e}, v{T[4+r]}")
            for t in range(2):
                base = SP + 8*r + 4*t
                for h in range(2):
                    for i in range(2):
                        e = 4 * (2*t + h) + 2*i
                        A(f"v_cvt_pk_bf16_f32 v{base+2*h+i}, v{D1[r]+e}, v{D1[r]+e+1}")
                A(f"v_permlane32_swap_b32 v{base}, v{base+2}")
                A(f"v_permlane32_swap_b32 v{base+1}, v{base+3}")
                A(f"buffer_store_dwordx4 {v(base,4)}, v{vw_}, s[16:19], s{60+r} offen offset:{32*t} sc1")
    return part0, part1, part2


def gen_gemm4(A, name, cfg):
    L = name
    ST = cfg.get('st', '')
    WIMG = cfg.get('wimg', False)
    A(f"""
    s_load_dwordx2 s[6:7], s[0:1], {ARG_W2}
    s_load_dwordx2 s[8:9], s[0:1], {ARG_WS}
    s_load_dwordx2 s[4:5], s[0:1], {ARG_X}
    s_load_dwordx4 s[52:55], s[0:1], {ARG_OUT}
    v_readfirstlane_b32 s25, v0
    s_lshr_b32 s25, s25, 6
    v_and_b32 v1, 63, v0             ; lane
    s_cmp_ge_u32 s25, 4
    s_cbranch_scc1 {L}_loader
    """)
    WA, WB = 0, 32
    wa = 64
    lane, t0, t1, t2, t3 = 72, 73, 74, 75, 76
    ex, vx_, vs_ = 77, 78, 79
    XR = 80
    xb = 188
    wa2 = 176
    XP, SP = 144, 160
    p0, p1, p2 = f3_consumer(A, cfg)
    HT = 112 * 1024
    def xloads(slot):
        r = []
        for h in range(2):
            for tm in range(2):
                r.append(f"buffer_load_dwordx4 {v(XR+16*slot+8*h+4*tm,4)}, v{xb if tm else ex}, s[56:59], s33 offen offset:{1024*h}")
        r.append(f"s_add_u32 s33, s33, {0 if cfg.get('fixx') else 2048}")
        return r
    A(f"""
    v_mov_b32 v{lane}, v1
    v_lshlrev_b32 v{ex}, 4, v1
    v_add_u32 v{xb}, {HT}, v{ex}
    s_lshl_b32 s33, s22, 3
    s_lshl_b32 s28, s25, 1
    s_add_u32 s33, s33, s28
    s_mul_i32 s33, s33, 112
    s_mul_i32 s28, s24, 56
    s_add_u32 s33, s33, s28
    s_lshl_b32 s33, s33, 10
    s_waitcnt lgkmcnt(0)
    """)
    p0()
    srd_from(A, 56, 8, 9, H_OFF, H_SZ)
    for x in xloads(0) + xloads(1): A(x)
    A(f"""
    v_and_b32 v{t0}, 15, v{lane}     ; i = l&15
    v_lshrrev_b32 v{t1}, 4, v{lane}  ; G
    v_lshrrev_b32 v{t2}, 2, v{t0}    ; r'
    v_and_b32 v{t3}, 1, v{t1}
    v_lshlrev_b32 v{t3}, 2, v{t3}
    v_or_b32 v{t3}, v{t3}, v{t2}     ; f(k)
    v_lshlrev_b32 v{t1}, 3, v{t1}    ; 8G
    v_add_u32 v{t1}, v{t1}, v{t2}    ; 8G + r'
    v_lshlrev_b32 v{t1}, 8, v{t1}    ; *256
    v_and_b32 v{t0}, 3, v{t0}        ; cc
    v_lshlrev_b32 v{t0}, 3, v{t0}
    v_add_u32 v{t1}, v{t1}, v{t0}
    """)
    for tf in range(8):
        A(f"""
        v_xor_b32 v{t0}, {tf}, v{t3}
        v_lshlrev_b32 v{t0}, 5, v{t0}
        v_add_u32 v{wa+tf}, v{t0}, v{t1}
        """)
    for i in range(32, 64):
        A(f"v_accvgpr_write_b32 a{i}, 0")
    A(f"""
    v_and_b32 v{t1}, 15, v{lane}         ; i
    v_lshrrev_b32 v{t2}, 4, v{lane}      ; G
    v_and_b32 v{t3}, 1, v{t2}
    v_lshlrev_b32 v{t3}, 1, v{t3}
    v_lshrrev_b32 v{t2}, 1, v{t2}
    v_or_b32 v{t2}, v{t2}, v{t3}         ; cG
    v_lshlrev_b32 v{t2}, 4, v{t2}
    v_lshlrev_b32 v{vs_}, 11, v{t1}
    v_add_u32 v{vs_}, v{vs_}, v{t2}
    v_bfe_u32 v{t3}, v{t1}, 2, 1
    v_lshlrev_b32 v{t3}, 3, v{t3}
    v_and_b32 v{vx_}, 3, v{t1}
    v_add_u32 v{vx_}, v{vx_}, v{t3}
    v_lshlrev_b32 v{vx_}, 6, v{vx_}
    v_lshrrev_b32 v{t3}, 3, v{t1}
    v_add_u32 v{vx_}, v{vx_}, v{t3}
    v_lshlrev_b32 v{vx_}, 11, v{vx_}
    v_add_u32 v{vx_}, v{vx_}, v{t2}
    s_lshl_b32 s28, s22, 4
    s_lshl_b32 s29, s25, 2
    s_add_u32 s28, s28, s29
    s_lshl_b32 s29, s24, 1
    s_add_u32 s28, s28, s29
    s_lshr_b32 s29, s28, 7               ; gamma
    s_lshl_b32 s29, s29, 4
    s_lshr_b32 s30, s28, 5
    s_and_b32 s30, s30, 1
    s_lshl_b32 s30, s30, 2
    s_add_u32 s29, s29, s30
    s_lshl_b32 s29, s29, 6
    s_lshr_b32 s30, s28, 6
    s_and_b32 s30, s30, 1
    s_lshl_b32 s30, s30, 5
    s_add_u32 s29, s29, s30
    s_and_b32 s30, s28, 31
    s_add_u32 s29, s29, s30              ; nS
    s_lshl_b32 s29, s29, 11
    s_lshl_b32 s30, s23, 8               ; cb2*256
    s_add_u32 s40, s29, s30
    s_lshl_b32 s28, s28, 14
    s_add_u32 s42, s28, s30              ; s soffset
    s_lshl_b32 s26, s22, 3
    s_add_u32 s26, s26, s23
    s_lshl_b32 s26, s26, 1
    s_add_u32 s26, s26, s24
    s_xor_b32 s27, s26, 1
    s_lshl_b32 s26, s26, 14
    s_lshl_b32 s27, s27, 14
    s_lshl_b32 s28, s25, 12
    s_add_u32 s26, s26, s28
    s_add_u32 s27, s27, s28
    """)
    srd_from(A, 12, 4, 5, 0, 4 * MB)
    srd_from(A, 16, 8, 9, S_OFF, S_SZ)
    srd_from(A, 36, 52, 53, 0, 4 * MB)
    srd_from(A, 48, 8, 9, E_OFF, E_SZ)
    p1()
    A("s_barrier")
    def after_twiddle():
        for x in xloads(2): A(x)
    p2(after_twiddle)
    for i in range(32):
        A(f"v_accvgpr_write_b32 a{i}, 0")
    for tf in range(8):
        A(f"v_add_u32 v{wa2+tf}, 65536, v{wa+tf}")

    def reads(wset, stage, h):
        r = []
        base = wa if stage < 4 else wa2
        for tf in range(8):
            for u in range(2):
                r.append(f"ds_read_b64_tr_b16 {v(wset+4*tf+2*u,2)}, v{base+tf} offset:{(stage&3)*STAGE+h*8192+u*1024}")
        return r

    def unit(slot, h, wset, rd, extra=(), vm=None, bar=False, postbar=None):
        mf = []
        for tf in range(8):
            order = (0, 1) if tf % 2 == 0 else (1, 0)
            for tm in order:
                d = a(4*(tf*2+tm), 4)
                mf.append(f"v_mfma_f32_16x16x32_bf16 {d}, {v(wset+4*tf,4)}, {v(XR+16*slot+8*h+4*tm,4)}, {d}")
        rd = list(rd); extra = list(extra)
        hasrd = bool(rd)
        for i, m in enumerate(mf):
            if i % 2 == 0:
                n = 14 if hasrd else 14 - i
                A(f"s_waitcnt vmcnt({vm}) lgkmcnt({n})" if (i == 0 and vm is not None) else f"s_waitcnt lgkmcnt({n})")
            A(m)
            if i == 0 and bar:
                A("s_barrier")
                if postbar: postbar()
            if rd: A(rd.pop(0))
            if extra and i >= 2 and i % 2 == 1: A(extra.pop(0))
        for e in extra: A(e)

    early = []
    for fp in range(4):
        early.append(f"buffer_load_dwordx4 {v(SP+4*fp,4)}, v{vs_}, s[16:19], s42 offen offset:{64*fp} sc1")
    for fp in range(4):
        early.append(f"buffer_load_dwordx4 {v(XP+4*fp,4)}, v{vx_}, s[12:15], s40 offen offset:{64*fp}")

    A("s_barrier")
    stamp(A, cfg, 0); stamp(A, cfg, 2, True)
    for r in reads(WA, 0, 0): A(r)
    def cstep(st, vm, xl=True, extraA=(), postbar=None, last=False):
        j = st & 3
        exA = (xloads((j + 3) % 4) if xl else []) + list(extraA)
        unit(j, 0, WA, reads(WB, st, 1), extra=exA, vm=vm)
        unit(j, 1, WB, [] if last else reads(WA, (st + 1) % 8, 0), bar=(st & 1 == 1 and not last), postbar=postbar)
    def signal():
        A(f"""
        s_cmp_lg_u32 s25, 0
        s_cbranch_scc1 {L}_nosig
        s_lshr_b32 s60, s20, 4
        s_lshl_b32 s60, s60, 2
        v_mov_b32 v{t0}, s60
        v_mov_b32 v{t1}, 1
        s_mov_b64 exec, 1
        global_atomic_add v{t0}, v{t1}, s[54:55] sc1
        s_mov_b64 exec, -1
        {L}_nosig:
        """)
    cstep(0, 12); cstep(1, 12); cstep(2, 12); cstep(3, 8, postbar=signal)
    A("s_mov_b32 s30, 0")
    A.label(f"{L}_cloop")
    for st in (4, 5, 6, 7, 0, 1, 2, 3): cstep(st, 8)
    A(f"""
    s_add_u32 s30, s30, 1
    s_cmp_lt_u32 s30, 2
    s_cbranch_scc1 {L}_cloop
    """)
    for st in (4, 5, 6, 7): cstep(st, 8)
    cstep(0, 8, extraA=early); cstep(1, 16, xl=False); cstep(2, 12, xl=False); cstep(3, 8, xl=False, last=True)
    stamp(A, cfg, 1); stamp(A, cfg, 3, True)
    RP = 32
    SND = 0
    TMP = 80
    OW = 80
    def send(tm):
        for tf in range(8):
            for r in range(4):
                A(f"v_accvgpr_read_b32 v{TMP+4*tf+r}, a{4*(tf*2+tm)+r}")
        for k in range(8):
            for i in range(2):
                A(f"v_cvt_pk_bf16_f32 v{SND+2*k+i}, v{TMP+4*k+2*i}, v{TMP+4*k+2*i+1}")
        for k in range(16):
            A(f"v_min_u32 v{SND+k}, s34, v{SND+k}")
        for i in range(4):
            A(f"buffer_store_dwordx4 {v(SND+4*i,4)}, v{ex}, s[48:51], s26 offen offset:{1024*i} sc1")
    def own(tm):
        for tf in range(8):
            for r in range(4):
                A(f"v_accvgpr_read_b32 v{OW+4*tf+r}, a{4*(tf*2+tm)+r}")
    def fetch():
        for i in range(4):
            A(f"buffer_load_dwordx4 {v(RP+4*i,4)}, v{ex}, s[48:51], s27 offen offset:{1024*i} sc1")
    A(f"""
    s_mov_b32 s34, 0xfffffffe
    s_mov_b32 s35, 0xbfb8aa3b
    s_cmp_eq_u32 s24, 0
    s_cbranch_scc1 {L}_kh0
    """)
    send(0); fetch(); own(1)
    A(f"s_branch {L}_sent")
    A.label(f"{L}_kh0")
    send(1); fetch(); own(0)
    A.label(f"{L}_sent")
    A("s_mov_b32 s70, 0")
    A.label(f"{L}_chk")
    A("s_waitcnt vmcnt(0)")
    A(f"v_max3_u32 v{t0}, v{RP}, v{RP+1}, v{RP+2}")
    for i in range(3, 15, 2):
        A(f"v_max3_u32 v{t0}, v{t0}, v{RP+i}, v{RP+i+1}")
    A(f"""
    v_max_u32 v{t0}, v{t0}, v{RP+15}
    v_cmp_eq_u32 vcc, -1, v{t0}
    s_nop 4
    s_cbranch_vccz {L}_got
    s_add_u32 s70, s70, 1
    s_cmp_ge_u32 s70, {SPIN}
    s_cbranch_scc1 {L}_got
    """)
    fetch()
    A(f"s_branch {L}_chk")
    A.label(f"{L}_got")
    stamp(A, cfg, 4)
    A("s_mov_b32 s34, 0xffff0000")
    E = [112 + i for i in range(8)]
    G = 120
    T = [124, 125, 126, 127]
    for fp in range(4):
        O = [OW + 4*(2*fp + t) + r for t in range(2) for r in range(4)]
        for t in range(2):
            for i in range(2):
                src = RP + 2*(2*fp + t) + i
                A(f"v_lshlrev_b32 v{E[4*t+2*i]}, 16, v{src}")
                A(f"v_and_b32 v{E[4*t+2*i+1]}, s34, v{src}")
        for i in range(8): A(f"v_add_f32 v{O[i]}, v{O[i]}, v{E[i]}")
        for i in range(4):
            A(f"v_cvt_pk_bf16_f32 v{G+i}, v{O[2*i]}, v{O[2*i+1]}")
        for i in range(4):
            A(f"v_lshlrev_b32 v{O[2*i]}, 16, v{G+i}")
            A(f"v_and_b32 v{O[2*i+1]}, s34, v{G+i}")
        for i in range(8): A(f"v_mul_f32 v{E[i]}, s35, v{O[i]}")
        for i in range(8): A(f"v_exp_f32 v{E[i]}, v{E[i]}")
        for i in range(8): A(f"v_add_f32 v{E[i]}, 1.0, v{E[i]}")
        for i in range(8): A(f"v_rcp_f32 v{E[i]}, v{E[i]}")
        for i in range(8): A(f"v_mul_f32 v{E[i]}, v{O[i]}, v{E[i]}")
        for i in range(4): A(f"v_cvt_pk_bf16_f32 v{G+i}, v{E[2*i]}, v{E[2*i+1]}")
        A(f"v_permlane16_swap_b32 v{G}, v{G+2}")
        A(f"v_permlane16_swap_b32 v{G+1}, v{G+3}")
        sp, xp = SP + 4*fp, XP + 4*fp
        for i in range(4):
            a0, a1, b0, b1 = T
            A(f"v_lshlrev_b32 v{a0}, 16, v{sp+i}")
            A(f"v_and_b32 v{a1}, s34, v{sp+i}")
            A(f"v_lshlrev_b32 v{b0}, 16, v{G+i}")
            A(f"v_and_b32 v{b1}, s34, v{G+i}")
            A(f"v_mul_f32 v{a0}, v{a0}, v{b0}")
            A(f"v_mul_f32 v{a1}, v{a1}, v{b1}")
            A(f"v_cvt_pk_bf16_f32 v{a0}, v{a0}, v{a1}")
            A(f"v_lshlrev_b32 v{b0}, 16, v{a0}")
            A(f"v_and_b32 v{b1}, s34, v{a0}")
            A(f"v_lshlrev_b32 v{a0}, 16, v{xp+i}")
            A(f"v_and_b32 v{a1}, s34, v{xp+i}")
            A(f"v_add_f32 v{a0}, v{a0}, v{b0}")
            A(f"v_add_f32 v{a1}, v{a1}, v{b1}")
            A(f"v_cvt_pk_bf16_f32 v{sp+i}, v{a0}, v{a1}")
        A(f"buffer_store_dwordx4 {v(sp,4)}, v{vx_}, s[36:39], s40 offen offset:{64*fp}{ST}")
    A("s_endpgm")

    A.label(f"{L}_loader")
    vx, vw = 2, 3
    A("s_sub_u32 s25, s25, 4            ; lw")
    A(f"""
    v_lshlrev_b32 v{vx}, 4, v1
    s_lshl_b32 s26, s25, 12
    """)
    if WIMG:
        A(f"""
        s_mul_i32 s41, s23, {3584*256}
        s_mul_i32 s28, s24, {1792*256}
        s_add_u32 s41, s41, s28
        s_add_u32 s41, s41, s26
        """)
    else:
        A(f"""
        s_mul_i32 s41, s24, {1792*2048}
        s_lshl_b32 s28, s23, 8
        s_add_u32 s41, s41, s28
        v_lshrrev_b32 v8, 4, v1          ; l>>4
        v_and_b32 v9, 15, v1             ; p16
        v_lshrrev_b32 v10, 1, v9         ; c32'
        v_and_b32 v9, 1, v9
        v_lshlrev_b32 v9, 4, v9          ; half*16
        s_lshl_b32 s27, s25, 4           ; 16 lw
        v_add_u32 v11, s27, v8           ; 16lw + (l>>4)
        v_lshlrev_b32 v11, 11, v11
        v_add_u32 v11, v11, v9
        """)
        for i in range(4):
            A(f"""
            v_or_b32 v12, {((i>>1)&1)<<2}, v8
            v_xor_b32 v12, v12, v10
            v_lshlrev_b32 v12, 5, v12
            v_add_u32 v12, v12, v11
            v_add_u32 v{vw+i}, {4*i*2048 - 1024*i}, v12
            """)
    A(f"""
    s_mov_b32 s31, 0
    s_add_u32 s27, s26, {TABL}
    s_waitcnt lgkmcnt(0)
    """)
    if WIMG:
        srd_from(A, 16, 8, 9, W2I_OFF, W2I_SZ)
    else:
        srd_from(A, 16, 6, 7, 0, 3584 * 2048)
    srd_table(A, 44, "tab_f3", 16384)
    q = []
    A("s_mov_b32 m0, s27")
    for i in range(4):
        A(f"buffer_load_dwordx4 v{vx}, s[44:47], s26 offen offset:{1024*i} lds"); q.append('t')
    def issue(tag):
        for half in range(2):
            A(f"s_add_u32 m0, s31, s26\ns_add_u32 s31, s31, {STAGE}")
            for i in range(4):
                A(f"buffer_load_dwordx4 v{vx if WIMG else vw+i}, s[16:19], s41 offen offset:{1024*i} lds"); q.append(tag)
            A(f"s_add_u32 s41, s41, {0 if cfg.get('fixw') else 64*(256 if WIMG else 2048)}")
        A(f"s_cmp_eq_u32 s31, {STAGE*NS}\ns_cselect_b32 s31, 0, s31")
    def wait_for(tag):
        last = max(i for i, t in enumerate(q) if t == tag)
        A(f"s_waitcnt vmcnt({len(q) - 1 - last})")
    for i in range(3): issue(i)
    wait_for('t')
    A("s_barrier")
    wait_for(0)
    A("s_barrier")
    A("s_mov_b32 s30, 0")
    A.label(f"{L}_lloop")
    A("s_waitcnt vmcnt(8)")
    A("s_barrier")
    issue('l')
    A(f"""
    s_add_u32 s30, s30, 1
    s_cmp_lt_u32 s30, 10
    s_cbranch_scc1 {L}_lloop
    """)
    q.clear(); q.extend([11]*8 + [12]*8)
    wait_for(11); A("s_barrier")
    A(f"""
    s_lshl_b32 s60, s22, 2
    v_mov_b32 v8, s60
    global_load_dword v9, v8, s[54:55] sc1
    """)
    q.append('p')
    issue(13)
    wait_for('p')
    A(f"""
    v_readfirstlane_b32 s60, v9
    s_cmp_ge_u32 s60, 16
    s_cbranch_scc1 {L}_ready
    s_mov_b32 s70, 0
    {L}_poll:
    s_add_u32 s70, s70, 1
    s_cmp_ge_u32 s70, {SPIN}
    s_cbranch_scc1 {L}_ready
    s_sleep 1
    global_load_dword v9, v8, s[54:55] sc1
    s_waitcnt vmcnt(0)
    v_readfirstlane_b32 s60, v9
    s_cmp_ge_u32 s60, 16
    s_cbranch_scc0 {L}_poll
    {L}_ready:
    """)
    A("s_barrier")
    wait_for(13); A("s_barrier")
    A("s_endpgm")
```

```python
from asmlib import *
from layout import *
from consts import *
from k1 import srd_from, srd_table, wave_reduce
import f2 as F2

STAGE = 49152
XSZ = 32768
NS = 3
KSTEPS = 16
WSTRIDE = 7168
PAO = 2 * STAGE
XS, NYQ, STL = 16384, 32768, 32768 + 64
STATL = NS * STAGE
CSL = STATL + 4096
LDS_KA = 163840
SPIN = 400000
STAT_OFF, STAT_SZ = 0, 16384
SMB, SNB, SSLOT, SRHO = 70, 71, 72, 73

def gen_ka(A, L, cfg):
    SC = ' sc1'
    A(f"""
    s_cmp_ge_u32 s2, 256
    s_cbranch_scc1 {L}_done
    s_load_dwordx2 s[4:5], s[0:1], {ARG_X}
    s_load_dwordx4 s[8:11], s[0:1], {ARG_WR}
    s_load_dwordx2 s[6:7], s[0:1], {ARG_WS}
    s_load_dwordx4 s[60:63], s[0:1], {ARG_W1}
    s_load_dwordx2 s[64:65], s[0:1], {ARG_DBG}
    v_readfirstlane_b32 s25, v0
    v_and_b32 v1, 63, v0
    s_lshr_b32 s25, s25, 6
    s_and_b32 s20, s2, 7             ; xcd
    s_lshr_b32 s{SSLOT}, s2, 3       ; slot
    s_and_b32 s22, s20, 1
    s_lshl_b32 s22, s22, 2
    s_and_b32 s23, s{SSLOT}, 3
    s_add_u32 s{SMB}, s22, s23       ; mb
    s_lshr_b32 s23, s20, 1
    s_mul_i32 s23, s23, 7
    s_lshr_b32 s24, s{SSLOT}, 2
    s_add_u32 s{SNB}, s23, s24       ; nb
    s_lshl_b32 s20, s20, 5
    s_add_u32 s20, s20, s{SSLOT}     ; rho
    s_mov_b32 s{SRHO}, s20
    s_cmp_ge_u32 s25, 4
    s_cbranch_scc1 {L}_hi
    """)
    rows(A, L, cfg)
    A(f"""
    s_cmp_ge_u32 s{SSLOT}, 28
    s_cbranch_scc1 {L}_f2lo
    """)
    consumer(A, L, cfg)
    A.label(f"{L}_hi")
    hi(A, L, cfg)
    loader(A, L, cfg)
    A.label(f"{L}_f2hi")
    A("s_add_u32 s25, s25, 4")
    A("s_waitcnt vmcnt(0)")
    A.label(f"{L}_f2lo")
    A("s_barrier")
    A(f"""
    s_and_b32 s20, s2, 7
    s_lshl_b32 s26, s20, 2
    s_sub_u32 s21, s{SSLOT}, 28
    s_add_u32 s26, s26, s21          ; f
    """)
    def sync():
        A(f"""
        s_cmp_lg_u32 s25, 4
        s_cbranch_scc1 {L}_f2go
        s_and_b32 s28, s{SRHO}, 0xfc
        v_mov_b32 v6, s28
        v_mov_b32 v7, 1
        s_mov_b64 exec, 1
        global_atomic_add v6, v7, s[64:65] sc1
        s_mov_b64 exec, -1
        v_lshlrev_b32 v6, 2, v1
        s_mov_b32 s29, 0
        {('s_sleep %d' % cfg['sleep0']) if cfg.get('sleep0') else ''}
        {L}_f2poll:
        {('s_sleep %d' % cfg['sleep']) if cfg.get('sleep') else ''}
        {('s_branch %s_f2go' % L) if cfg.get('nopoll') else ''}
        global_load_dword v7, v6, s[64:65] sc1
        s_add_u32 s29, s29, 1
        s_cmp_ge_u32 s29, {SPIN}
        s_cbranch_scc1 {L}_f2go
        s_waitcnt vmcnt(0)
        v_cmp_gt_u32 vcc, 4, v7
        s_cmp_lg_u64 vcc, 0
        s_cbranch_scc1 {L}_f2poll
        {L}_f2go:
        s_waitcnt vmcnt(0)
        s_barrier
        """)
    c = dict(st=cfg.get('stf2', ''), stamps=cfg.get('stamps'), ka=sync, cont=cfg.get('cont'), pack=cfg.get('pack'), y32=cfg.get('y32'))
    F2.gen_f2(A, f"{L}f", c)
    A.label(f"{L}_done")
    A("s_endpgm")


def rows(A, L, cfg):
    RAW = [8, 16]
    F = [24, 40]
    TAB = 64
    TW = 96
    D1 = [128, 160]
    D2 = [128, 160]
    A(f"""
    s_lshr_b32 s21, s20, 7             ; gamma
    s_lshl_b32 s21, s21, 4
    s_lshr_b32 s22, s20, 5
    s_and_b32 s22, s22, 1              ; hi
    s_lshl_b32 s22, s22, 2
    s_add_u32 s21, s21, s22
    s_lshr_b32 s22, s25, 1
    s_lshl_b32 s22, s22, 3
    s_add_u32 s21, s21, s22
    s_and_b32 s22, s25, 1
    s_lshl_b32 s22, s22, 1
    s_add_u32 s21, s21, s22
    s_lshl_b32 s21, s21, 6
    s_lshr_b32 s22, s20, 6
    s_and_b32 s22, s22, 1
    s_lshl_b32 s22, s22, 5
    s_add_u32 s21, s21, s22
    s_and_b32 s22, s20, 31
    s_add_u32 s21, s21, s22
    s_lshl_b32 s21, s21, 11
    s_add_u32 s22, s21, 131072         ; row B
    v_lshlrev_b32 v2, 4, v1            ; lane*16
    s_waitcnt lgkmcnt(0)
    """)
    srd_from(A, 12, 4, 5, 0, 4 * MB)
    A(f"""
    buffer_load_dwordx4 v[{RAW[0]}:{RAW[0]+3}], v2, s[12:15], s21 offen
    buffer_load_dwordx4 v[{RAW[0]+4}:{RAW[0]+7}], v2, s[12:15], s21 offen offset:1024
    buffer_load_dwordx4 v[{RAW[1]}:{RAW[1]+3}], v2, s[12:15], s22 offen
    buffer_load_dwordx4 v[{RAW[1]+4}:{RAW[1]+7}], v2, s[12:15], s22 offen offset:1024
    """)
    srd_table(A, 16, "tab_f1", 16384)
    A("s_mov_b32 s26, 4096\ns_mov_b32 s27, 8192\ns_mov_b32 s28, 12288")
    for i in range(16):
        so = ["0", "s26", "s27", "s28"][i >> 2]
        A(f"buffer_load_dwordx4 v[{TAB+4*i}:{TAB+4*i+3}], v2, s[16:19], {so} offen offset:{1024*(i&3)}")
    A(f"""
    s_lshl_b32 s33, s25, 12
    s_add_u32 s33, s33, {PAO}
    v_add_u32 v4, s33, v2
    v_lshrrev_b32 v5, 5, v1
    v_lshlrev_b32 v5, 3, v5
    v_bfe_u32 v6, v1, 2, 2
    v_add_u32 v5, v5, v6
    v_lshlrev_b32 v5, 6, v5
    v_bfe_u32 v6, v1, 4, 1
    v_lshlrev_b32 v6, 5, v6
    v_add_u32 v5, v5, v6
    v_and_b32 v6, 3, v1
    v_lshlrev_b32 v6, 3, v6
    v_add_u32 v5, v5, v6
    v_add_u32 v5, s33, v5
    v_and_b32 v6, 31, v1
    v_lshlrev_b32 v6, 4, v6
    v_lshrrev_b32 v7, 5, v1
    v_lshlrev_b32 v7, 11, v7
    v_add_u32 v6, v6, v7
    s_lshl_b32 s33, s25, 2
    s_add_u32 s33, s33, {PAO + XS}
    v_add_u32 v6, s33, v6
    s_lshl_b32 s33, s25, 4
    s_add_u32 s33, s33, {PAO + STL}
    v_mov_b32 v3, s33
    """)
    A("s_mov_b32 s34, 0xffff0000")
    A("s_waitcnt vmcnt(16)")
    for r in range(2):
        for i in range(8):
            A(f"v_lshlrev_b32 v{F[r]+2*i}, 16, v{RAW[r]+i}")
            A(f"v_and_b32 v{F[r]+2*i+1}, s34, v{RAW[r]+i}")
    S = [56, 57]
    T = [58, 59, 60, 61]
    for r in range(2):
        A(f"v_add_f32 v{S[r]}, v{F[r]}, v{F[r]+1}")
    for i in range(2, 16):
        for r in range(2):
            A(f"v_add_f32 v{S[r]}, v{S[r]}, v{F[r]+i}")
    wave_reduce(A, S)
    for r in range(2):
        A(f"v_readlane_b32 s{44+r}, v{S[r]}, 63")
    for r in range(2):
        A(f"v_mov_b32 v{T[r]}, 0x3a800000")
        A(f"v_mul_f32 v{T[r]}, s{44+r}, v{T[r]}")
    for i in range(16):
        for r in range(2):
            A(f"v_sub_f32 v{T[2+r]}, v{F[r]+i}, v{T[r]}")
            if i == 0:
                A(f"v_mul_f32 v{S[r]}, v{T[2+r]}, v{T[2+r]}")
            else:
                A(f"v_fmac_f32 v{S[r]}, v{T[2+r]}, v{T[2+r]}")
    wave_reduce(A, S)
    for r in range(2):
        A(f"v_readlane_b32 s{46+r}, v{S[r]}, 63")
    for r in range(2):
        A(f"v_cvt_pk_bf16_f32 v{T[r]}, v{T[r]}, v{T[r]}")
        A(f"v_and_b32 v{T[r]}, s34, v{T[r]}")
        A(f"v_mov_b32 v{T[2+r]}, 0x3a800000")
        A(f"v_mul_f32 v{T[2+r]}, s{46+r}, v{T[2+r]}")
        A(f"v_cvt_pk_bf16_f32 v{T[2+r]}, v{T[2+r]}, v{T[2+r]}")
        A(f"v_and_b32 v{T[2+r]}, s34, v{T[2+r]}")
        A(f"v_add_f32 v{T[2+r]}, 0x3727c5ac, v{T[2+r]}")
        A(f"v_cvt_pk_bf16_f32 v{T[2+r]}, v{T[2+r]}, v{T[2+r]}")
        A(f"v_and_b32 v{T[2+r]}, s34, v{T[2+r]}")
        A(f"v_sqrt_f32 v{T[2+r]}, v{T[2+r]}")
        A(f"v_cvt_pk_bf16_f32 v{T[2+r]}, v{T[2+r]}, v{T[2+r]}")
        A(f"v_and_b32 v{T[2+r]}, s34, v{T[2+r]}")
        A(f"v_rcp_f32 v{T[2+r]}, v{T[2+r]}")
    A(f"""
    s_mov_b64 exec, 1
    ds_write_b128 v3, v[58:61]
    s_mov_b64 exec, -1
    """)
    U = [62, 63]
    for i in range(8):
        for r in range(2):
            a0, a1 = F[r]+2*i, F[r]+2*i+1
            A(f"v_sub_f32 v{a0}, v{a0}, v{T[r]}")
            A(f"v_sub_f32 v{a1}, v{a1}, v{T[r]}")
            A(f"v_cvt_pk_bf16_f32 v{U[r]}, v{a0}, v{a1}")
            A(f"v_lshlrev_b32 v{a0}, 16, v{U[r]}")
            A(f"v_and_b32 v{a1}, s34, v{U[r]}")
            A(f"v_mul_f32 v{a0}, v{a0}, v{T[2+r]}")
            A(f"v_mul_f32 v{a1}, v{a1}, v{T[2+r]}")
            A(f"v_cvt_pk_bf16_f32 v{RAW[r]+i}, v{a0}, v{a1}")
    for r in range(2):
        A(f"ds_write_b128 v4, v[{RAW[r]}:{RAW[r]+3}] offset:{2048*r}")
        A(f"ds_write_b128 v4, v[{RAW[r]+4}:{RAW[r]+7}] offset:{2048*r + 1024}")
    A("s_waitcnt lgkmcnt(0)")
    AF = [24, 40]
    for r in range(2):
        for t in range(2):
            for u in range(2):
                A(f"ds_read_b64_tr_b16 v[{AF[r]+4*t+2*u}:{AF[r]+4*t+2*u+1}], v5 offset:{2048*r + 1024*t + 256*u}")
    A("s_waitcnt vmcnt(0) lgkmcnt(0)")
    for r in range(2):
        for part in range(2):
            for t in range(2):
                d = v(D1[r] + 16*part, 16)
                A(f"v_mfma_f32_32x32x16_bf16 {d}, {v(AF[r]+4*t,4)}, {v(TAB+8*part+4*t,4)}, {'0' if t == 0 else d}")
    T = [58, 59, 60, 61]
    NY = [56, 57]
    PK = [192, 208]
    for r in range(2):
        Dr, Di = D1[r], D1[r] + 16
        A(f"v_sub_f32 v{NY[r]}, v{Dr}, v{Dr+1}")
        for i in range(2, 16):
            A(f"v_{'add' if i % 2 == 0 else 'sub'}_f32 v{NY[r]}, v{NY[r]}, v{Dr+i}")
    for r in range(2):
        Dr, Di = D1[r], D1[r] + 16
        for e in range(16):
            t1, t2 = T[0] + (e & 1) * 2, T[1] + (e & 1) * 2
            A(f"v_mul_f32 v{t1}, v{Di+e}, v{TW+16+e}")
            A(f"v_mul_f32 v{t2}, v{Di+e}, v{TW+e}")
            A(f"v_fma_f32 v{Di+e}, v{Dr+e}, v{TW+16+e}, v{t2}")
            A(f"v_fma_f32 v{Dr+e}, v{Dr+e}, v{TW+e}, -v{t1}")
            if e & 1:
                b, q = e >> 3, (e & 7) >> 1
                A(f"v_cvt_pk_bf16_f32 v{PK[r]+4*b+q}, v{Dr+e-1}, v{Dr+e}")
                A(f"v_cvt_pk_bf16_f32 v{PK[r]+8+4*b+q}, v{Di+e-1}, v{Di+e}")
    for r in range(2):
        d = v(D2[r], 16)
        first = True
        for pin in range(2):
            for b in range(2):
                A(f"v_mfma_f32_32x32x16_bf16 {d}, {v(TAB+16+8*pin+4*b,4)}, {v(PK[r]+8*pin+4*b,4)}, {'0' if first else d}")
                first = False
    for r in range(2):
        A(f"v_readlane_b32 s{44+r}, v{NY[r]}, 32")
    for r in range(2):
        A(f"v_add_f32 v{NY[r]}, s{44+r}, v{NY[r]}")
    A(f"v_cvt_pk_bf16_f32 v{NY[0]}, v{NY[0]}, v{NY[1]}")
    PACK = cfg.get('pack')
    A(f"""
    s_lshl_b32 s33, s25, 2
    s_add_u32 s33, s33, {PAO + XS + 8192 if PACK else PAO + NYQ}
    v_mov_b32 v58, s33
    v_cmp_eq_u32 vcc, 0, v1
    v_mov_b32 v59, 1.0
    v_mov_b32 v60, 0.5
    v_cndmask_b32 v59, v59, v60, vcc
    """)
    def nyw():
        A(f"""
        s_mov_b64 exec, 1
        ds_write_b32 v58, v{NY[0]}
        s_mov_b64 exec, -1
        """)
    if not PACK: nyw()
    for r in range(2):
        A(f"v_mul_f32 v{D2[r]}, v{D2[r]}, v59")
    for e in range(8):
        o0 = 2 * (8 * (e >> 2) + (e & 3))
        a_, b_ = 60 + 2 * (e & 1), 61 + 2 * (e & 1)
        A(f"v_cvt_pk_bf16_f32 v{a_}, v{D2[0]+e}, v{D2[1]+e}")
        A(f"v_cvt_pk_bf16_f32 v{b_}, v{D2[0]+8+e}, v{D2[1]+8+e}")
        A(f"ds_write2st64_b32 v6, v{a_}, v{b_} offset0:{o0} offset1:{o0+32}")
    if PACK: nyw()
    A("s_waitcnt lgkmcnt(0)")
    A("s_barrier")
    stamp(A, cfg, 4)


def hi(A, L, cfg):
    SC = cfg.get('scx', ' sc1')
    SCW = cfg.get('scw', ' sc1')
    A(f"""
    s_sub_u32 s25, s25, 4              ; lw
    s_and_b32 s21, s2, 63              ; combo
    s_lshr_b32 s22, s2, 6              ; crange
    s_lshr_b32 s23, s21, 2
    s_and_b32 s24, s21, 3              ; oct
    s_lshl_b32 s26, s24, 3
    s_lshl_b32 s27, s23, 7
    s_add_u32 s27, s27, s26
    s_mul_i32 s28, s27, 1026
    s_add_u32 s29, s28, 32832
    s_add_u32 s30, s28, {2*32832}
    s_add_u32 s31, s28, {3*32832}
    s_lshl_b32 s33, s22, 7
    s_lshl_b32 s34, s25, 5
    s_add_u32 s33, s33, s34
    v_and_b32 v2, 31, v1
    v_add_u32 v2, s33, v2              ; c
    v_lshrrev_b32 v4, 5, v1            ; half
    v_mul_u32_u24 v3, 4104, v4
    v_lshl_add_u32 v3, v2, 1, v3
    s_waitcnt lgkmcnt(0)
    """)
    srd_from(A, 12, 8, 9, 0, 2048 * 1026)
    srd_from(A, 16, 10, 11, 0, 2048 * 1026)
    srd_from(A, 36, 6, 7, WT_OFF, WT_SZ)
    if cfg.get('pfcode'):
        srd_table(A, 40, "ka_kernel", "code_end-ka_kernel")
        A(f"""
        s_mul_i32 s44, s25, {2*8192}
        v_lshlrev_b32 v51, 7, v1
        v_add_u32 v51, s44, v51
        buffer_load_dword v52, v51, s[40:43], 0 offen
        v_add_u32 v51, 8192, v51
        buffer_load_dword v52, v51, s[40:43], 0 offen
        """)
        if cfg['pfcode'] > 1:
            srd_table(A, 44, "tab_f3", 16384)
            A("v_lshlrev_b32 v51, 7, v1")
            A("s_lshl_b32 s56, s25, 13")
            A("v_add_u32 v51, s56, v51")
            A("buffer_load_dword v52, v51, s[44:47], 0 offen")
    so = ["s28", "s29", "s30", "s31"]
    for i in range(4):
        for r in range(4):
            A(f"buffer_load_ushort v{8+4*i+r}, v3, s[12:15], {so[r]} offen offset:{1026*i}")
            A(f"buffer_load_ushort v{24+4*i+r}, v3, s[16:19], {so[r]} offen offset:{1026*i}")
    A(f"""
    s_cmp_eq_u32 s22, 3
    s_cselect_b32 s40, 1, 0
    s_cmp_eq_u32 s25, 0
    s_cselect_b32 s40, s40, 0
    s_cmp_eq_u32 s40, 0
    s_cbranch_scc1 {L}_noex1
    """)
    PACK = cfg.get('pack')
    if PACK:
        A(f"""
        v_and_b32 v5, 7, v1
        v_bfe_u32 v6, v1, 3, 2
        v_lshl_add_u32 v5, v6, 5, v5
        v_add_u32 v5, s27, v5                  ; m
        v_sub_u32 v6, 2048, v5
        v_and_b32 v6, 2047, v6                 ; -m
        v_mul_u32_u24 v5, 1026, v5
        v_mul_u32_u24 v6, 1026, v6
        """)
        for k, (vv, off) in enumerate([(5, 0), (6, 0), (5, 1024), (6, 1024)]):
            A(f"buffer_load_ushort v{40+2*k}, v{vv}, s[12:15], 0 offen offset:{off}")
            A(f"buffer_load_ushort v{41+2*k}, v{vv}, s[16:19], 0 offen offset:{off}")
    else:
        A(f"""
        v_and_b32 v5, 7, v1
        v_mul_u32_u24 v6, 1026, v5
        v_add_u32 v6, 1024, v6
        s_mov_b64 exec, 0xff
        """)
        for r in range(4):
            A(f"buffer_load_ushort v{40+r}, v6, s[12:15], {so[r]} offen")
            A(f"buffer_load_ushort v{44+r}, v6, s[16:19], {so[r]} offen")
        A("s_mov_b64 exec, -1")
    A.label(f"{L}_noex1")
    A(f"""
    s_cmp_ge_u32 s{SSLOT}, 28
    s_cbranch_scc1 {L}_hitab
    """)
    srd_from(A, 48, 4, 5, 0, 4 * MB)
    srd_from(A, 52, 60, 61, 0, 1024 * WSTRIDE)
    vx, vw = 64, 72
    A(f"""
    s_lshr_b32 s56, s{SMB}, 2
    s_lshl_b32 s56, s56, 4
    s_and_b32 s57, s{SMB}, 1
    s_lshl_b32 s57, s57, 2
    s_add_u32 s56, s56, s57          ; p base
    s_lshl_b32 s56, s56, 6
    s_lshr_b32 s57, s{SMB}, 1
    s_and_b32 s57, s57, 1
    s_lshl_b32 s57, s57, 5
    s_add_u32 s56, s56, s57
    s_lshl_b32 s57, s25, 3
    s_add_u32 s56, s56, s57          ; n base
    s_lshl_b32 s56, s56, 11          ; X soffset
    s_lshl_b32 s57, s{SNB}, 8
    v_lshrrev_b32 v76, 5, v1
    v_lshlrev_b32 v76, 3, v76
    v_bfe_u32 v77, v1, 4, 1
    v_lshlrev_b32 v77, 1, v77
    v_add_u32 v76, v76, v77
    v_bfe_u32 v77, v1, 3, 1
    v_add_u32 v76, v76, v77          ; p lane
    v_lshlrev_b32 v76, 17, v76       ; * 64 rows * 2048
    v_and_b32 v77, 7, v1
    v_lshrrev_b32 v78, 4, v1
    """)
    for i in range(8):
        A(f"""
        v_or_b32 v79, {4*(i&1)}, v78
        v_xor_b32 v79, v79, v77
        v_lshlrev_b32 v79, 4, v79
        v_add_u32 v79, v79, v76
        v_add_u32 v{vx+i}, {2048*i - 1024*(i&3)}, v79
        """)
    A(f"""
    v_and_b32 v76, 15, v1             ; p16
    v_lshrrev_b32 v77, 1, v76         ; c32'
    v_and_b32 v76, 1, v76
    v_lshlrev_b32 v76, 4, v76         ; half*16
    s_lshl_b32 s58, s25, 4            ; 16 lw
    v_add_u32 v79, s58, v78           ; 16lw + (l>>4)
    s_mov_b32 s59, {WSTRIDE}
    v_mul_lo_u32 v79, v79, s59
    v_add_u32 v79, v79, v76
    """)
    for i in range(4):
        A(f"""
        v_or_b32 v76, {((i>>1)&1)<<2}, v78
        v_xor_b32 v76, v76, v77
        v_lshlrev_b32 v76, 5, v76
        v_add_u32 v76, v76, v79
        v_add_u32 v{vw+i}, {4*i*WSTRIDE - 1024*i}, v76
        """)
    A(f"""
    s_lshl_b32 s58, s25, 13
    s_lshl_b32 s59, s25, 12
    s_add_u32 s59, s59, {XSZ}
    s_mov_b32 s66, 0
    """)
    issue(A); issue(A)
    A(f"s_branch {L}_hiw")
    A.label(f"{L}_hitab")
    srd_table(A, 48, "tab_f2", F2.NFR * 1024 + 8192)
    A("v_lshlrev_b32 v64, 4, v1")
    for i in range(11):
        A(f"s_add_u32 s56, s25, {4*i}")
        if i == 10:
            A(f"s_min_u32 s56, s56, {F2.NFR-1}")
        A("s_lshl_b32 s56, s56, 10")
        A("s_mov_b32 m0, s56")
        A("buffer_load_dwordx4 v64, s[48:51], s56 offen lds")
    A.label(f"{L}_hiw")
    WTL = PAO + 33280
    A(f"""
    s_lshr_b32 s34, s23, 1
    s_lshl_b32 s34, s34, 10
    s_and_b32 s35, s23, 1
    s_lshl_b32 s35, s35, 9
    s_add_u32 s34, s34, s35
    s_lshl_b32 s35, s26, 4
    s_add_u32 s35, s35, s34
    s_lshl_b32 s34, s25, 12
    s_add_u32 s34, s34, {WTL}
    v_and_b32 v48, 31, v1
    v_lshlrev_b32 v48, 7, v48
    v_lshrrev_b32 v49, 5, v1
    v_lshlrev_b32 v49, 6, v49
    v_add_u32 v48, v48, v49
    v_add_u32 v48, s34, v48
    v_lshlrev_b32 v49, 4, v1
    v_add_u32 v49, s34, v49
    v_lshrrev_b32 v4, 3, v1
    v_add_u32 v4, s33, v4
    v_lshlrev_b32 v4, 13, v4
    v_and_b32 v50, 7, v1
    v_lshlrev_b32 v50, 4, v50
    v_add_u32 v4, v4, v50              ; (c0 + (l >> 3)) * 8192 + (l & 7) * 16
    s_waitcnt vmcnt(0)
    s_cmp_eq_u32 s40, 0
    s_cbranch_scc1 {L}_noex2
    """)
    if PACK:
        for k in range(8):
            A(f"v_lshlrev_b32 v{40+k}, 16, v{40+k}")
        A(f"""
        v_add_f32 v40, v40, v42                ; 2 Ur
        v_sub_f32 v41, v41, v43                ; 2 Ui
        v_add_f32 v44, v44, v46                ; 2 Vr
        v_sub_f32 v45, v45, v47                ; 2 Vi
        v_cmp_gt_u32 vcc, 32, v1
        v_mov_b32 v46, 0.5
        v_mov_b32 v47, -0.5
        v_cndmask_b32 v46, v47, v46, vcc       ; sign / 2
        v_mul_f32 v44, v44, v46
        v_mul_f32 v45, v45, v46
        v_fma_f32 v40, v40, 0.5, v44
        v_fma_f32 v41, v41, 0.5, v45
        v_mul_f32 v40, 0.5, v40
        v_mul_f32 v41, 0.5, v41
        v_cvt_pk_bf16_f32 v40, v40, v41
        v_and_b32 v5, 7, v1
        v_lshlrev_b32 v5, 4, v5
        v_bfe_u32 v6, v1, 3, 2
        v_lshl_add_u32 v5, v6, 2, v5
        v_mov_b32 v6, {513*8192}
        v_mov_b32 v7, {512*8192}
        v_cndmask_b32 v6, v7, v6, vcc
        v_add_u32 v5, v6, v5
        buffer_store_dword v40, v5, s[36:39], s35 offen{SCW}
        """)
    else:
        A(f"""
        v_lshlrev_b32 v5, 4, v5
        v_add_u32 v5, {512*8192}, v5
        v_lshl_or_b32 v40, v44, 16, v40
        v_lshl_or_b32 v41, v45, 16, v41
        v_lshl_or_b32 v42, v46, 16, v42
        v_lshl_or_b32 v43, v47, 16, v43
        s_mov_b64 exec, 0xff
        buffer_store_dwordx4 v[40:43], v5, s[36:39], s35 offen{SCW}
        s_mov_b64 exec, -1
        """)
    A.label(f"{L}_noex2")
    for i in range(4):
        for r in range(4):
            A(f"v_lshl_or_b32 v{8+4*i+r}, v{24+4*i+r}, 16, v{8+4*i+r}")
        A(f"ds_write_b128 v48, v[{8+4*i}:{11+4*i}] offset:{16*i}")
    A("s_waitcnt lgkmcnt(0)")
    for j in range(4):
        A(f"ds_read_b128 v[{24+4*j}:{27+4*j}], v49 offset:{1024*j}")
    for j in range(4):
        A(f"s_waitcnt lgkmcnt({3-j})")
        A(f"s_add_u32 s34, s35, {j*8*8192}")
        A(f"buffer_store_dwordx4 v[{24+4*j}:{27+4*j}], v4, s[36:39], s34 offen{SCW}")
    srd_from(A, 40, 6, 7, X1_OFF, X1_SZ)
    srd_from(A, 44, 6, 7, STAT_OFF, STAT_SZ)
    A(f"""
    v_and_b32 v80, 255, v0             ; t
    v_and_b32 v81, 1, v80
    v_lshlrev_b32 v81, 13, v81
    v_lshrrev_b32 v82, 1, v80
    v_lshlrev_b32 v82, 4, v82
    v_add_u32 v81, v81, v82
    v_add_u32 v81, {PAO + XS}, v81
    v_lshrrev_b32 v82, 2, v80
    v_lshlrev_b32 v82, 14, v82
    v_and_b32 v83, 3, v80
    v_lshlrev_b32 v83, 4, v83
    v_add_u32 v82, v82, v83
    s_lshl_b32 s33, s{SRHO}, 6          ; rho*64
    s_add_u32 s26, s33, {1*MB}
    s_add_u32 s27, s33, {2*MB}
    s_add_u32 s28, s33, {3*MB}
    s_add_u32 s29, s33, {4*MB}
    v_lshlrev_b32 v83, 4, v1            ; lane*16
    v_mov_b32 v104, {PAO + NYQ}
    v_add_u32 v105, {PAO + STL}, v83
    s_barrier                           ; B1
    """)
    for i in range(4):
        A(f"ds_read_b128 v[{84+4*i}:{87+4*i}], v81 offset:{2048*i}")
    A("ds_read_b128 v[100:103], v104")
    A("ds_read_b128 v[108:111], v105")
    for i in range(4):
        A(f"s_waitcnt lgkmcnt({5-i})")
        so_ = ["s33", "s26", "s27", "s28"][i]
        A(f"buffer_store_dwordx4 v[{84+4*i}:{87+4*i}], v82, s[40:43], {so_} offen{SC}")
    A(f"""
    s_waitcnt lgkmcnt(0)
    s_cmp_eq_u32 s25, 0
    s_cbranch_scc0 {L}_nony
    """)
    if not PACK:
        A(f"""
        v_cmp_eq_u32 vcc, 0, v1
        v_cndmask_b32 v100, 0, v100, vcc
        v_cndmask_b32 v101, 0, v101, vcc
        v_cndmask_b32 v102, 0, v102, vcc
        v_cndmask_b32 v103, 0, v103, vcc
        s_mov_b64 exec, 3
        buffer_store_dwordx4 v[100:103], v83, s[40:43], s29 offen{SC}
        """)
    A(f"""
    s_mov_b64 exec, 15
    buffer_store_dwordx4 v[108:111], v83, s[44:47], s33 offen{SC}
    s_mov_b64 exec, -1
    {L}_nony:
    s_cmp_ge_u32 s{SSLOT}, 28
    s_cbranch_scc1 {L}_f2hi
    """)


VX, VW = 64, 72
def issue(A):
    A("s_add_u32 m0, s66, s58")
    for i in range(8):
        if i == 4: A("s_add_u32 m0, m0, 4096")
        A(f"buffer_load_dwordx4 v{VX+i}, s[48:51], s56 offen offset:{1024*(i&3)} lds")
    A(f"""
    s_add_u32 m0, s66, s59
    s_add_u32 s56, s56, 128
    s_add_u32 s66, s66, {STAGE}
    buffer_load_dwordx4 v{VW}, s[52:55], s57 offen lds
    buffer_load_dwordx4 v{VW+1}, s[52:55], s57 offen offset:1024 lds
    buffer_load_dwordx4 v{VW+2}, s[52:55], s57 offen offset:2048 lds
    buffer_load_dwordx4 v{VW+3}, s[52:55], s57 offen offset:3072 lds
    s_add_u32 s57, s57, {64*WSTRIDE}
    s_cmp_eq_u32 s66, {STAGE*NS}
    s_cselect_b32 s66, 0, s66
    """)


def loader(A, L, cfg):
    A("s_barrier")
    issue(A)
    relay = cfg.get('relayw2', True)
    poison = cfg.get('poison', True)
    q = []
    q.append(('s2', 12))
    def wait_for(tag, alt=0):
        idx = max(i for i, (t, n) in enumerate(q) if t == tag)
        n = sum(c for t, c in q[idx+1:] if t != 'sig')
        sig = any(t == 'sig' for t, c in q[idx+1:])
        if sig:
            lab = A.uid(L + "_w") if hasattr(A, 'uid') else None
            A(f"""
            s_cmp_eq_u32 s25, 0
            s_cbranch_scc1 {L}_wa{tag}
            s_waitcnt vmcnt({n})
            s_branch {L}_wb{tag}
            {L}_wa{tag}:
            s_waitcnt vmcnt({n+1})
            {L}_wb{tag}:
            """)
        else:
            A(f"s_waitcnt vmcnt({n})")
        del q[:idx+1]
    A(f"""
    s_mul_i32 s26, s{SMB}, 28
    s_add_u32 s26, s26, s{SNB}       ; idx
    """)
    if relay:
        CBS = 3584 * 256
        A(f"""
        s_lshl_b32 s27, s26, 4
        s_lshl_b32 s28, s25, 2
        s_add_u32 s27, s27, s28
        s_lshl_b32 s28, s27, 11
        s_lshl_b32 s27, s27, 8
        v_lshlrev_b32 v16, 4, v1         ; lane*16
        v_lshrrev_b32 v17, 4, v1
        v_mul_u32_u24 v17, {CBS // 256}, v17
        v_lshlrev_b32 v17, 8, v17        ; (lane>>4)*CBS
        v_and_b32 v18, 1, v1
        v_lshlrev_b32 v18, 4, v18
        v_add_u32 v17, v17, v18
        v_bfe_u32 v18, v1, 1, 3          ; c32
        s_lshr_b32 s29, s25, 1
        s_lshl_b32 s29, s29, 2           ; ((k>>3)&1)<<2
        """)
        for r in range(4):
            A(f"""
            s_or_b32 s30, s29, {r}
            v_xor_b32 v19, s30, v18
            v_lshlrev_b32 v19, 5, v19
            v_add_u32 v{20+r}, v17, v19
            """)
        srd_from(A, 12, 62, 63, 0, 3584 * 2048)
        srd_from(A, 16, 6, 7, W2I_OFF, W2I_SZ)
    if poison:
        srd_from(A, 36, 6, 7, E_OFF, E_SZ)
        A(f"""
        s_lshl_b32 s30, s26, 2
        s_add_u32 s30, s30, s25
        s_lshl_b32 s30, s30, 10
        v_lshlrev_b32 v24, 4, v1
        v_add_u32 v24, s30, v24
        """)
        for i in range(1, 5):
            A(f"v_add_u32 v{24+i}, {896*1024}, v{24+i-1}")
        for i in range(4):
            A(f"v_mov_b32 v{100+i}, -1")
    for b in range(KSTEPS):
        if 1 <= b < KSTEPS - 1 and b != 14:
            wait_for(f's{b+1}')
        ls = cfg.get('lst', {0: 0, 1: 1, 4: 4, 9: 5})
        if b in ls: stamp(A, cfg, ls[b])
        if b == 14:
            A(f"""
            s_waitcnt vmcnt(0)
            s_mov_b32 s31, 0
            {L}_spoll:
            v_cmp_gt_u32 vcc, 4, v9
            s_cmp_eq_u64 vcc, 0
            s_cbranch_scc1 {L}_sready
            s_add_u32 s31, s31, 1
            s_cmp_ge_u32 s31, {SPIN}
            s_cbranch_scc1 {L}_sready
            s_sleep 1
            global_load_dword v9, v8, s[64:65] sc1
            s_waitcnt vmcnt(0)
            s_branch {L}_spoll
            {L}_sready:
            buffer_load_dwordx2 v[12:13], v10, s[44:47], s33 offen sc1
            """)
            q.clear()
        A("s_barrier")
        if b + 3 < KSTEPS:
            issue(A); q.append((f's{b+3}', 12))
        if relay and b == 3:
            for r in range(4):
                for hf in range(2):
                    A(f"s_add_u32 s30, s28, {r*2048}")
                    A(f"buffer_load_dwordx4 {v(32+8*r+4*hf,4)}, v16, s[12:15], s30 offen offset:{1024*hf}")
            q.append(('w2l', 8))
        if relay and b == 6:
            for r in range(4):
                for hf in range(2):
                    A(f"s_add_u32 s30, s27, {r*256 + hf*4*3584*256}")
                    A(f"buffer_store_dwordx4 {v(32+8*r+4*hf,4)}, v{20+r}, s[16:19], s30 offen{cfg.get('wst', ' sc1')}")
            q.append(('w2s', 8))
        if poison and b == 9:
            for i in range(5):
                A(f"buffer_store_dwordx4 v[100:103], v{24+i}, s[36:39], 0 offen{cfg.get('pst', '')}")
            q.append(('poi', 5))
        if b == 12:
            A(f"""
            s_lshl_b32 s30, s{SMB}, 5
            v_and_b32 v8, 7, v1
            v_lshlrev_b32 v8, 2, v8
            v_add_u32 v8, s30, v8
            global_load_dword v9, v8, s[64:65] sc1
            s_lshl_b32 s33, s{SMB}, 11
            s_lshl_b32 s30, s25, 9
            s_add_u32 s33, s33, s30
            v_lshlrev_b32 v10, 3, v1
            s_add_u32 s30, s30, {STATL}
            v_add_u32 v11, s30, v10
            """)
            q.append(('poll', 1))
    A(f"""
    s_waitcnt vmcnt(0)
    ds_write_b64 v11, v[12:13]
    s_waitcnt lgkmcnt(0)
    s_barrier
    s_endpgm
    """)


def consumer(A, L, cfg):
    XA, WA, XB, WB = 128, 160, 176, 208
    xa0, xa1, wa = 224, 225, 226
    lane, t0, t1, t2, t3 = 230, 231, 232, 233, 234
    ONES, CS = 236, 240
    acc = lambda i, n=1: v(i, n)
    A(f"""
    v_mov_b32 v{lane}, v1
    s_and_b32 s26, s25, 1            ; wm
    s_lshr_b32 s27, s25, 1           ; wf
    v_and_b32 v{t0}, 15, v{lane}     ; i = l&15
    v_lshrrev_b32 v{t1}, 4, v{lane}  ; G
    v_lshrrev_b32 v{t2}, 1, v{t0}    ; sw
    v_xor_b32 v{t2}, v{t2}, v{t1}    ; G ^ sw
    v_lshlrev_b32 v{t2}, 4, v{t2}
    v_lshlrev_b32 v{t3}, 7, v{t0}    ; row*128
    v_add_u32 v{t2}, v{t2}, v{t3}
    s_lshl_b32 s28, s26, 14          ; wm*128*128
    v_add_u32 v{xa0}, s28, v{t2}
    v_xor_b32 v{xa1}, 64, v{xa0}
    v_lshrrev_b32 v{t2}, 2, v{t0}    ; r'
    v_and_b32 v{t3}, 1, v{t1}
    v_lshlrev_b32 v{t3}, 2, v{t3}
    v_or_b32 v{t3}, v{t3}, v{t2}     ; f(k)
    v_lshlrev_b32 v{t1}, 3, v{t1}    ; 8G
    v_add_u32 v{t1}, v{t1}, v{t2}    ; 8G + r'
    v_lshlrev_b32 v{t1}, 8, v{t1}    ; *256
    v_and_b32 v{t0}, 3, v{t0}        ; cc
    v_lshlrev_b32 v{t0}, 3, v{t0}
    v_add_u32 v{t1}, v{t1}, v{t0}
    v_add_u32 v{t1}, {XSZ}, v{t1}
    s_lshl_b32 s28, s27, 2           ; wf*4
    s_lshl_b32 s29, s26, 1
    s_add_u32 s28, s28, s29
    """)
    for tf in range(4):
        A(f"""
        s_xor_b32 s29, s28, {tf}
        v_xor_b32 v{t0}, s29, v{t3}
        v_lshlrev_b32 v{t0}, 5, v{t0}
        v_add_u32 v{wa+tf}, v{t0}, v{t1}
        """)
    for i in range(128):
        A(f"v_mov_b32 v{i}, 0")
    for i in range(4): A(f"v_mov_b32 v{ONES+i}, 0x3f803f80")
    for i in range(8): A(f"v_mov_b32 v{CS+i}, 0")
    A(f"""
    s_and_b32 s28, s{SRHO}, 0xfc
    v_mov_b32 v248, s28
    v_mov_b32 v249, 1
    s_cmp_eq_u32 s25, 0
    s_cselect_b32 s37, {cfg.get('sigstep', 1)}, -1     ; wave 0 signals behind the barrier of this step
    """)

    def reads(xset, wset, xreg, h):
        r = []
        xs = [f"ds_read_b128 {v(xset+4*tm,4)}, v{xreg} offset:{2048*tm}" for tm in range(8)]
        ws = []
        for tf in range(4):
            for u in range(2):
                ws.append(f"ds_read_b64_tr_b16 {v(wset+4*tf+2*u,2)}, v{wa+tf} offset:{h*8192+u*1024}")
        for i in range(8):
            r.append(ws[i]); r.append(xs[i])
        return r

    def unit(xset, wset, rd, extra=()):
        mf = []
        for tm in range(8):
            order = range(4) if tm % 2 == 0 else range(3, -1, -1)
            for tf in order:
                d = acc(4*(tf*8+tm), 4)
                mf.append(f"v_mfma_f32_16x16x32_bf16 {d}, {v(wset+4*tf,4)}, {v(xset+4*tm,4)}, {d}")
            if tm in (3, 6):
                tf = 0 if tm == 3 else 1
                d = v(CS + 4*tf, 4)
                mf.append(f"v_mfma_f32_16x16x32_bf16 {d}, {v(wset+4*tf,4)}, {v(ONES,4)}, {d}")
        rd = list(rd); extra = list(extra)
        for i, m in enumerate(mf):
            A(m)
            if i < len(rd):
                A(rd[i])
            elif extra:
                A(extra.pop(0))
        for e in extra: A(e)

    A("s_barrier")
    stamp(A, cfg, 0); stamp(A, cfg, 2, True)
    for r in reads(XA, WA, xa0, 0): A(r)
    A(f"""
    s_mov_b32 s30, 0                 ; step
    s_mov_b32 s31, 0
    s_waitcnt lgkmcnt(0)
    """)
    A.label(f"{L}_cloop")
    A(f"""
    s_add_u32 s32, s31, {STAGE}
    s_cmp_eq_u32 s32, {STAGE*NS}
    s_cselect_b32 s32, 0, s32
    s_sub_u32 s33, s32, s31          ; delta
    s_mov_b32 s31, s32
    """)
    unit(XA, WA, reads(XB, WB, xa1, 1))
    adv = [f"v_add_u32 v{xa0}, s33, v{xa0}"] + [f"v_add_u32 v{wa+t}, s33, v{wa+t}" for t in range(4)]
    for e in adv: A(e)
    A("s_waitcnt lgkmcnt(0)")
    A("s_barrier")
    A(f"""
    s_cmp_lg_u32 s30, s37
    s_cbranch_scc1 {L}_nosig
    s_mov_b64 exec, 1
    global_atomic_add v248, v249, s[64:65] sc1
    s_mov_b64 exec, -1
    {L}_nosig:
    """)
    unit(XB, WB, reads(XA, WA, xa0, 0), extra=[f"v_xor_b32 v{xa1}, 64, v{xa0}"])
    A(f"""
    s_add_u32 s30, s30, 1
    s_cmp_lt_u32 s30, {KSTEPS}
    s_waitcnt lgkmcnt(0)
    s_cbranch_scc1 {L}_cloop
    """)
    stamp(A, cfg, 1); stamp(A, cfg, 3, True)
    CS2, ST, C1, ONE = 160, 176, 192, 194
    A(f"""
    s_lshl_b32 s28, s25, 11
    s_add_u32 s28, s28, {CSL}
    v_lshlrev_b32 v{t0}, 5, v{lane}
    v_add_u32 v{t1}, s28, v{t0}
    v_xor_b32 v{t2}, 2048, v{t1}
    ds_write_b128 v{t1}, {v(CS,4)}
    ds_write_b128 v{t1}, {v(CS+4,4)} offset:16
    v_and_b32 v{t0}, 15, v{lane}
    v_lshrrev_b32 v{t3}, 1, v{t0}
    v_lshlrev_b32 v{t3}, 4, v{t3}
    v_and_b32 v{t0}, 1, v{t0}
    v_lshlrev_b32 v{t0}, 2, v{t0}
    v_add_u32 v{t3}, v{t3}, v{t0}
    s_lshl_b32 s28, s26, 10
    s_add_u32 s28, s28, {STATL}
    v_add_u32 v{t3}, s28, v{t3}
    """)
    srd_from(A, 12, 6, 7, H_OFF, H_SZ)
    A(f"""
    s_lshl_b32 s28, s{SMB}, 4
    s_lshl_b32 s29, s26, 3
    s_add_u32 s28, s28, s29
    s_mul_i32 s28, s28, 112
    s_lshl_b32 s29, s{SNB}, 2
    s_add_u32 s28, s28, s29
    s_lshl_b32 s29, s27, 1
    s_add_u32 s28, s28, s29
    s_lshl_b32 s34, s28, 10
    v_and_b32 v{t0}, 15, v{lane}
    v_lshrrev_b32 v{xa1}, 4, v{lane}  ; G
    v_and_b32 v{xa0}, 1, v{xa1}
    v_lshlrev_b32 v{xa0}, 1, v{xa0}
    v_lshrrev_b32 v{xa1}, 1, v{xa1}
    v_or_b32 v{xa1}, v{xa1}, v{xa0}     ; cG
    v_lshlrev_b32 v{xa1}, 8, v{xa1}
    v_lshlrev_b32 v{t0}, 4, v{t0}
    v_add_u32 v{xa0}, v{t0}, v{xa1}
    s_lshl_b32 s28, s26, 10
    v_add_u32 v{xa0}, s28, v{xa0}
    v_xor_b32 v{xa1}, 1024, v{xa0}
    s_mov_b32 s35, 0xbfb8aa3b        ; -log2(e)
    v_mov_b32 v{ONE}, 1.0
    v_mov_b32 v{ONE+1}, 1.0
    s_waitcnt lgkmcnt(0)
    s_barrier
    """)
    for i in range(8): A(f"v_mov_b32 v{CS2+i}, v{CS+i}")
    A(f"ds_read_b128 {v(CS2+8,4)}, v{t2}")
    A(f"ds_read_b128 {v(CS2+12,4)}, v{t2} offset:16")
    for tm in range(8):
        A(f"ds_read2_b32 {v(ST+2*tm,2)}, v{t3} offset0:{32*tm} offset1:{32*tm+2}")
    A("s_waitcnt lgkmcnt(0)")
    rowstep = 112 * 1024
    P = 196
    nbuf = 0
    pk = cfg.get('pk', True)
    for tm in range(8):
        mu = ST + 2*tm
        A(f"v_mul_f32 v{C1}, s35, v{mu+1}")
        for fp in range(2):
            base = (128, 196)[nbuf % 2]
            nbuf += 1
            U = base + 8
            E = base + 16
            prs = [(4*((2*fp+t)*8+tm) + 2*h, CS2 + 4*(2*fp+t) + 2*h) for t in range(2) for h in range(2)]
            if pk:
                for i, (T, c) in enumerate(prs):
                    A(f"v_pk_fma_f32 {v(U+2*i,2)}, {v(c,2)}, {v(mu,2)}, {v(T,2)} op_sel_hi:[1,0,1] neg_lo:[0,1,0] neg_hi:[0,1,0]")
                for i in range(4):
                    A(f"v_pk_mul_f32 {v(E+2*i,2)}, {v(U+2*i,2)}, {v(C1,2)} op_sel_hi:[1,0]")
                for i in range(8): A(f"v_exp_f32 v{E+i}, v{E+i}")
                for i in range(4):
                    A(f"v_pk_mul_f32 {v(U+2*i,2)}, {v(U+2*i,2)}, {v(mu,2)} op_sel:[0,1] op_sel_hi:[1,1]")
                for i in range(4):
                    A(f"v_pk_add_f32 {v(E+2*i,2)}, {v(E+2*i,2)}, {v(ONE,2)}")
                for i in range(8): A(f"v_rcp_f32 v{E+i}, v{E+i}")
                for i in range(4):
                    A(f"v_pk_mul_f32 {v(E+2*i,2)}, {v(U+2*i,2)}, {v(E+2*i,2)}")
            else:
                for i, (T, c) in enumerate(prs):
                    for h in range(2):
                        A(f"v_fma_f32 v{U+2*i+h}, -v{mu}, v{c+h}, v{T+h}")
                for i in range(8): A(f"v_mul_f32 v{E+i}, v{C1}, v{U+i}")
                for i in range(8): A(f"v_exp_f32 v{E+i}, v{E+i}")
                for i in range(8): A(f"v_mul_f32 v{U+i}, v{mu+1}, v{U+i}")
                for i in range(8): A(f"v_add_f32 v{E+i}, 1.0, v{E+i}")
                for i in range(8): A(f"v_rcp_f32 v{E+i}, v{E+i}")
                for i in range(8): A(f"v_mul_f32 v{E+i}, v{U+i}, v{E+i}")
            for i in range(4): A(f"v_cvt_pk_bf16_f32 v{base+i}, v{E+2*i}, v{E+2*i+1}")
            A(f"v_permlane16_swap_b32 v{base}, v{base+2}")
            A(f"v_permlane16_swap_b32 v{base+1}, v{base+3}")
            A(f"s_add_u32 s36, s34, {rowstep*tm}")
            A(f"buffer_store_dwordx4 {v(base,4)}, v{xa1 if fp else xa0}, s[12:15], s36 offen{cfg.get('st', '')}")
    A("s_endpgm")
```

```python
from asmlib import *
from layout import *
from consts import *
from k1 import srd_from, srd_table, wave_reduce
import f2 as F2

STAGE = 49152
XSZ = 32768
NS = 3
KSTEPS = 16
WSTRIDE = 7168
PAO = 2 * STAGE
XS, NYQ, STL = 16384, 32768, 32768 + 64
STATL = NS * STAGE
CSL = STATL + 4096
LDS_KA = 163840
SPIN = 400000
STAT_OFF, STAT_SZ = 0, 16384
SMB, SNB, SSLOT, SRHO = 70, 71, 72, 73

def gen_ka(A, L, cfg):
    SC = ' sc1'
    A(f"""
    s_cmp_ge_u32 s2, 256
    s_cbranch_scc1 {L}_done
    s_load_dwordx2 s[4:5], s[0:1], {ARG_X}
    s_load_dwordx4 s[8:11], s[0:1], {ARG_WR}
    s_load_dwordx2 s[6:7], s[0:1], {ARG_WS}
    s_load_dwordx4 s[60:63], s[0:1], {ARG_W1}
    s_load_dwordx2 s[64:65], s[0:1], {ARG_DBG}
    v_readfirstlane_b32 s25, v0
    v_and_b32 v1, 63, v0
    s_lshr_b32 s25, s25, 6
    s_and_b32 s20, s2, 7             ; xcd
    s_lshr_b32 s{SSLOT}, s2, 3       ; slot
    s_and_b32 s22, s20, 1
    s_lshl_b32 s22, s22, 2
    s_and_b32 s23, s{SSLOT}, 3
    s_add_u32 s{SMB}, s22, s23       ; mb
    s_lshr_b32 s23, s20, 1
    s_mul_i32 s23, s23, 7
    s_lshr_b32 s24, s{SSLOT}, 2
    s_add_u32 s{SNB}, s23, s24       ; nb
    s_lshl_b32 s20, s20, 5
    s_add_u32 s20, s20, s{SSLOT}     ; rho
    s_mov_b32 s{SRHO}, s20
    s_cmp_ge_u32 s25, 4
    s_cbranch_scc1 {L}_hi
    """)
    rows(A, L, cfg)
    A(f"""
    s_cmp_ge_u32 s{SSLOT}, 28
    s_cbranch_scc1 {L}_f2lo
    """)
    consumer(A, L, cfg)
    A.label(f"{L}_hi")
    hi(A, L, cfg)
    loader(A, L, cfg)
    A.label(f"{L}_f2hi")
    A("s_add_u32 s25, s25, 4")
    A("s_waitcnt vmcnt(0)")
    A.label(f"{L}_f2lo")
    A("s_barrier")
    A(f"""
    s_and_b32 s20, s2, 7
    s_lshl_b32 s26, s20, 2
    s_sub_u32 s21, s{SSLOT}, 28
    s_add_u32 s26, s26, s21          ; f
    """)
    def sync():
        A(f"""
        s_cmp_lg_u32 s25, 4
        s_cbranch_scc1 {L}_f2go
        s_and_b32 s28, s{SRHO}, 0xfc
        v_mov_b32 v6, s28
        v_mov_b32 v7, 1
        s_mov_b64 exec, 1
        global_atomic_add v6, v7, s[64:65] sc1
        s_mov_b64 exec, -1
        v_lshlrev_b32 v6, 2, v1
        s_mov_b32 s29, 0
        {('s_sleep %d' % cfg['sleep0']) if cfg.get('sleep0') else ''}
        {L}_f2poll:
        {('s_sleep %d' % cfg['sleep']) if cfg.get('sleep') else ''}
        {('s_branch %s_f2go' % L) if cfg.get('nopoll') else ''}
        global_load_dword v7, v6, s[64:65] sc1
        s_add_u32 s29, s29, 1
        s_cmp_ge_u32 s29, {SPIN}
        s_cbranch_scc1 {L}_f2go
        s_waitcnt vmcnt(0)
        v_cmp_gt_u32 vcc, 4, v7
        s_cmp_lg_u64 vcc, 0
        s_cbranch_scc1 {L}_f2poll
        {L}_f2go:
        s_waitcnt vmcnt(0)
        s_barrier
        """)
    c = dict(st=cfg.get('stf2', ''), stamps=cfg.get('stamps'), ka=sync, cont=cfg.get('cont'), pack=cfg.get('pack'), y32=cfg.get('y32'))
    F2.gen_f2(A, f"{L}f", c)
    A.label(f"{L}_done")
    A("s_endpgm")


def rows(A, L, cfg):
    RAW = [8, 16]
    F = [24, 40]
    TAB = 64
    TW = 96
    D1 = [128, 160]
    D2 = [128, 160]
    A(f"""
    s_lshr_b32 s21, s20, 7             ; gamma
    s_lshl_b32 s21, s21, 4
    s_lshr_b32 s22, s20, 5
    s_and_b32 s22, s22, 1              ; hi
    s_lshl_b32 s22, s22, 2
    s_add_u32 s21, s21, s22
    s_lshr_b32 s22, s25, 1
    s_lshl_b32 s22, s22, 3
    s_add_u32 s21, s21, s22
    s_and_b32 s22, s25, 1
    s_lshl_b32 s22, s22, 1
    s_add_u32 s21, s21, s22
    s_lshl_b32 s21, s21, 6
    s_lshr_b32 s22, s20, 6
    s_and_b32 s22, s22, 1
    s_lshl_b32 s22, s22, 5
    s_add_u32 s21, s21, s22
    s_and_b32 s22, s20, 31
    s_add_u32 s21, s21, s22
    s_lshl_b32 s21, s21, 11
    s_add_u32 s22, s21, 131072         ; row B
    v_lshlrev_b32 v2, 4, v1            ; lane*16
    s_waitcnt lgkmcnt(0)
    """)
    srd_from(A, 12, 4, 5, 0, 4 * MB)
    A(f"""
    buffer_load_dwordx4 v[{RAW[0]}:{RAW[0]+3}], v2, s[12:15], s21 offen
    buffer_load_dwordx4 v[{RAW[0]+4}:{RAW[0]+7}], v2, s[12:15], s21 offen offset:1024
    buffer_load_dwordx4 v[{RAW[1]}:{RAW[1]+3}], v2, s[12:15], s22 offen
    buffer_load_dwordx4 v[{RAW[1]+4}:{RAW[1]+7}], v2, s[12:15], s22 offen offset:1024
    """)
    srd_table(A, 16, "tab_f1", 16384)
    A("s_mov_b32 s26, 4096\ns_mov_b32 s27, 8192\ns_mov_b32 s28, 12288")
    for i in range(16):
        so = ["0", "s26", "s27", "s28"][i >> 2]
        A(f"buffer_load_dwordx4 v[{TAB+4*i}:{TAB+4*i+3}], v2, s[16:19], {so} offen offset:{1024*(i&3)}")
    A(f"""
    s_lshl_b32 s33, s25, 12
    s_add_u32 s33, s33, {PAO}
    v_add_u32 v4, s33, v2
    v_lshrrev_b32 v5, 5, v1
    v_lshlrev_b32 v5, 3, v5
    v_bfe_u32 v6, v1, 2, 2
    v_add_u32 v5, v5, v6
    v_lshlrev_b32 v5, 6, v5
    v_bfe_u32 v6, v1, 4, 1
    v_lshlrev_b32 v6, 5, v6
    v_add_u32 v5, v5, v6
    v_and_b32 v6, 3, v1
    v_lshlrev_b32 v6, 3, v6
    v_add_u32 v5, v5, v6
    v_add_u32 v5, s33, v5
    v_and_b32 v6, 31, v1
    v_lshlrev_b32 v6, 4, v6
    v_lshrrev_b32 v7, 5, v1
    v_lshlrev_b32 v7, 11, v7
    v_add_u32 v6, v6, v7
    s_lshl_b32 s33, s25, 2
    s_add_u32 s33, s33, {PAO + XS}
    v_add_u32 v6, s33, v6
    s_lshl_b32 s33, s25, 4
    s_add_u32 s33, s33, {PAO + STL}
    v_mov_b32 v3, s33
    """)
    A("s_mov_b32 s34, 0xffff0000")
    A("s_waitcnt vmcnt(16)")
    for r in range(2):
        for i in range(8):
            A(f"v_lshlrev_b32 v{F[r]+2*i}, 16, v{RAW[r]+i}")
            A(f"v_and_b32 v{F[r]+2*i+1}, s34, v{RAW[r]+i}")
    S = [56, 57]
    T = [58, 59, 60, 61]
    for r in range(2):
        A(f"v_add_f32 v{S[r]}, v{F[r]}, v{F[r]+1}")
    for i in range(2, 16):
        for r in range(2):
            A(f"v_add_f32 v{S[r]}, v{S[r]}, v{F[r]+i}")
    wave_reduce(A, S)
    for r in range(2):
        A(f"v_readlane_b32 s{44+r}, v{S[r]}, 63")
    for r in range(2):
        A(f"v_mov_b32 v{T[r]}, 0x3a800000")
        A(f"v_mul_f32 v{T[r]}, s{44+r}, v{T[r]}")
    for i in range(16):
        for r in range(2):
            A(f"v_sub_f32 v{T[2+r]}, v{F[r]+i}, v{T[r]}")
            if i == 0:
                A(f"v_mul_f32 v{S[r]}, v{T[2+r]}, v{T[2+r]}")
            else:
                A(f"v_fmac_f32 v{S[r]}, v{T[2+r]}, v{T[2+r]}")
    wave_reduce(A, S)
    for r in range(2):
        A(f"v_readlane_b32 s{46+r}, v{S[r]}, 63")
    for r in range(2):
        A(f"v_cvt_pk_bf16_f32 v{T[r]}, v{T[r]}, v{T[r]}")
        A(f"v_and_b32 v{T[r]}, s34, v{T[r]}")
        A(f"v_mov_b32 v{T[2+r]}, 0x3a800000")
        A(f"v_mul_f32 v{T[2+r]}, s{46+r}, v{T[2+r]}")
        A(f"v_cvt_pk_bf16_f32 v{T[2+r]}, v{T[2+r]}, v{T[2+r]}")
        A(f"v_and_b32 v{T[2+r]}, s34, v{T[2+r]}")
        A(f"v_add_f32 v{T[2+r]}, 0x3727c5ac, v{T[2+r]}")
        A(f"v_cvt_pk_bf16_f32 v{T[2+r]}, v{T[2+r]}, v{T[2+r]}")
        A(f"v_and_b32 v{T[2+r]}, s34, v{T[2+r]}")
        A(f"v_sqrt_f32 v{T[2+r]}, v{T[2+r]}")
        A(f"v_cvt_pk_bf16_f32 v{T[2+r]}, v{T[2+r]}, v{T[2+r]}")
        A(f"v_and_b32 v{T[2+r]}, s34, v{T[2+r]}")
        A(f"v_rcp_f32 v{T[2+r]}, v{T[2+r]}")
    A(f"""
    s_mov_b64 exec, 1
    ds_write_b128 v3, v[58:61]
    s_mov_b64 exec, -1
    """)
    U = [62, 63]
    for i in range(8):
        for r in range(2):
            a0, a1 = F[r]+2*i, F[r]+2*i+1
            A(f"v_sub_f32 v{a0}, v{a0}, v{T[r]}")
            A(f"v_sub_f32 v{a1}, v{a1}, v{T[r]}")
            A(f"v_cvt_pk_bf16_f32 v{U[r]}, v{a0}, v{a1}")
            A(f"v_lshlrev_b32 v{a0}, 16, v{U[r]}")
            A(f"v_and_b32 v{a1}, s34, v{U[r]}")
            A(f"v_mul_f32 v{a0}, v{a0}, v{T[2+r]}")
            A(f"v_mul_f32 v{a1}, v{a1}, v{T[2+r]}")
            A(f"v_cvt_pk_bf16_f32 v{RAW[r]+i}, v{a0}, v{a1}")
    for r in range(2):
        A(f"ds_write_b128 v4, v[{RAW[r]}:{RAW[r]+3}] offset:{2048*r}")
        A(f"ds_write_b128 v4, v[{RAW[r]+4}:{RAW[r]+7}] offset:{2048*r + 1024}")
    A("s_waitcnt lgkmcnt(0)")
    AF = [24, 40]
    for r in range(2):
        for t in range(2):
            for u in range(2):
                A(f"ds_read_b64_tr_b16 v[{AF[r]+4*t+2*u}:{AF[r]+4*t+2*u+1}], v5 offset:{2048*r + 1024*t + 256*u}")
    A("s_waitcnt vmcnt(0) lgkmcnt(0)")
    for r in range(2):
        for part in range(2):
            for t in range(2):
                d = v(D1[r] + 16*part, 16)
                A(f"v_mfma_f32_32x32x16_bf16 {d}, {v(AF[r]+4*t,4)}, {v(TAB+8*part+4*t,4)}, {'0' if t == 0 else d}")
    T = [58, 59, 60, 61]
    NY = [56, 57]
    PK = [192, 208]
    for r in range(2):
        Dr, Di = D1[r], D1[r] + 16
        A(f"v_sub_f32 v{NY[r]}, v{Dr}, v{Dr+1}")
        for i in range(2, 16):
            A(f"v_{'add' if i % 2 == 0 else 'sub'}_f32 v{NY[r]}, v{NY[r]}, v{Dr+i}")
    for r in range(2):
        Dr, Di = D1[r], D1[r] + 16
        for e in range(16):
            t1, t2 = T[0] + (e & 1) * 2, T[1] + (e & 1) * 2
            A(f"v_mul_f32 v{t1}, v{Di+e}, v{TW+16+e}")
            A(f"v_mul_f32 v{t2}, v{Di+e}, v{TW+e}")
            A(f"v_fma_f32 v{Di+e}, v{Dr+e}, v{TW+16+e}, v{t2}")
            A(f"v_fma_f32 v{Dr+e}, v{Dr+e}, v{TW+e}, -v{t1}")
            if e & 1:
                b, q = e >> 3, (e & 7) >> 1
                A(f"v_cvt_pk_bf16_f32 v{PK[r]+4*b+q}, v{Dr+e-1}, v{Dr+e}")
                A(f"v_cvt_pk_bf16_f32 v{PK[r]+8+4*b+q}, v{Di+e-1}, v{Di+e}")
    for r in range(2):
        d = v(D2[r], 16)
        first = True
        for pin in range(2):
            for b in range(2):
                A(f"v_mfma_f32_32x32x16_bf16 {d}, {v(TAB+16+8*pin+4*b,4)}, {v(PK[r]+8*pin+4*b,4)}, {'0' if first else d}")
                first = False
    for r in range(2):
        A(f"v_readlane_b32 s{44+r}, v{NY[r]}, 32")
    for r in range(2):
        A(f"v_add_f32 v{NY[r]}, s{44+r}, v{NY[r]}")
    A(f"v_cvt_pk_bf16_f32 v{NY[0]}, v{NY[0]}, v{NY[1]}")
    PACK = cfg.get('pack')
    A(f"""
    s_lshl_b32 s33, s25, 2
    s_add_u32 s33, s33, {PAO + XS + 8192 if PACK else PAO + NYQ}
    v_mov_b32 v58, s33
    v_cmp_eq_u32 vcc, 0, v1
    v_mov_b32 v59, 1.0
    v_mov_b32 v60, 0.5
    v_cndmask_b32 v59, v59, v60, vcc
    """)
    def nyw():
        A(f"""
        s_mov_b64 exec, 1
        ds_write_b32 v58, v{NY[0]}
        s_mov_b64 exec, -1
        """)
    if not PACK: nyw()
    for r in range(2):
        A(f"v_mul_f32 v{D2[r]}, v{D2[r]}, v59")
    for e in range(8):
        o0 = 2 * (8 * (e >> 2) + (e & 3))
        a_, b_ = 60 + 2 * (e & 1), 61 + 2 * (e & 1)
        A(f"v_cvt_pk_bf16_f32 v{a_}, v{D2[0]+e}, v{D2[1]+e}")
        A(f"v_cvt_pk_bf16_f32 v{b_}, v{D2[0]+8+e}, v{D2[1]+8+e}")
        A(f"ds_write2st64_b32 v6, v{a_}, v{b_} offset0:{o0} offset1:{o0+32}")
    if PACK: nyw()
    A("s_waitcnt lgkmcnt(0)")
    A("s_barrier")
    stamp(A, cfg, 4)


def hi(A, L, cfg):
    SC = cfg.get('scx', ' sc1')
    SCW = cfg.get('scw', ' sc1')
    A(f"""
    s_sub_u32 s25, s25, 4              ; lw
    s_and_b32 s21, s2, 63              ; combo
    s_lshr_b32 s22, s2, 6              ; crange
    s_lshr_b32 s23, s21, 2
    s_and_b32 s24, s21, 3              ; oct
    s_lshl_b32 s26, s24, 3
    s_lshl_b32 s27, s23, 7
    s_add_u32 s27, s27, s26
    s_mul_i32 s28, s27, 1026
    s_add_u32 s29, s28, 32832
    s_add_u32 s30, s28, {2*32832}
    s_add_u32 s31, s28, {3*32832}
    s_lshl_b32 s33, s22, 7
    s_lshl_b32 s34, s25, 5
    s_add_u32 s33, s33, s34
    v_and_b32 v2, 31, v1
    v_add_u32 v2, s33, v2              ; c
    v_lshrrev_b32 v4, 5, v1            ; half
    v_mul_u32_u24 v3, 4104, v4
    v_lshl_add_u32 v3, v2, 1, v3
    s_waitcnt lgkmcnt(0)
    """)
    srd_from(A, 12, 8, 9, 0, 2048 * 1026)
    srd_from(A, 16, 10, 11, 0, 2048 * 1026)
    srd_from(A, 36, 6, 7, WT_OFF, WT_SZ)
    if cfg.get('pfcode'):
        srd_table(A, 40, "ka_kernel", "code_end-ka_kernel")
        A(f"""
        s_mul_i32 s44, s25, {2*8192}
        v_lshlrev_b32 v51, 7, v1
        v_add_u32 v51, s44, v51
        buffer_load_dword v52, v51, s[40:43], 0 offen
        v_add_u32 v51, 8192, v51
        buffer_load_dword v52, v51, s[40:43], 0 offen
        """)
        if cfg['pfcode'] > 1:
            srd_table(A, 44, "tab_f3", 16384)
            A("v_lshlrev_b32 v51, 7, v1")
            A("s_lshl_b32 s56, s25, 13")
            A("v_add_u32 v51, s56, v51")
            A("buffer_load_dword v52, v51, s[44:47], 0 offen")
    so = ["s28", "s29", "s30", "s31"]
    for i in range(4):
        for r in range(4):
            A(f"buffer_load_ushort v{8+4*i+r}, v3, s[12:15], {so[r]} offen offset:{1026*i}")
            A(f"buffer_load_ushort v{24+4*i+r}, v3, s[16:19], {so[r]} offen offset:{1026*i}")
    A(f"""
    s_cmp_eq_u32 s22, 3
    s_cselect_b32 s40, 1, 0
    s_cmp_eq_u32 s25, 0
    s_cselect_b32 s40, s40, 0
    s_cmp_eq_u32 s40, 0
    s_cbranch_scc1 {L}_noex1
    """)
    PACK = cfg.get('pack')
    if PACK:
        A(f"""
        v_and_b32 v5, 7, v1
        v_bfe_u32 v6, v1, 3, 2
        v_lshl_add_u32 v5, v6, 5, v5
        v_add_u32 v5, s27, v5                  ; m
        v_sub_u32 v6, 2048, v5
        v_and_b32 v6, 2047, v6                 ; -m
        v_mul_u32_u24 v5, 1026, v5
        v_mul_u32_u24 v6, 1026, v6
        """)
        for k, (vv, off) in enumerate([(5, 0), (6, 0), (5, 1024), (6, 1024)]):
            A(f"buffer_load_ushort v{40+2*k}, v{vv}, s[12:15], 0 offen offset:{off}")
            A(f"buffer_load_ushort v{41+2*k}, v{vv}, s[16:19], 0 offen offset:{off}")
    else:
        A(f"""
        v_and_b32 v5, 7, v1
        v_mul_u32_u24 v6, 1026, v5
        v_add_u32 v6, 1024, v6
        s_mov_b64 exec, 0xff
        """)
        for r in range(4):
            A(f"buffer_load_ushort v{40+r}, v6, s[12:15], {so[r]} offen")
            A(f"buffer_load_ushort v{44+r}, v6, s[16:19], {so[r]} offen")
        A("s_mov_b64 exec, -1")
    A.label(f"{L}_noex1")
    A(f"""
    s_cmp_ge_u32 s{SSLOT}, 28
    s_cbranch_scc1 {L}_hitab
    """)
    srd_from(A, 48, 4, 5, 0, 4 * MB)
    srd_from(A, 52, 60, 61, 0, 1024 * WSTRIDE)
    vx, vw = 64, 72
    A(f"""
    s_lshr_b32 s56, s{SMB}, 2
    s_lshl_b32 s56, s56, 4
    s_and_b32 s57, s{SMB}, 1
    s_lshl_b32 s57, s57, 2
    s_add_u32 s56, s56, s57          ; p base
    s_lshl_b32 s56, s56, 6
    s_lshr_b32 s57, s{SMB}, 1
    s_and_b32 s57, s57, 1
    s_lshl_b32 s57, s57, 5
    s_add_u32 s56, s56, s57
    s_lshl_b32 s57, s25, 3
    s_add_u32 s56, s56, s57          ; n base
    s_lshl_b32 s56, s56, 11          ; X soffset
    s_lshl_b32 s57, s{SNB}, 8
    v_lshrrev_b32 v76, 5, v1
    v_lshlrev_b32 v76, 3, v76
    v_bfe_u32 v77, v1, 4, 1
    v_lshlrev_b32 v77, 1, v77
    v_add_u32 v76, v76, v77
    v_bfe_u32 v77, v1, 3, 1
    v_add_u32 v76, v76, v77          ; p lane
    v_lshlrev_b32 v76, 17, v76       ; * 64 rows * 2048
    v_and_b32 v77, 7, v1
    v_lshrrev_b32 v78, 4, v1
    """)
    for i in range(8):
        A(f"""
        v_or_b32 v79, {4*(i&1)}, v78
        v_xor_b32 v79, v79, v77
        v_lshlrev_b32 v79, 4, v79
        v_add_u32 v79, v79, v76
        v_add_u32 v{vx+i}, {2048*i - 1024*(i&3)}, v79
        """)
    A(f"""
    v_and_b32 v76, 15, v1             ; p16
    v_lshrrev_b32 v77, 1, v76         ; c32'
    v_and_b32 v76, 1, v76
    v_lshlrev_b32 v76, 4, v76         ; half*16
    s_lshl_b32 s58, s25, 4            ; 16 lw
    v_add_u32 v79, s58, v78           ; 16lw + (l>>4)
    s_mov_b32 s59, {WSTRIDE}
    v_mul_lo_u32 v79, v79, s59
    v_add_u32 v79, v79, v76
    """)
    for i in range(4):
        A(f"""
        v_or_b32 v76, {((i>>1)&1)<<2}, v78
        v_xor_b32 v76, v76, v77
        v_lshlrev_b32 v76, 5, v76
        v_add_u32 v76, v76, v79
        v_add_u32 v{vw+i}, {4*i*WSTRIDE - 1024*i}, v76
        """)
    A(f"""
    s_lshl_b32 s58, s25, 13
    s_lshl_b32 s59, s25, 12
    s_add_u32 s59, s59, {XSZ}
    s_mov_b32 s66, 0
    """)
    issue(A); issue(A)
    A(f"s_branch {L}_hiw")
    A.label(f"{L}_hitab")
    srd_table(A, 48, "tab_f2", F2.NFR * 1024 + 8192)
    A("v_lshlrev_b32 v64, 4, v1")
    for i in range(11):
        A(f"s_add_u32 s56, s25, {4*i}")
        if i == 10:
            A(f"s_min_u32 s56, s56, {F2.NFR-1}")
        A("s_lshl_b32 s56, s56, 10")
        A("s_mov_b32 m0, s56")
        A("buffer_load_dwordx4 v64, s[48:51], s56 offen lds")
    A.label(f"{L}_hiw")
    WTL = PAO + 33280
    A(f"""
    s_lshr_b32 s34, s23, 1
    s_lshl_b32 s34, s34, 10
    s_and_b32 s35, s23, 1
    s_lshl_b32 s35, s35, 9
    s_add_u32 s34, s34, s35
    s_lshl_b32 s35, s26, 4
    s_add_u32 s35, s35, s34
    s_lshl_b32 s34, s25, 12
    s_add_u32 s34, s34, {WTL}
    v_and_b32 v48, 31, v1
    v_lshlrev_b32 v48, 7, v48
    v_lshrrev_b32 v49, 5, v1
    v_lshlrev_b32 v49, 6, v49
    v_add_u32 v48, v48, v49
    v_add_u32 v48, s34, v48
    v_lshlrev_b32 v49, 4, v1
    v_add_u32 v49, s34, v49
    v_lshrrev_b32 v4, 3, v1
    v_add_u32 v4, s33, v4
    v_lshlrev_b32 v4, 13, v4
    v_and_b32 v50, 7, v1
    v_lshlrev_b32 v50, 4, v50
    v_add_u32 v4, v4, v50              ; (c0 + (l >> 3)) * 8192 + (l & 7) * 16
    s_waitcnt vmcnt(0)
    s_cmp_eq_u32 s40, 0
    s_cbranch_scc1 {L}_noex2
    """)
    if PACK:
        for k in range(8):
            A(f"v_lshlrev_b32 v{40+k}, 16, v{40+k}")
        A(f"""
        v_add_f32 v40, v40, v42                ; 2 Ur
        v_sub_f32 v41, v41, v43                ; 2 Ui
        v_add_f32 v44, v44, v46                ; 2 Vr
        v_sub_f32 v45, v45, v47                ; 2 Vi
        v_cmp_gt_u32 vcc, 32, v1
        v_mov_b32 v46, 0.5
        v_mov_b32 v47, -0.5
        v_cndmask_b32 v46, v47, v46, vcc       ; sign / 2
        v_mul_f32 v44, v44, v46
        v_mul_f32 v45, v45, v46
        v_fma_f32 v40, v40, 0.5, v44
        v_fma_f32 v41, v41, 0.5, v45
        v_mul_f32 v40, 0.5, v40
        v_mul_f32 v41, 0.5, v41
        v_cvt_pk_bf16_f32 v40, v40, v41
        v_and_b32 v5, 7, v1
        v_lshlrev_b32 v5, 4, v5
        v_bfe_u32 v6, v1, 3, 2
        v_lshl_add_u32 v5, v6, 2, v5
        v_mov_b32 v6, {513*8192}
        v_mov_b32 v7, {512*8192}
        v_cndmask_b32 v6, v7, v6, vcc
        v_add_u32 v5, v6, v5
        buffer_store_dword v40, v5, s[36:39], s35 offen{SCW}
        """)
    else:
        A(f"""
        v_lshlrev_b32 v5, 4, v5
        v_add_u32 v5, {512*8192}, v5
        v_lshl_or_b32 v40, v44, 16, v40
        v_lshl_or_b32 v41, v45, 16, v41
        v_lshl_or_b32 v42, v46, 16, v42
        v_lshl_or_b32 v43, v47, 16, v43
        s_mov_b64 exec, 0xff
        buffer_store_dwordx4 v[40:43], v5, s[36:39], s35 offen{SCW}
        s_mov_b64 exec, -1
        """)
    A.label(f"{L}_noex2")
    for i in range(4):
        for r in range(4):
            A(f"v_lshl_or_b32 v{8+4*i+r}, v{24+4*i+r}, 16, v{8+4*i+r}")
        A(f"ds_write_b128 v48, v[{8+4*i}:{11+4*i}] offset:{16*i}")
    A("s_waitcnt lgkmcnt(0)")
    for j in range(4):
        A(f"ds_read_b128 v[{24+4*j}:{27+4*j}], v49 offset:{1024*j}")
    for j in range(4):
        A(f"s_waitcnt lgkmcnt({3-j})")
        A(f"s_add_u32 s34, s35, {j*8*8192}")
        A(f"buffer_store_dwordx4 v[{24+4*j}:{27+4*j}], v4, s[36:39], s34 offen{SCW}")
    srd_from(A, 40, 6, 7, X1_OFF, X1_SZ)
    srd_from(A, 44, 6, 7, STAT_OFF, STAT_SZ)
    A(f"""
    v_and_b32 v80, 255, v0             ; t
    v_and_b32 v81, 1, v80
    v_lshlrev_b32 v81, 13, v81
    v_lshrrev_b32 v82, 1, v80
    v_lshlrev_b32 v82, 4, v82
    v_add_u32 v81, v81, v82
    v_add_u32 v81, {PAO + XS}, v81
    v_lshrrev_b32 v82, 2, v80
    v_lshlrev_b32 v82, 14, v82
    v_and_b32 v83, 3, v80
    v_lshlrev_b32 v83, 4, v83
    v_add_u32 v82, v82, v83
    s_lshl_b32 s33, s{SRHO}, 6          ; rho*64
    s_add_u32 s26, s33, {1*MB}
    s_add_u32 s27, s33, {2*MB}
    s_add_u32 s28, s33, {3*MB}
    s_add_u32 s29, s33, {4*MB}
    v_lshlrev_b32 v83, 4, v1            ; lane*16
    v_mov_b32 v104, {PAO + NYQ}
    v_add_u32 v105, {PAO + STL}, v83
    s_barrier                           ; B1
    """)
    for i in range(4):
        A(f"ds_read_b128 v[{84+4*i}:{87+4*i}], v81 offset:{2048*i}")
    A("ds_read_b128 v[100:103], v104")
    A("ds_read_b128 v[108:111], v105")
    for i in range(4):
        A(f"s_waitcnt lgkmcnt({5-i})")
        so_ = ["s33", "s26", "s27", "s28"][i]
        A(f"buffer_store_dwordx4 v[{84+4*i}:{87+4*i}], v82, s[40:43], {so_} offen{SC}")
    A(f"""
    s_waitcnt lgkmcnt(0)
    s_cmp_eq_u32 s25, 0
    s_cbranch_scc0 {L}_nony
    """)
    if not PACK:
        A(f"""
        v_cmp_eq_u32 vcc, 0, v1
        v_cndmask_b32 v100, 0, v100, vcc
        v_cndmask_b32 v101, 0, v101, vcc
        v_cndmask_b32 v102, 0, v102, vcc
        v_cndmask_b32 v103, 0, v103, vcc
        s_mov_b64 exec, 3
        buffer_store_dwordx4 v[100:103], v83, s[40:43], s29 offen{SC}
        """)
    A(f"""
    s_mov_b64 exec, 15
    buffer_store_dwordx4 v[108:111], v83, s[44:47], s33 offen{SC}
    s_mov_b64 exec, -1
    {L}_nony:
    s_cmp_ge_u32 s{SSLOT}, 28
    s_cbranch_scc1 {L}_f2hi
    """)


VX, VW = 64, 72
def issue(A):
    A("s_add_u32 m0, s66, s58")
    for i in range(8):
        if i == 4: A("s_add_u32 m0, m0, 4096")
        A(f"buffer_load_dwordx4 v{VX+i}, s[48:51], s56 offen offset:{1024*(i&3)} lds")
    A(f"""
    s_add_u32 m0, s66, s59
    s_add_u32 s56, s56, 128
    s_add_u32 s66, s66, {STAGE}
    buffer_load_dwordx4 v{VW}, s[52:55], s57 offen lds
    buffer_load_dwordx4 v{VW+1}, s[52:55], s57 offen offset:1024 lds
    buffer_load_dwordx4 v{VW+2}, s[52:55], s57 offen offset:2048 lds
    buffer_load_dwordx4 v{VW+3}, s[52:55], s57 offen offset:3072 lds
    s_add_u32 s57, s57, {64*WSTRIDE}
    s_cmp_eq_u32 s66, {STAGE*NS}
    s_cselect_b32 s66, 0, s66
    """)


def loader(A, L, cfg):
    A("s_barrier")
    issue(A)
    relay = cfg.get('relayw2', True)
    poison = cfg.get('poison', True)
    q = []
    q.append(('s2', 12))
    def wait_for(tag, alt=0):
        idx = max(i for i, (t, n) in enumerate(q) if t == tag)
        n = sum(c for t, c in q[idx+1:] if t != 'sig')
        sig = any(t == 'sig' for t, c in q[idx+1:])
        if sig:
            lab = A.uid(L + "_w") if hasattr(A, 'uid') else None
            A(f"""
            s_cmp_eq_u32 s25, 0
            s_cbranch_scc1 {L}_wa{tag}
            s_waitcnt vmcnt({n})
            s_branch {L}_wb{tag}
            {L}_wa{tag}:
            s_waitcnt vmcnt({n+1})
            {L}_wb{tag}:
            """)
        else:
            A(f"s_waitcnt vmcnt({n})")
        del q[:idx+1]
    A(f"""
    s_mul_i32 s26, s{SMB}, 28
    s_add_u32 s26, s26, s{SNB}       ; idx
    """)
    if relay:
        CBS = 3584 * 256
        A(f"""
        s_lshl_b32 s27, s26, 4
        s_lshl_b32 s28, s25, 2
        s_add_u32 s27, s27, s28
        s_lshl_b32 s28, s27, 11
        s_lshl_b32 s27, s27, 8
        v_lshlrev_b32 v16, 4, v1         ; lane*16
        v_lshrrev_b32 v17, 4, v1
        v_mul_u32_u24 v17, {CBS // 256}, v17
        v_lshlrev_b32 v17, 8, v17        ; (lane>>4)*CBS
        v_and_b32 v18, 1, v1
        v_lshlrev_b32 v18, 4, v18
        v_add_u32 v17, v17, v18
        v_bfe_u32 v18, v1, 1, 3          ; c32
        s_lshr_b32 s29, s25, 1
        s_lshl_b32 s29, s29, 2           ; ((k>>3)&1)<<2
        """)
        for r in range(4):
            A(f"""
            s_or_b32 s30, s29, {r}
            v_xor_b32 v19, s30, v18
            v_lshlrev_b32 v19, 5, v19
            v_add_u32 v{20+r}, v17, v19
            """)
        srd_from(A, 12, 62, 63, 0, 3584 * 2048)
        srd_from(A, 16, 6, 7, W2I_OFF, W2I_SZ)
    if poison:
        srd_from(A, 36, 6, 7, E_OFF, E_SZ)
        A(f"""
        s_lshl_b32 s30, s26, 2
        s_add_u32 s30, s30, s25
        s_lshl_b32 s30, s30, 10
        v_lshlrev_b32 v24, 4, v1
        v_add_u32 v24, s30, v24
        """)
        for i in range(1, 5):
            A(f"v_add_u32 v{24+i}, {896*1024}, v{24+i-1}")
        for i in range(4):
            A(f"v_mov_b32 v{100+i}, -1")
    for b in range(KSTEPS):
        if 1 <= b < KSTEPS - 1 and b != 14:
            wait_for(f's{b+1}')
        ls = cfg.get('lst', {0: 0, 1: 1, 4: 4, 9: 5})
        if b in ls: stamp(A, cfg, ls[b])
        if b == 14:
            A(f"""
            s_waitcnt vmcnt(0)
            s_mov_b32 s31, 0
            {L}_spoll:
            v_cmp_gt_u32 vcc, 4, v9
            s_cmp_eq_u64 vcc, 0
            s_cbranch_scc1 {L}_sready
            s_add_u32 s31, s31, 1
            s_cmp_ge_u32 s31, {SPIN}
            s_cbranch_scc1 {L}_sready
            s_sleep 1
            global_load_dword v9, v8, s[64:65] sc1
            s_waitcnt vmcnt(0)
            s_branch {L}_spoll
            {L}_sready:
            buffer_load_dwordx2 v[12:13], v10, s[44:47], s33 offen sc1
            """)
            q.clear()
        A("s_barrier")
        if b + 3 < KSTEPS:
            issue(A); q.append((f's{b+3}', 12))
        if relay and b == 3:
            for r in range(4):
                for hf in range(2):
                    A(f"s_add_u32 s30, s28, {r*2048}")
                    A(f"buffer_load_dwordx4 {v(32+8*r+4*hf,4)}, v16, s[12:15], s30 offen offset:{1024*hf}")
            q.append(('w2l', 8))
        if relay and b == 6:
            for r in range(4):
                for hf in range(2):
                    A(f"s_add_u32 s30, s27, {r*256 + hf*4*3584*256}")
                    A(f"buffer_store_dwordx4 {v(32+8*r+4*hf,4)}, v{20+r}, s[16:19], s30 offen{cfg.get('wst', ' sc1')}")
            q.append(('w2s', 8))
        if poison and b == 9:
            for i in range(5):
                A(f"buffer_store_dwordx4 v[100:103], v{24+i}, s[36:39], 0 offen{cfg.get('pst', '')}")
            q.append(('poi', 5))
        if b == 12:
            A(f"""
            s_lshl_b32 s30, s{SMB}, 5
            v_and_b32 v8, 7, v1
            v_lshlrev_b32 v8, 2, v8
            v_add_u32 v8, s30, v8
            global_load_dword v9, v8, s[64:65] sc1
            s_lshl_b32 s33, s{SMB}, 11
            s_lshl_b32 s30, s25, 9
            s_add_u32 s33, s33, s30
            v_lshlrev_b32 v10, 3, v1
            s_add_u32 s30, s30, {STATL}
            v_add_u32 v11, s30, v10
            """)
            q.append(('poll', 1))
    A(f"""
    s_waitcnt vmcnt(0)
    ds_write_b64 v11, v[12:13]
    s_waitcnt lgkmcnt(0)
    s_barrier
    s_endpgm
    """)


def consumer(A, L, cfg):
    XA, WA, XB, WB = 128, 160, 176, 208
    xa0, xa1, wa = 224, 225, 226
    lane, t0, t1, t2, t3 = 230, 231, 232, 233, 234
    ONES, CS = 236, 240
    acc = lambda i, n=1: v(i, n)
    A(f"""
    v_mov_b32 v{lane}, v1
    s_and_b32 s26, s25, 1            ; wm
    s_lshr_b32 s27, s25, 1           ; wf
    v_and_b32 v{t0}, 15, v{lane}     ; i = l&15
    v_lshrrev_b32 v{t1}, 4, v{lane}  ; G
    v_lshrrev_b32 v{t2}, 1, v{t0}    ; sw
    v_xor_b32 v{t2}, v{t2}, v{t1}    ; G ^ sw
    v_lshlrev_b32 v{t2}, 4, v{t2}
    v_lshlrev_b32 v{t3}, 7, v{t0}    ; row*128
    v_add_u32 v{t2}, v{t2}, v{t3}
    s_lshl_b32 s28, s26, 14          ; wm*128*128
    v_add_u32 v{xa0}, s28, v{t2}
    v_xor_b32 v{xa1}, 64, v{xa0}
    v_lshrrev_b32 v{t2}, 2, v{t0}    ; r'
    v_and_b32 v{t3}, 1, v{t1}
    v_lshlrev_b32 v{t3}, 2, v{t3}
    v_or_b32 v{t3}, v{t3}, v{t2}     ; f(k)
    v_lshlrev_b32 v{t1}, 3, v{t1}    ; 8G
    v_add_u32 v{t1}, v{t1}, v{t2}    ; 8G + r'
    v_lshlrev_b32 v{t1}, 8, v{t1}    ; *256
    v_and_b32 v{t0}, 3, v{t0}        ; cc
    v_lshlrev_b32 v{t0}, 3, v{t0}
    v_add_u32 v{t1}, v{t1}, v{t0}
    v_add_u32 v{t1}, {XSZ}, v{t1}
    s_lshl_b32 s28, s27, 2           ; wf*4
    s_lshl_b32 s29, s26, 1
    s_add_u32 s28, s28, s29
    """)
    for tf in range(4):
        A(f"""
        s_xor_b32 s29, s28, {tf}
        v_xor_b32 v{t0}, s29, v{t3}
        v_lshlrev_b32 v{t0}, 5, v{t0}
        v_add_u32 v{wa+tf}, v{t0}, v{t1}
        """)
    t12 = cfg.get('touch', 0)
    if t12 & 1:
        srd_from(A, 44, 60, 61, 0, 1024 * WSTRIDE)
        A(f"""
        s_and_b32 s28, s{SMB}, 3
        s_lshl_b32 s28, s28, 8
        s_lshl_b32 s29, s25, 6
        s_add_u32 s28, s28, s29
        v_add_u32 v250, s28, v{lane}          ; k
        v_mul_u32_u24 v250, {WSTRIDE}, v250
        s_lshl_b32 s28, s{SNB}, 8
        buffer_load_dword v251, v250, s[44:47], s28 offen
        buffer_load_dword v251, v250, s[44:47], s28 offen offset:128
        """)
    if t12 & 2:
        srd_from(A, 48, 62, 63, 0, 3584 * 2048)
        A(f"""
        s_mul_i32 s28, s{SMB}, 28
        s_add_u32 s28, s28, s{SNB}
        s_lshl_b32 s28, s28, 15
        s_lshl_b32 s29, s25, 13
        s_add_u32 s28, s28, s29
        v_lshlrev_b32 v250, 7, v{lane}
        buffer_load_dword v251, v250, s[48:51], s28 offen
        """)
    for i in range(128):
        A(f"v_mov_b32 v{i}, 0")
    for i in range(4): A(f"v_mov_b32 v{ONES+i}, 0x3f803f80")
    for i in range(8): A(f"v_mov_b32 v{CS+i}, 0")
    A(f"""
    s_and_b32 s28, s{SRHO}, 0xfc
    v_mov_b32 v248, s28
    v_mov_b32 v249, 1
    s_cmp_eq_u32 s25, 0
    s_cselect_b32 s37, {cfg.get('sigstep', 1)}, -1     ; wave 0 signals behind the barrier of this step
    """)

    def reads(xset, wset, xreg, h):
        r = []
        xs = [f"ds_read_b128 {v(xset+4*tm,4)}, v{xreg} offset:{2048*tm}" for tm in range(8)]
        ws = []
        for tf in range(4):
            for u in range(2):
                ws.append(f"ds_read_b64_tr_b16 {v(wset+4*tf+2*u,2)}, v{wa+tf} offset:{h*8192+u*1024}")
        for i in range(8):
            r.append(ws[i]); r.append(xs[i])
        return r

    def unit(xset, wset, rd, extra=()):
        mf = []
        for tm in range(8):
            order = range(4) if tm % 2 == 0 else range(3, -1, -1)
            for tf in order:
                d = acc(4*(tf*8+tm), 4)
                mf.append(f"v_mfma_f32_16x16x32_bf16 {d}, {v(wset+4*tf,4)}, {v(xset+4*tm,4)}, {d}")
            if tm in (3, 6):
                tf = 0 if tm == 3 else 1
                d = v(CS + 4*tf, 4)
                mf.append(f"v_mfma_f32_16x16x32_bf16 {d}, {v(wset+4*tf,4)}, {v(ONES,4)}, {d}")
        rd = list(rd); extra = list(extra)
        for i, m in enumerate(mf):
            A(m)
            if i < len(rd):
                A(rd[i])
            elif extra:
                A(extra.pop(0))
        for e in extra: A(e)

    A("s_barrier")
    stamp(A, cfg, 0); stamp(A, cfg, 2, True)
    for r in reads(XA, WA, xa0, 0): A(r)
    A(f"""
    s_mov_b32 s30, 0                 ; step
    s_mov_b32 s31, 0
    s_waitcnt lgkmcnt(0)
    """)
    A.label(f"{L}_cloop")
    A(f"""
    s_add_u32 s32, s31, {STAGE}
    s_cmp_eq_u32 s32, {STAGE*NS}
    s_cselect_b32 s32, 0, s32
    s_sub_u32 s33, s32, s31          ; delta
    s_mov_b32 s31, s32
    """)
    unit(XA, WA, reads(XB, WB, xa1, 1))
    adv = [f"v_add_u32 v{xa0}, s33, v{xa0}"] + [f"v_add_u32 v{wa+t}, s33, v{wa+t}" for t in range(4)]
    for e in adv: A(e)
    A("s_waitcnt lgkmcnt(0)")
    A("s_barrier")
    A(f"""
    s_cmp_lg_u32 s30, s37
    s_cbranch_scc1 {L}_nosig
    s_mov_b64 exec, 1
    global_atomic_add v248, v249, s[64:65] sc1
    s_mov_b64 exec, -1
    {L}_nosig:
    """)
    unit(XB, WB, reads(XA, WA, xa0, 0), extra=[f"v_xor_b32 v{xa1}, 64, v{xa0}"])
    A(f"""
    s_add_u32 s30, s30, 1
    s_cmp_lt_u32 s30, {KSTEPS}
    s_waitcnt lgkmcnt(0)
    s_cbranch_scc1 {L}_cloop
    """)
    stamp(A, cfg, 1); stamp(A, cfg, 3, True)
    CS2, ST, C1, ONE = 160, 176, 192, 194
    A(f"""
    s_lshl_b32 s28, s25, 11
    s_add_u32 s28, s28, {CSL}
    v_lshlrev_b32 v{t0}, 5, v{lane}
    v_add_u32 v{t1}, s28, v{t0}
    v_xor_b32 v{t2}, 2048, v{t1}
    ds_write_b128 v{t1}, {v(CS,4)}
    ds_write_b128 v{t1}, {v(CS+4,4)} offset:16
    v_and_b32 v{t0}, 15, v{lane}
    v_lshrrev_b32 v{t3}, 1, v{t0}
    v_lshlrev_b32 v{t3}, 4, v{t3}
    v_and_b32 v{t0}, 1, v{t0}
    v_lshlrev_b32 v{t0}, 2, v{t0}
    v_add_u32 v{t3}, v{t3}, v{t0}
    s_lshl_b32 s28, s26, 10
    s_add_u32 s28, s28, {STATL}
    v_add_u32 v{t3}, s28, v{t3}
    """)
    srd_from(A, 12, 6, 7, H_OFF, H_SZ)
    A(f"""
    s_lshl_b32 s28, s{SMB}, 4
    s_lshl_b32 s29, s26, 3
    s_add_u32 s28, s28, s29
    s_mul_i32 s28, s28, 112
    s_lshl_b32 s29, s{SNB}, 2
    s_add_u32 s28, s28, s29
    s_lshl_b32 s29, s27, 1
    s_add_u32 s28, s28, s29
    s_lshl_b32 s34, s28, 10
    v_and_b32 v{t0}, 15, v{lane}
    v_lshrrev_b32 v{xa1}, 4, v{lane}  ; G
    v_and_b32 v{xa0}, 1, v{xa1}
    v_lshlrev_b32 v{xa0}, 1, v{xa0}
    v_lshrrev_b32 v{xa1}, 1, v{xa1}
    v_or_b32 v{xa1}, v{xa1}, v{xa0}     ; cG
    v_lshlrev_b32 v{xa1}, 8, v{xa1}
    v_lshlrev_b32 v{t0}, 4, v{t0}
    v_add_u32 v{xa0}, v{t0}, v{xa1}
    s_lshl_b32 s28, s26, 10
    v_add_u32 v{xa0}, s28, v{xa0}
    v_xor_b32 v{xa1}, 1024, v{xa0}
    s_mov_b32 s35, 0xbfb8aa3b        ; -log2(e)
    v_mov_b32 v{ONE}, 1.0
    v_mov_b32 v{ONE+1}, 1.0
    s_waitcnt lgkmcnt(0)
    s_barrier
    """)
    for i in range(8): A(f"v_mov_b32 v{CS2+i}, v{CS+i}")
    A(f"ds_read_b128 {v(CS2+8,4)}, v{t2}")
    A(f"ds_read_b128 {v(CS2+12,4)}, v{t2} offset:16")
    for tm in range(8):
        A(f"ds_read2_b32 {v(ST+2*tm,2)}, v{t3} offset0:{32*tm} offset1:{32*tm+2}")
    A("s_waitcnt lgkmcnt(0)")
    rowstep = 112 * 1024
    P = 196
    nbuf = 0
    pk = cfg.get('pk', True)
    for tm in range(8):
        mu = ST + 2*tm
        A(f"v_mul_f32 v{C1}, s35, v{mu+1}")
        for fp in range(2):
            base = (128, 196)[nbuf % 2]
            nbuf += 1
            U = base + 8
            E = base + 16
            prs = [(4*((2*fp+t)*8+tm) + 2*h, CS2 + 4*(2*fp+t) + 2*h) for t in range(2) for h in range(2)]
            if pk:
                for i, (T, c) in enumerate(prs):
                    A(f"v_pk_fma_f32 {v(U+2*i,2)}, {v(c,2)}, {v(mu,2)}, {v(T,2)} op_sel_hi:[1,0,1] neg_lo:[0,1,0] neg_hi:[0,1,0]")
                for i in range(4):
                    A(f"v_pk_mul_f32 {v(E+2*i,2)}, {v(U+2*i,2)}, {v(C1,2)} op_sel_hi:[1,0]")
                for i in range(8): A(f"v_exp_f32 v{E+i}, v{E+i}")
                for i in range(4):
                    A(f"v_pk_mul_f32 {v(U+2*i,2)}, {v(U+2*i,2)}, {v(mu,2)} op_sel:[0,1] op_sel_hi:[1,1]")
                for i in range(4):
                    A(f"v_pk_add_f32 {v(E+2*i,2)}, {v(E+2*i,2)}, {v(ONE,2)}")
                for i in range(8): A(f"v_rcp_f32 v{E+i}, v{E+i}")
                for i in range(4):
                    A(f"v_pk_mul_f32 {v(E+2*i,2)}, {v(U+2*i,2)}, {v(E+2*i,2)}")
            else:
                for i, (T, c) in enumerate(prs):
                    for h in range(2):
                        A(f"v_fma_f32 v{U+2*i+h}, -v{mu}, v{c+h}, v{T+h}")
                for i in range(8): A(f"v_mul_f32 v{E+i}, v{C1}, v{U+i}")
                for i in range(8): A(f"v_exp_f32 v{E+i}, v{E+i}")
                for i in range(8): A(f"v_mul_f32 v{U+i}, v{mu+1}, v{U+i}")
                for i in range(8): A(f"v_add_f32 v{E+i}, 1.0, v{E+i}")
                for i in range(8): A(f"v_rcp_f32 v{E+i}, v{E+i}")
                for i in range(8): A(f"v_mul_f32 v{E+i}, v{U+i}, v{E+i}")
            for i in range(4): A(f"v_cvt_pk_bf16_f32 v{base+i}, v{E+2*i}, v{E+2*i+1}")
            A(f"v_permlane16_swap_b32 v{base}, v{base+2}")
            A(f"v_permlane16_swap_b32 v{base+1}, v{base+3}")
            A(f"s_add_u32 s36, s34, {rowstep*tm}")
            A(f"buffer_store_dwordx4 {v(base,4)}, v{xa1 if fp else xa0}, s[12:15], s36 offen{cfg.get('st', '')}")
    A("s_endpgm")
```

```python
from asmlib import *
from layout import *
from k1 import srd_from, srd_table

STAGE = 16384
NS = 8
NSTEP = 28
TABL = NS * STAGE
STG = TABL + 16384
LDS_K3 = STG + 16384
SPIN = 400000

def f3_consumer(A, cfg, YS=44, SS=16):
    Y32 = cfg.get('y32')
    D1 = [0, 32]
    TW, YP, RD = 112, 144, 160
    TAB = 0
    SP = RD
    T = [176, 177, 178, 179, 180, 181]
    vny, vw_, vr_, vt_, vy, vz = 182, 183, 184, 185, 186, 187
    lane = 72
    def part0():
        srd_from(A, YS, 8, 9, Y1_OFF, Y1_SZ)
        A(f"""
        s_lshl_b32 s60, s25, 6
        v_add_u32 v{T[0]}, s60, v{lane}            ; t = w*64 + lane
        v_lshrrev_b32 v{vy}, {1 if Y32 else 2}, v{T[0]}
        v_lshlrev_b32 v{vy}, {13 if Y32 else 14}, v{vy}
        v_and_b32 v{T[1]}, {1 if Y32 else 3}, v{T[0]}
        v_lshlrev_b32 v{T[1]}, 4, v{T[1]}
        v_add_u32 v{vy}, v{vy}, v{T[1]}            ; Y voffset
        s_lshl_b32 s60, s20, {5 if Y32 else 6}               ; rho*64
        s_add_u32 s61, s60, {1*MB}
        s_add_u32 s62, s60, {2*MB}
        s_add_u32 s63, s60, {3*MB}
        s_add_u32 s64, s60, {16 if cfg.get('pack') else 4*MB}
        s_lshl_b32 s65, s25, 2
        s_add_u32 s64, s64, s65
        v_mov_b32 v{vz}, 0
        """)
        for i in range(4):
            A(f"buffer_load_dwordx4 {v(YP+4*i,4)}, v{vy}, s[{YS}:{YS+3}], s{60+i} offen")
        A(f"buffer_load_dword v{vny}, v{vz}, s[{YS}:{YS+3}], s64 offen")
        A(f"""
        v_and_b32 v{vw_}, 1, v{T[0]}
        v_lshlrev_b32 v{vw_}, 13, v{vw_}
        v_lshrrev_b32 v{T[1]}, 1, v{T[0]}
        v_lshlrev_b32 v{T[1]}, 4, v{T[1]}
        v_add_u32 v{vw_}, v{vw_}, v{T[1]}
        v_add_u32 v{vw_}, {STG}, v{vw_}
        v_and_b32 v{vr_}, 31, v{lane}
        v_lshlrev_b32 v{vr_}, 4, v{vr_}
        v_lshrrev_b32 v{T[1]}, 5, v{lane}
        v_lshlrev_b32 v{T[1]}, 11, v{T[1]}
        v_add_u32 v{vr_}, v{vr_}, v{T[1]}
        s_add_u32 s65, s65, {STG}
        v_add_u32 v{vr_}, s65, v{vr_}
        v_lshlrev_b32 v{vt_}, 4, v{lane}
        v_add_u32 v{vt_}, {TABL}, v{vt_}
        s_mov_b32 s67, 0x05040100
        s_mov_b32 s68, 0x07060302
        s_mov_b32 s69, 0xffff0000
        """)
    def part1(vm=8):
        A(f"s_waitcnt vmcnt({vm})")
        for i in range(4):
            A(f"ds_write_b128 v{vw_}, {v(YP+4*i,4)} offset:{2048*i}")
        A("s_waitcnt lgkmcnt(0)")
    def part2(after_twiddle, mid=None):
        for t in range(2):
            for q in range(4):
                o0 = 2 * (8 * t + q)
                A(f"ds_read2st64_b32 {v(RD+8*t+2*q,2)}, v{vr_} offset0:{o0} offset1:{o0+32}")
        order = [0, 1, 2, 3, 8, 9, 10, 11, 12, 13, 14, 15, 4, 5, 6, 7]
        for i in order:
            dst = a(TAB+4*i,4) if i < 8 else v(TW+4*(i-8),4)
            A(f"ds_read_b128 {dst}, v{vt_} offset:{1024*i}")
        AF = YP
        A("s_waitcnt lgkmcnt(12)")
        for t in range(2):
            for q in range(4):
                a_, b_ = RD + 8*t + 2*q, RD + 8*t + 2*q + 1
                A(f"v_perm_b32 v{AF+4*t+q}, v{b_}, v{a_}, s67")
                A(f"v_perm_b32 v{AF+8+4*t+q}, v{b_}, v{a_}, s68")
        for t in range(2):
            for r in range(2):
                for part in range(2):
                    d = v(D1[r] + 16*part, 16)
                    A(f"v_mfma_f32_32x32x16_bf16 {d}, {v(AF+8*r+4*t,4)}, {a(TAB+8*part+4*t,4)}, {'0' if t == 0 else d}")
        A(f"""
        v_and_b32 v{vw_}, 31, v{lane}
        v_lshlrev_b32 v{vw_}, 6, v{vw_}
        v_lshrrev_b32 v{vr_}, 5, v{lane}
        v_lshlrev_b32 v{vr_}, 4, v{vr_}
        v_add_u32 v{vw_}, v{vw_}, v{vr_}
        s_lshl_b32 s60, s20, 3
        s_lshl_b32 s61, s25, 1
        s_add_u32 s60, s60, s61
        s_lshl_b32 s60, s60, 11
        s_add_u32 s61, s60, 2048
        v_lshlrev_b32 v{T[4]}, 16, v{vny}
        v_and_b32 v{T[5]}, s69, v{vny}
        v_mul_f32 v{T[4]}, 0x35000000, v{T[4]}
        v_mul_f32 v{T[5]}, 0x35000000, v{T[5]}
        s_waitcnt lgkmcnt(0)
        """)
        PK = [RD, YP]
        for r in range(2):
            Dr, Di = D1[r], D1[r] + 16
            for e in range(16):
                t1, t2 = T[(e & 1) * 2], T[(e & 1) * 2 + 1]
                A(f"v_mul_f32 v{t1}, v{Di+e}, v{TW+16+e}")
                A(f"v_mul_f32 v{t2}, v{Di+e}, v{TW+e}")
                A(f"v_fma_f32 v{Di+e}, v{Dr+e}, v{TW+16+e}, v{t2}")
                A(f"v_fma_f32 v{Dr+e}, v{Dr+e}, v{TW+e}, -v{t1}")
                if e & 1:
                    b, q = e >> 3, (e & 7) >> 1
                    A(f"v_cvt_pk_bf16_f32 v{PK[r]+4*b+q}, v{Dr+e-1}, v{Dr+e}")
                    A(f"v_cvt_pk_bf16_f32 v{PK[r]+8+4*b+q}, v{Di+e-1}, v{Di+e}")
            if r == 0:
                seq = [(pin, b) for pin in range(2) for b in range(2)]
                for k, (pin, b) in enumerate(seq):
                    d = v(D1[0], 16)
                    A(f"v_mfma_f32_32x32x16_bf16 {d}, {v(PK[0]+8*pin+4*b,4)}, {a(TAB+16+8*pin+4*b,4)}, {'0' if k == 0 else d}")
                if mid: mid()
        after_twiddle()
        for k, (pin, b) in enumerate(seq):
            d = v(D1[1], 16)
            A(f"v_mfma_f32_32x32x16_bf16 {d}, {v(PK[1]+8*pin+4*b,4)}, {a(TAB+16+8*pin+4*b,4)}, {'0' if k == 0 else d}")
        for r in range(2):
            for e in range(16):
                A(f"v_{'add' if e % 2 == 0 else 'sub'}_f32 v{D1[r]+e}, v{D1[r]+e}, v{T[4+r]}")
            for t in range(2):
                base = SP + 8*r + 4*t
                for h in range(2):
                    for i in range(2):
                        e = 4 * (2*t + h) + 2*i
                        A(f"v_cvt_pk_bf16_f32 v{base+2*h+i}, v{D1[r]+e}, v{D1[r]+e+1}")
                A(f"v_permlane32_swap_b32 v{base}, v{base+2}")
                A(f"v_permlane32_swap_b32 v{base+1}, v{base+3}")
                A(f"buffer_store_dwordx4 {v(base,4)}, v{vw_}, s[{SS}:{SS+3}], s{60+r} offen offset:{32*t} sc1")
    return part0, part1, part2


def gen_gemm4(A, name, cfg):
    L = name
    ST = cfg.get('st', '')
    WIMG = cfg.get('wimg', False)
    A(f"""
    s_load_dwordx2 s[6:7], s[0:1], {ARG_W2}
    s_load_dwordx2 s[8:9], s[0:1], {ARG_WS}
    s_load_dwordx2 s[4:5], s[0:1], {ARG_X}
    s_load_dwordx4 s[52:55], s[0:1], {ARG_OUT}
    v_readfirstlane_b32 s25, v0
    s_lshr_b32 s25, s25, 6
    v_and_b32 v1, 63, v0             ; lane
    s_cmp_ge_u32 s25, 4
    s_cbranch_scc1 {L}_loader
    """)
    WA, WB = 0, 32
    wa = 64
    lane, t0, t1, t2, t3 = 72, 73, 74, 75, 76
    ex, vx_, vs_ = 77, 78, 79
    XR = 80
    xb = 188
    wa2 = 176
    XP, SP = 144, 160
    F3L = cfg.get('f3l')
    if not F3L:
        p0, p1, p2 = f3_consumer(A, cfg)
    HT = 112 * 1024
    def xloads(slot):
        r = []
        for h in range(2):
            for tm in range(2):
                r.append(f"buffer_load_dwordx4 {v(XR+16*slot+8*h+4*tm,4)}, v{xb if tm else ex}, s[56:59], s33 offen offset:{1024*h}")
        r.append(f"s_add_u32 s33, s33, {0 if cfg.get('fixx') else 2048}")
        return r
    A(f"""
    v_mov_b32 v{lane}, v1
    v_lshlrev_b32 v{ex}, 4, v1
    v_add_u32 v{xb}, {HT}, v{ex}
    s_lshl_b32 s33, s22, 3
    s_lshl_b32 s28, s25, 1
    s_add_u32 s33, s33, s28
    s_mul_i32 s33, s33, 112
    s_mul_i32 s28, s24, 56
    s_add_u32 s33, s33, s28
    s_lshl_b32 s33, s33, 10
    s_waitcnt lgkmcnt(0)
    """)
    if not F3L: p0()
    srd_from(A, 56, 8, 9, H_OFF, H_SZ)
    for x in xloads(0) + xloads(1) + (xloads(2) if F3L else []): A(x)
    A(f"""
    v_and_b32 v{t0}, 15, v{lane}     ; i = l&15
    v_lshrrev_b32 v{t1}, 4, v{lane}  ; G
    v_lshrrev_b32 v{t2}, 2, v{t0}    ; r'
    v_and_b32 v{t3}, 1, v{t1}
    v_lshlrev_b32 v{t3}, 2, v{t3}
    v_or_b32 v{t3}, v{t3}, v{t2}     ; f(k)
    v_lshlrev_b32 v{t1}, 3, v{t1}    ; 8G
    v_add_u32 v{t1}, v{t1}, v{t2}    ; 8G + r'
    v_lshlrev_b32 v{t1}, 8, v{t1}    ; *256
    v_and_b32 v{t0}, 3, v{t0}        ; cc
    v_lshlrev_b32 v{t0}, 3, v{t0}
    v_add_u32 v{t1}, v{t1}, v{t0}
    """)
    for tf in range(8):
        A(f"""
        v_xor_b32 v{t0}, {tf}, v{t3}
        v_lshlrev_b32 v{t0}, 5, v{t0}
        v_add_u32 v{wa+tf}, v{t0}, v{t1}
        """)
    for i in range(32, 64):
        A(f"v_accvgpr_write_b32 a{i}, 0")
    A(f"""
    v_and_b32 v{t1}, 15, v{lane}         ; i
    v_lshrrev_b32 v{t2}, 4, v{lane}      ; G
    v_and_b32 v{t3}, 1, v{t2}
    v_lshlrev_b32 v{t3}, 1, v{t3}
    v_lshrrev_b32 v{t2}, 1, v{t2}
    v_or_b32 v{t2}, v{t2}, v{t3}         ; cG
    v_lshlrev_b32 v{t2}, 4, v{t2}
    v_lshlrev_b32 v{vs_}, 11, v{t1}
    v_add_u32 v{vs_}, v{vs_}, v{t2}
    v_bfe_u32 v{t3}, v{t1}, 2, 1
    v_lshlrev_b32 v{t3}, 3, v{t3}
    v_and_b32 v{vx_}, 3, v{t1}
    v_add_u32 v{vx_}, v{vx_}, v{t3}
    v_lshlrev_b32 v{vx_}, 6, v{vx_}
    v_lshrrev_b32 v{t3}, 3, v{t1}
    v_add_u32 v{vx_}, v{vx_}, v{t3}
    v_lshlrev_b32 v{vx_}, 11, v{vx_}
    v_add_u32 v{vx_}, v{vx_}, v{t2}
    s_lshl_b32 s28, s22, 4
    s_lshl_b32 s29, s25, 2
    s_add_u32 s28, s28, s29
    s_lshl_b32 s29, s24, 1
    s_add_u32 s28, s28, s29
    s_lshr_b32 s29, s28, 7               ; gamma
    s_lshl_b32 s29, s29, 4
    s_lshr_b32 s30, s28, 5
    s_and_b32 s30, s30, 1
    s_lshl_b32 s30, s30, 2
    s_add_u32 s29, s29, s30
    s_lshl_b32 s29, s29, 6
    s_lshr_b32 s30, s28, 6
    s_and_b32 s30, s30, 1
    s_lshl_b32 s30, s30, 5
    s_add_u32 s29, s29, s30
    s_and_b32 s30, s28, 31
    s_add_u32 s29, s29, s30              ; nS
    s_lshl_b32 s29, s29, 11
    s_lshl_b32 s30, s23, 8               ; cb2*256
    s_add_u32 s40, s29, s30
    s_lshl_b32 s28, s28, 14
    s_add_u32 s42, s28, s30              ; s soffset
    s_lshl_b32 s26, s22, 3
    s_add_u32 s26, s26, s23
    s_lshl_b32 s26, s26, 1
    s_add_u32 s26, s26, s24
    s_xor_b32 s27, s26, 1
    s_lshl_b32 s26, s26, 14
    s_lshl_b32 s27, s27, 14
    s_lshl_b32 s28, s25, 12
    s_add_u32 s26, s26, s28
    s_add_u32 s27, s27, s28
    """)
    srd_from(A, 12, 4, 5, 0, 4 * MB)
    srd_from(A, 16, 8, 9, S_OFF, S_SZ)
    srd_from(A, 36, 52, 53, 0, 4 * MB)
    srd_from(A, 48, 8, 9, E_OFF, E_SZ)
    if not F3L:
        p1()
        A("s_barrier")
        def after_twiddle():
            for x in xloads(2): A(x)
        p2(after_twiddle)
    for i in range(32):
        A(f"v_accvgpr_write_b32 a{i}, 0")
    for tf in range(8):
        A(f"v_add_u32 v{wa2+tf}, 65536, v{wa+tf}")

    def reads(wset, stage, h):
        r = []
        base = wa if stage < 4 else wa2
        for tf in range(8):
            for u in range(2):
                r.append(f"ds_read_b64_tr_b16 {v(wset+4*tf+2*u,2)}, v{base+tf} offset:{(stage&3)*STAGE+h*8192+u*1024}")
        return r

    def unit(slot, h, wset, rd, extra=(), vm=None, bar=False, postbar=None):
        mf = []
        for tf in range(8):
            order = (0, 1) if tf % 2 == 0 else (1, 0)
            for tm in order:
                d = a(4*(tf*2+tm), 4)
                mf.append(f"v_mfma_f32_16x16x32_bf16 {d}, {v(wset+4*tf,4)}, {v(XR+16*slot+8*h+4*tm,4)}, {d}")
        rd = list(rd); extra = list(extra)
        hasrd = bool(rd)
        for i, m in enumerate(mf):
            if i % 2 == 0:
                n = 14 if hasrd else 14 - i
                A(f"s_waitcnt vmcnt({vm}) lgkmcnt({n})" if (i == 0 and vm is not None) else f"s_waitcnt lgkmcnt({n})")
            A(m)
            if i == 0 and bar:
                A("s_barrier")
                if postbar: postbar()
            if rd: A(rd.pop(0))
            if extra and i >= 2 and i % 2 == 1: A(extra.pop(0))
        for e in extra: A(e)

    early = []
    for fp in range(4):
        early.append(f"buffer_load_dwordx4 {v(SP+4*fp,4)}, v{vs_}, s[16:19], s42 offen offset:{64*fp} sc1")
    for fp in range(4):
        early.append(f"buffer_load_dwordx4 {v(XP+4*fp,4)}, v{vx_}, s[12:15], s40 offen offset:{64*fp}")

    A("s_barrier")
    stamp(A, cfg, 0); stamp(A, cfg, 2, True)
    for r in reads(WA, 0, 0): A(r)
    def cstep(st, vm, xl=True, extraA=(), postbar=None, last=False):
        j = st & 3
        exA = (xloads((j + 3) % 4) if xl else []) + list(extraA)
        unit(j, 0, WA, reads(WB, st, 1), extra=exA, vm=vm)
        unit(j, 1, WB, [] if last else reads(WA, (st + 1) % 8, 0), bar=(st & 1 == 1 and not last), postbar=postbar)
    def signal():
        A(f"""
        s_cmp_lg_u32 s25, 0
        s_cbranch_scc1 {L}_nosig
        s_lshr_b32 s60, s20, 4
        s_lshl_b32 s60, s60, 2
        v_mov_b32 v{t0}, s60
        v_mov_b32 v{t1}, 1
        s_mov_b64 exec, 1
        global_atomic_add v{t0}, v{t1}, s[54:55] sc1
        s_mov_b64 exec, -1
        {L}_nosig:
        """)
    if F3L:
        for st in range(4): cstep(st, 8)
    else:
        cstep(0, 12); cstep(1, 12); cstep(2, 12); cstep(3, 8, postbar=signal)
    A("s_mov_b32 s30, 0")
    A.label(f"{L}_cloop")
    for st in (4, 5, 6, 7, 0, 1, 2, 3): cstep(st, 8)
    A(f"""
    s_add_u32 s30, s30, 1
    s_cmp_lt_u32 s30, 2
    s_cbranch_scc1 {L}_cloop
    """)
    for st in (4, 5, 6, 7): cstep(st, 8)
    cstep(0, 8, extraA=early); cstep(1, 16, xl=False); cstep(2, 12, xl=False); cstep(3, 8, xl=False, last=True)
    stamp(A, cfg, 1); stamp(A, cfg, 3, True)
    RP = 32
    SND = 0
    TMP = 80
    OW = 80
    def send(tm):
        for tf in range(8):
            for r in range(4):
                A(f"v_accvgpr_read_b32 v{TMP+4*tf+r}, a{4*(tf*2+tm)+r}")
        for k in range(8):
            for i in range(2):
                A(f"v_cvt_pk_bf16_f32 v{SND+2*k+i}, v{TMP+4*k+2*i}, v{TMP+4*k+2*i+1}")
        for k in range(16):
            A(f"v_min_u32 v{SND+k}, s34, v{SND+k}")
        for i in range(4):
            A(f"buffer_store_dwordx4 {v(SND+4*i,4)}, v{ex}, s[48:51], s26 offen offset:{1024*i} sc1")
    def own(tm):
        for tf in range(8):
            for r in range(4):
                A(f"v_accvgpr_read_b32 v{OW+4*tf+r}, a{4*(tf*2+tm)+r}")
    def fetch():
        for i in range(4):
            A(f"buffer_load_dwordx4 {v(RP+4*i,4)}, v{ex}, s[48:51], s27 offen offset:{1024*i} sc1")
    A(f"""
    s_mov_b32 s34, 0xfffffffe
    s_mov_b32 s35, 0xbfb8aa3b
    s_cmp_eq_u32 s24, 0
    s_cbranch_scc1 {L}_kh0
    """)
    send(0); fetch(); own(1)
    A(f"s_branch {L}_sent")
    A.label(f"{L}_kh0")
    send(1); fetch(); own(0)
    A.label(f"{L}_sent")
    A("s_mov_b32 s70, 0")
    A.label(f"{L}_chk")
    A("s_waitcnt vmcnt(0)")
    A(f"v_max3_u32 v{t0}, v{RP}, v{RP+1}, v{RP+2}")
    for i in range(3, 15, 2):
        A(f"v_max3_u32 v{t0}, v{t0}, v{RP+i}, v{RP+i+1}")
    A(f"""
    v_max_u32 v{t0}, v{t0}, v{RP+15}
    v_cmp_eq_u32 vcc, -1, v{t0}
    s_nop 4
    s_cbranch_vccz {L}_got
    s_add_u32 s70, s70, 1
    s_cmp_ge_u32 s70, {SPIN}
    s_cbranch_scc1 {L}_got
    """)
    fetch()
    A(f"s_branch {L}_chk")
    A.label(f"{L}_got")
    stamp(A, cfg, 4)
    A("s_mov_b32 s34, 0xffff0000")
    E = [112 + i for i in range(8)]
    G = 120
    T = [124, 125, 126, 127]
    for fp in range(4):
        O = [OW + 4*(2*fp + t) + r for t in range(2) for r in range(4)]
        for t in range(2):
            for i in range(2):
                src = RP + 2*(2*fp + t) + i
                A(f"v_lshlrev_b32 v{E[4*t+2*i]}, 16, v{src}")
                A(f"v_and_b32 v{E[4*t+2*i+1]}, s34, v{src}")
        for i in range(8): A(f"v_add_f32 v{O[i]}, v{O[i]}, v{E[i]}")
        for i in range(4):
            A(f"v_cvt_pk_bf16_f32 v{G+i}, v{O[2*i]}, v{O[2*i+1]}")
        for i in range(4):
            A(f"v_lshlrev_b32 v{O[2*i]}, 16, v{G+i}")
            A(f"v_and_b32 v{O[2*i+1]}, s34, v{G+i}")
        for i in range(8): A(f"v_mul_f32 v{E[i]}, s35, v{O[i]}")
        for i in range(8): A(f"v_exp_f32 v{E[i]}, v{E[i]}")
        for i in range(8): A(f"v_add_f32 v{E[i]}, 1.0, v{E[i]}")
        for i in range(8): A(f"v_rcp_f32 v{E[i]}, v{E[i]}")
        for i in range(8): A(f"v_mul_f32 v{E[i]}, v{O[i]}, v{E[i]}")
        for i in range(4): A(f"v_cvt_pk_bf16_f32 v{G+i}, v{E[2*i]}, v{E[2*i+1]}")
        A(f"v_permlane16_swap_b32 v{G}, v{G+2}")
        A(f"v_permlane16_swap_b32 v{G+1}, v{G+3}")
        sp, xp = SP + 4*fp, XP + 4*fp
        for i in range(4):
            a0, a1, b0, b1 = T
            A(f"v_lshlrev_b32 v{a0}, 16, v{sp+i}")
            A(f"v_and_b32 v{a1}, s34, v{sp+i}")
            A(f"v_lshlrev_b32 v{b0}, 16, v{G+i}")
            A(f"v_and_b32 v{b1}, s34, v{G+i}")
            A(f"v_mul_f32 v{a0}, v{a0}, v{b0}")
            A(f"v_mul_f32 v{a1}, v{a1}, v{b1}")
            A(f"v_cvt_pk_bf16_f32 v{a0}, v{a0}, v{a1}")
            A(f"v_lshlrev_b32 v{b0}, 16, v{a0}")
            A(f"v_and_b32 v{b1}, s34, v{a0}")
            A(f"v_lshlrev_b32 v{a0}, 16, v{xp+i}")
            A(f"v_and_b32 v{a1}, s34, v{xp+i}")
            A(f"v_add_f32 v{a0}, v{a0}, v{b0}")
            A(f"v_add_f32 v{a1}, v{a1}, v{b1}")
            A(f"v_cvt_pk_bf16_f32 v{sp+i}, v{a0}, v{a1}")
        A(f"buffer_store_dwordx4 {v(sp,4)}, v{vx_}, s[36:39], s40 offen offset:{64*fp}{ST}")
    A("s_endpgm")

    A.label(f"{L}_loader")
    vx, vw = 2, 3
    if F3L: vx = 188
    A("s_sub_u32 s25, s25, 4            ; lw")
    A(f"""
    v_lshlrev_b32 v{vx}, 4, v1
    s_lshl_b32 s26, s25, 12
    """)
    if WIMG:
        A(f"""
        s_mul_i32 s41, s23, {3584*256}
        s_mul_i32 s28, s24, {1792*256}
        s_add_u32 s41, s41, s28
        s_add_u32 s41, s41, s26
        """)
    else:
        assert not F3L
        A(f"""
        s_mul_i32 s41, s24, {1792*2048}
        s_lshl_b32 s28, s23, 8
        s_add_u32 s41, s41, s28
        v_lshrrev_b32 v8, 4, v1          ; l>>4
        v_and_b32 v9, 15, v1             ; p16
        v_lshrrev_b32 v10, 1, v9         ; c32'
        v_and_b32 v9, 1, v9
        v_lshlrev_b32 v9, 4, v9          ; half*16
        s_lshl_b32 s27, s25, 4           ; 16 lw
        v_add_u32 v11, s27, v8           ; 16lw + (l>>4)
        v_lshlrev_b32 v11, 11, v11
        v_add_u32 v11, v11, v9
        """)
        for i in range(4):
            A(f"""
            v_or_b32 v12, {((i>>1)&1)<<2}, v8
            v_xor_b32 v12, v12, v10
            v_lshlrev_b32 v12, 5, v12
            v_add_u32 v12, v12, v11
            v_add_u32 v{vw+i}, {4*i*2048 - 1024*i}, v12
            """)
    A(f"""
    s_mov_b32 s31, 0
    s_add_u32 s27, s26, {TABL}
    s_waitcnt lgkmcnt(0)
    """)
    if WIMG:
        srd_from(A, 16, 8, 9, W2I_OFF, W2I_SZ)
    else:
        srd_from(A, 16, 6, 7, 0, 3584 * 2048)
    q = []
    def tables(sr):
        srd_table(A, sr, "tab_f3", 16384)
        A("s_mov_b32 m0, s27")
        for i in range(4):
            A(f"buffer_load_dwordx4 v{vx}, s[{sr}:{sr+3}], s26 offen offset:{1024*i} lds"); q.append('t')
    def issue(tag):
        for half in range(2):
            A(f"s_add_u32 m0, s31, s26\ns_add_u32 s31, s31, {STAGE}")
            for i in range(4):
                A(f"buffer_load_dwordx4 v{vx if WIMG else vw+i}, s[16:19], s41 offen offset:{1024*i} lds"); q.append(tag)
            A(f"s_add_u32 s41, s41, {0 if cfg.get('fixw') else 64*(256 if WIMG else 2048)}")
        A(f"s_cmp_eq_u32 s31, {STAGE*NS}\ns_cselect_b32 s31, 0, s31")
    def wait_for(tag, text=True):
        last = max(i for i, t in enumerate(q) if t == tag)
        n = len(q) - 1 - last
        if text: A(f"s_waitcnt vmcnt({n})")
        return n
    if F3L:
        p0, p1, p2 = f3_consumer(A, cfg, YS=44, SS=12)
        issue(0)
        A("v_mov_b32 v72, v1")
        p0(); q.extend(['y'] * 5)
        tables(48)
        issue(1); issue(2)
        srd_from(A, 12, 8, 9, S_OFF, S_SZ)
        wait_for(0); A("s_barrier")
        p1(wait_for('y', False))
        wait_for(1); A("s_barrier"); issue(3)
        def mid():
            wait_for(2); A("s_barrier"); issue(4)
        def after():
            pass
        p2(after, mid); q.extend(['st'] * 4)
        wait_for(3); A("s_barrier"); issue(5)
        wait_for(4); A("s_barrier"); issue(6)
        wait_for(5); A("s_barrier"); issue(7)
        A(f"""
        s_cmp_lg_u32 s25, 0
        s_cbranch_scc1 {L}_nosig
        s_lshr_b32 s60, s20, 2
        s_lshl_b32 s60, s60, 2
        v_mov_b32 v8, s60
        v_mov_b32 v9, 1
        s_mov_b64 exec, 1
        global_atomic_add v8, v9, s[54:55] sc1
        s_mov_b64 exec, -1
        {L}_nosig:
        s_mov_b32 s30, 5
        """)
    else:
        tables(44)
        for i in range(3): issue(i)
        wait_for('t')
        A("s_barrier")
        wait_for(0)
        A("s_barrier")
        A("s_mov_b32 s30, 0")
    A.label(f"{L}_lloop")
    A("s_waitcnt vmcnt(8)")
    A("s_barrier")
    issue('l')
    A(f"""
    s_add_u32 s30, s30, 1
    s_cmp_lt_u32 s30, 10
    s_cbranch_scc1 {L}_lloop
    """)
    q.clear(); q.extend([11]*8 + [12]*8)
    wait_for(11); A("s_barrier")
    if F3L:
        A(f"""
        v_and_b32 v8, 3, v72
        v_lshlrev_b32 v8, 2, v8
        s_lshl_b32 s60, s22, 4
        v_add_u32 v8, s60, v8
        global_load_dword v9, v8, s[54:55] sc1
        """)
    else:
        A(f"""
        s_lshl_b32 s60, s22, 2
        v_mov_b32 v8, s60
        global_load_dword v9, v8, s[54:55] sc1
        """)
    q.append('p')
    issue(13)
    wait_for('p')
    def ready(neg):
        if F3L:
            A(f"v_cmp_gt_u32 vcc, 4, v9\ns_cmp_eq_u64 vcc, 0")
        else:
            A("v_readfirstlane_b32 s60, v9\ns_cmp_ge_u32 s60, 16")
    ready(0)
    A(f"""
    s_cbranch_scc1 {L}_ready
    s_mov_b32 s70, 0
    {L}_poll:
    s_add_u32 s70, s70, 1
    s_cmp_ge_u32 s70, {SPIN}
    s_cbranch_scc1 {L}_ready
    s_sleep 1
    global_load_dword v9, v8, s[54:55] sc1
    s_waitcnt vmcnt(0)
    """)
    ready(1)
    A(f"""
    s_cbranch_scc0 {L}_poll
    {L}_ready:
    """)
    A("s_barrier")
    wait_for(13); A("s_barrier")
    A("s_endpgm")
```

```python
from asmlib import *
from layout import *
from k1 import srd_from, srd_table

STAGE = 16384
NS = 8
NSTEP = 28
TABL = NS * STAGE
STG = TABL + 16384
LDS_K3 = STG + 16384
SPIN = 400000

def f3_consumer(A, cfg, YS=44, SS=16):
    Y32 = cfg.get('y32')
    D1 = [0, 32]
    TW, YP, RD = 112, 144, 160
    TAB = 0
    SP = RD
    T = [176, 177, 178, 179, 180, 181]
    vny, vw_, vr_, vt_, vy, vz = 182, 183, 184, 185, 186, 187
    lane = 72
    def part0():
        srd_from(A, YS, 8, 9, Y1_OFF, Y1_SZ)
        A(f"""
        s_lshl_b32 s60, s25, 6
        v_add_u32 v{T[0]}, s60, v{lane}            ; t = w*64 + lane
        v_lshrrev_b32 v{vy}, {1 if Y32 else 2}, v{T[0]}
        v_lshlrev_b32 v{vy}, {13 if Y32 else 14}, v{vy}
        v_and_b32 v{T[1]}, {1 if Y32 else 3}, v{T[0]}
        v_lshlrev_b32 v{T[1]}, 4, v{T[1]}
        v_add_u32 v{vy}, v{vy}, v{T[1]}            ; Y voffset
        s_lshl_b32 s60, s20, {5 if Y32 else 6}               ; rho*64
        s_add_u32 s61, s60, {1*MB}
        s_add_u32 s62, s60, {2*MB}
        s_add_u32 s63, s60, {3*MB}
        s_add_u32 s64, s60, {16 if cfg.get('pack') else 4*MB}
        s_lshl_b32 s65, s25, 2
        s_add_u32 s64, s64, s65
        v_mov_b32 v{vz}, 0
        """)
        for i in range(4):
            A(f"buffer_load_dwordx4 {v(YP+4*i,4)}, v{vy}, s[{YS}:{YS+3}], s{60+i} offen")
        A(f"buffer_load_dword v{vny}, v{vz}, s[{YS}:{YS+3}], s64 offen")
        A(f"""
        v_and_b32 v{vw_}, 1, v{T[0]}
        v_lshlrev_b32 v{vw_}, 13, v{vw_}
        v_lshrrev_b32 v{T[1]}, 1, v{T[0]}
        v_lshlrev_b32 v{T[1]}, 4, v{T[1]}
        v_add_u32 v{vw_}, v{vw_}, v{T[1]}
        v_add_u32 v{vw_}, {STG}, v{vw_}
        v_and_b32 v{vr_}, 31, v{lane}
        v_lshlrev_b32 v{vr_}, 4, v{vr_}
        v_lshrrev_b32 v{T[1]}, 5, v{lane}
        v_lshlrev_b32 v{T[1]}, 11, v{T[1]}
        v_add_u32 v{vr_}, v{vr_}, v{T[1]}
        s_add_u32 s65, s65, {STG}
        v_add_u32 v{vr_}, s65, v{vr_}
        v_lshlrev_b32 v{vt_}, 4, v{lane}
        v_add_u32 v{vt_}, {TABL}, v{vt_}
        s_mov_b32 s67, 0x05040100
        s_mov_b32 s68, 0x07060302
        s_mov_b32 s69, 0xffff0000
        """)
    def part1(vm=8):
        A(f"s_waitcnt vmcnt({vm})")
        for i in range(4):
            A(f"ds_write_b128 v{vw_}, {v(YP+4*i,4)} offset:{2048*i}")
        A("s_waitcnt lgkmcnt(0)")
    def part2(after_twiddle, mid=None):
        for t in range(2):
            for q in range(4):
                o0 = 2 * (8 * t + q)
                A(f"ds_read2st64_b32 {v(RD+8*t+2*q,2)}, v{vr_} offset0:{o0} offset1:{o0+32}")
        order = [0, 1, 2, 3, 8, 9, 10, 11, 12, 13, 14, 15, 4, 5, 6, 7]
        for i in order:
            dst = a(TAB+4*i,4) if i < 8 else v(TW+4*(i-8),4)
            A(f"ds_read_b128 {dst}, v{vt_} offset:{1024*i}")
        AF = YP
        A("s_waitcnt lgkmcnt(12)")
        for t in range(2):
            for q in range(4):
                a_, b_ = RD + 8*t + 2*q, RD + 8*t + 2*q + 1
                A(f"v_perm_b32 v{AF+4*t+q}, v{b_}, v{a_}, s67")
                A(f"v_perm_b32 v{AF+8+4*t+q}, v{b_}, v{a_}, s68")
        for t in range(2):
            for r in range(2):
                for part in range(2):
                    d = v(D1[r] + 16*part, 16)
                    A(f"v_mfma_f32_32x32x16_bf16 {d}, {v(AF+8*r+4*t,4)}, {a(TAB+8*part+4*t,4)}, {'0' if t == 0 else d}")
        A(f"""
        v_and_b32 v{vw_}, 31, v{lane}
        v_lshlrev_b32 v{vw_}, 6, v{vw_}
        v_lshrrev_b32 v{vr_}, 5, v{lane}
        v_lshlrev_b32 v{vr_}, 4, v{vr_}
        v_add_u32 v{vw_}, v{vw_}, v{vr_}
        s_lshl_b32 s60, s20, 3
        s_lshl_b32 s61, s25, 1
        s_add_u32 s60, s60, s61
        s_lshl_b32 s60, s60, 11
        s_add_u32 s61, s60, 2048
        v_lshlrev_b32 v{T[4]}, 16, v{vny}
        v_and_b32 v{T[5]}, s69, v{vny}
        v_mul_f32 v{T[4]}, 0x35000000, v{T[4]}
        v_mul_f32 v{T[5]}, 0x35000000, v{T[5]}
        s_waitcnt lgkmcnt(0)
        """)
        PK = [RD, YP]
        for r in range(2):
            Dr, Di = D1[r], D1[r] + 16
            for e in range(16):
                t1, t2 = T[(e & 1) * 2], T[(e & 1) * 2 + 1]
                A(f"v_mul_f32 v{t1}, v{Di+e}, v{TW+16+e}")
                A(f"v_mul_f32 v{t2}, v{Di+e}, v{TW+e}")
                A(f"v_fma_f32 v{Di+e}, v{Dr+e}, v{TW+16+e}, v{t2}")
                A(f"v_fma_f32 v{Dr+e}, v{Dr+e}, v{TW+e}, -v{t1}")
                if e & 1:
                    b, q = e >> 3, (e & 7) >> 1
                    A(f"v_cvt_pk_bf16_f32 v{PK[r]+4*b+q}, v{Dr+e-1}, v{Dr+e}")
                    A(f"v_cvt_pk_bf16_f32 v{PK[r]+8+4*b+q}, v{Di+e-1}, v{Di+e}")
            if r == 0:
                seq = [(pin, b) for pin in range(2) for b in range(2)]
                for k, (pin, b) in enumerate(seq):
                    d = v(D1[0], 16)
                    A(f"v_mfma_f32_32x32x16_bf16 {d}, {v(PK[0]+8*pin+4*b,4)}, {a(TAB+16+8*pin+4*b,4)}, {'0' if k == 0 else d}")
                if mid: mid()
        after_twiddle()
        for k, (pin, b) in enumerate(seq):
            d = v(D1[1], 16)
            A(f"v_mfma_f32_32x32x16_bf16 {d}, {v(PK[1]+8*pin+4*b,4)}, {a(TAB+16+8*pin+4*b,4)}, {'0' if k == 0 else d}")
        for r in range(2):
            for e in range(16):
                A(f"v_{'add' if e % 2 == 0 else 'sub'}_f32 v{D1[r]+e}, v{D1[r]+e}, v{T[4+r]}")
            for t in range(2):
                base = SP + 8*r + 4*t
                for h in range(2):
                    for i in range(2):
                        e = 4 * (2*t + h) + 2*i
                        A(f"v_cvt_pk_bf16_f32 v{base+2*h+i}, v{D1[r]+e}, v{D1[r]+e+1}")
                A(f"v_permlane32_swap_b32 v{base}, v{base+2}")
                A(f"v_permlane32_swap_b32 v{base+1}, v{base+3}")
                A(f"buffer_store_dwordx4 {v(base,4)}, v{vw_}, s[{SS}:{SS+3}], s{60+r} offen offset:{32*t} sc1")
    return part0, part1, part2


def gen_gemm4(A, name, cfg):
    L = name
    ST = cfg.get('st', '')
    WIMG = cfg.get('wimg', False)
    A(f"""
    s_load_dwordx2 s[6:7], s[0:1], {ARG_W2}
    s_load_dwordx2 s[8:9], s[0:1], {ARG_WS}
    s_load_dwordx2 s[4:5], s[0:1], {ARG_X}
    s_load_dwordx4 s[52:55], s[0:1], {ARG_OUT}
    v_readfirstlane_b32 s25, v0
    s_lshr_b32 s25, s25, 6
    v_and_b32 v1, 63, v0             ; lane
    s_cmp_ge_u32 s25, 4
    s_cbranch_scc1 {L}_loader
    """)
    WA, WB = 0, 32
    wa = 64
    lane, t0, t1, t2, t3 = 72, 73, 74, 75, 76
    ex, vx_, vs_ = 77, 78, 79
    XR = 80
    xb = 188
    wa2 = 176
    XP, SP = 144, 160
    F3L = cfg.get('f3l')
    if not F3L:
        p0, p1, p2 = f3_consumer(A, cfg)
    HT = 112 * 1024
    def xloads(slot):
        r = []
        for h in range(2):
            for tm in range(2):
                r.append(f"buffer_load_dwordx4 {v(XR+16*slot+8*h+4*tm,4)}, v{xb if tm else ex}, s[56:59], s33 offen offset:{1024*h}")
        r.append(f"s_add_u32 s33, s33, {0 if cfg.get('fixx') else 2048}")
        return r
    A(f"""
    v_mov_b32 v{lane}, v1
    v_lshlrev_b32 v{ex}, 4, v1
    v_add_u32 v{xb}, {HT}, v{ex}
    s_lshl_b32 s33, s22, 3
    s_lshl_b32 s28, s25, 1
    s_add_u32 s33, s33, s28
    s_mul_i32 s33, s33, 112
    s_mul_i32 s28, s24, 56
    s_add_u32 s33, s33, s28
    s_lshl_b32 s33, s33, 10
    s_waitcnt lgkmcnt(0)
    """)
    if not F3L: p0()
    srd_from(A, 56, 8, 9, H_OFF, H_SZ)
    for x in xloads(0) + xloads(1) + (xloads(2) if F3L else []): A(x)
    A(f"""
    v_and_b32 v{t0}, 15, v{lane}     ; i = l&15
    v_lshrrev_b32 v{t1}, 4, v{lane}  ; G
    v_lshrrev_b32 v{t2}, 2, v{t0}    ; r'
    v_and_b32 v{t3}, 1, v{t1}
    v_lshlrev_b32 v{t3}, 2, v{t3}
    v_or_b32 v{t3}, v{t3}, v{t2}     ; f(k)
    v_lshlrev_b32 v{t1}, 3, v{t1}    ; 8G
    v_add_u32 v{t1}, v{t1}, v{t2}    ; 8G + r'
    v_lshlrev_b32 v{t1}, 8, v{t1}    ; *256
    v_and_b32 v{t0}, 3, v{t0}        ; cc
    v_lshlrev_b32 v{t0}, 3, v{t0}
    v_add_u32 v{t1}, v{t1}, v{t0}
    """)
    for tf in range(8):
        A(f"""
        v_xor_b32 v{t0}, {tf}, v{t3}
        v_lshlrev_b32 v{t0}, 5, v{t0}
        v_add_u32 v{wa+tf}, v{t0}, v{t1}
        """)
    for i in range(32, 64):
        A(f"v_accvgpr_write_b32 a{i}, 0")
    A(f"""
    v_and_b32 v{t1}, 15, v{lane}         ; i
    v_lshrrev_b32 v{t2}, 4, v{lane}      ; G
    v_and_b32 v{t3}, 1, v{t2}
    v_lshlrev_b32 v{t3}, 1, v{t3}
    v_lshrrev_b32 v{t2}, 1, v{t2}
    v_or_b32 v{t2}, v{t2}, v{t3}         ; cG
    v_lshlrev_b32 v{t2}, 4, v{t2}
    v_lshlrev_b32 v{vs_}, 11, v{t1}
    v_add_u32 v{vs_}, v{vs_}, v{t2}
    v_bfe_u32 v{t3}, v{t1}, 2, 1
    v_lshlrev_b32 v{t3}, 3, v{t3}
    v_and_b32 v{vx_}, 3, v{t1}
    v_add_u32 v{vx_}, v{vx_}, v{t3}
    v_lshlrev_b32 v{vx_}, 6, v{vx_}
    v_lshrrev_b32 v{t3}, 3, v{t1}
    v_add_u32 v{vx_}, v{vx_}, v{t3}
    v_lshlrev_b32 v{vx_}, 11, v{vx_}
    v_add_u32 v{vx_}, v{vx_}, v{t2}
    s_lshl_b32 s28, s22, 4
    s_lshl_b32 s29, s25, 2
    s_add_u32 s28, s28, s29
    s_lshl_b32 s29, s24, 1
    s_add_u32 s28, s28, s29
    s_lshr_b32 s29, s28, 7               ; gamma
    s_lshl_b32 s29, s29, 4
    s_lshr_b32 s30, s28, 5
    s_and_b32 s30, s30, 1
    s_lshl_b32 s30, s30, 2
    s_add_u32 s29, s29, s30
    s_lshl_b32 s29, s29, 6
    s_lshr_b32 s30, s28, 6
    s_and_b32 s30, s30, 1
    s_lshl_b32 s30, s30, 5
    s_add_u32 s29, s29, s30
    s_and_b32 s30, s28, 31
    s_add_u32 s29, s29, s30              ; nS
    s_lshl_b32 s29, s29, 11
    s_lshl_b32 s30, s23, 8               ; cb2*256
    s_add_u32 s40, s29, s30
    s_lshl_b32 s28, s28, 14
    s_add_u32 s42, s28, s30              ; s soffset
    s_lshl_b32 s26, s22, 3
    s_add_u32 s26, s26, s23
    s_lshl_b32 s26, s26, 1
    s_add_u32 s26, s26, s24
    s_xor_b32 s27, s26, 1
    s_lshl_b32 s26, s26, 14
    s_lshl_b32 s27, s27, 14
    s_lshl_b32 s28, s25, 12
    s_add_u32 s26, s26, s28
    s_add_u32 s27, s27, s28
    """)
    srd_from(A, 12, 4, 5, 0, 4 * MB)
    srd_from(A, 16, 8, 9, S_OFF, S_SZ)
    srd_from(A, 36, 52, 53, 0, 4 * MB)
    srd_from(A, 48, 8, 9, E_OFF, E_SZ)
    if not F3L:
        p1()
        A("s_barrier")
        def after_twiddle():
            for x in xloads(2): A(x)
        p2(after_twiddle)
    for i in range(32):
        A(f"v_accvgpr_write_b32 a{i}, 0")
    for tf in range(8):
        A(f"v_add_u32 v{wa2+tf}, 65536, v{wa+tf}")

    def reads(wset, stage, h):
        r = []
        base = wa if stage < 4 else wa2
        for tf in range(8):
            for u in range(2):
                r.append(f"ds_read_b64_tr_b16 {v(wset+4*tf+2*u,2)}, v{base+tf} offset:{(stage&3)*STAGE+h*8192+u*1024}")
        return r

    def unit(slot, h, wset, rd, extra=(), vm=None, bar=False, postbar=None):
        mf = []
        for tf in range(8):
            order = (0, 1) if tf % 2 == 0 else (1, 0)
            for tm in order:
                d = a(4*(tf*2+tm), 4)
                mf.append(f"v_mfma_f32_16x16x32_bf16 {d}, {v(wset+4*tf,4)}, {v(XR+16*slot+8*h+4*tm,4)}, {d}")
        rd = list(rd); extra = list(extra)
        hasrd = bool(rd)
        for i, m in enumerate(mf):
            if i % 2 == 0:
                n = 14 if hasrd else 14 - i
                A(f"s_waitcnt vmcnt({vm}) lgkmcnt({n})" if (i == 0 and vm is not None) else f"s_waitcnt lgkmcnt({n})")
            A(m)
            if i == 0 and bar:
                A("s_barrier")
                if postbar: postbar()
            if rd: A(rd.pop(0))
            if extra and i >= 2 and i % 2 == 1: A(extra.pop(0))
        for e in extra: A(e)

    early = []
    for fp in range(4):
        early.append(f"buffer_load_dwordx4 {v(SP+4*fp,4)}, v{vs_}, s[16:19], s42 offen offset:{64*fp} sc1")
    for fp in range(4):
        early.append(f"buffer_load_dwordx4 {v(XP+4*fp,4)}, v{vx_}, s[12:15], s40 offen offset:{64*fp}")

    A("s_barrier")
    stamp(A, cfg, 0); stamp(A, cfg, 2, True)
    for r in reads(WA, 0, 0): A(r)
    def cstep(st, vm, xl=True, extraA=(), postbar=None, last=False):
        j = st & 3
        exA = (xloads((j + 3) % 4) if xl else []) + list(extraA)
        unit(j, 0, WA, reads(WB, st, 1), extra=exA, vm=vm)
        unit(j, 1, WB, [] if last else reads(WA, (st + 1) % 8, 0), bar=(st & 1 == 1 and not last), postbar=postbar)
    def signal():
        A(f"""
        s_cmp_lg_u32 s25, 0
        s_cbranch_scc1 {L}_nosig
        s_lshr_b32 s60, s20, 4
        s_lshl_b32 s60, s60, 2
        v_mov_b32 v{t0}, s60
        v_mov_b32 v{t1}, 1
        s_mov_b64 exec, 1
        global_atomic_add v{t0}, v{t1}, s[54:55] sc1
        s_mov_b64 exec, -1
        {L}_nosig:
        """)
    if F3L:
        for st in range(4): cstep(st, 8)
    else:
        cstep(0, 12); cstep(1, 12); cstep(2, 12); cstep(3, 8, postbar=signal)
    A("s_mov_b32 s30, 0")
    A.label(f"{L}_cloop")
    for st in (4, 5, 6, 7, 0, 1, 2, 3): cstep(st, 8)
    A(f"""
    s_add_u32 s30, s30, 1
    s_cmp_lt_u32 s30, 2
    s_cbranch_scc1 {L}_cloop
    """)
    for st in (4, 5, 6, 7): cstep(st, 8)
    cstep(0, 8, extraA=early); cstep(1, 16, xl=False); cstep(2, 12, xl=False); cstep(3, 8, xl=False, last=True)
    stamp(A, cfg, 1); stamp(A, cfg, 3, True)
    RP = 32
    SND = 0
    TMP = 80
    OW = 80
    def send(tm):
        for tf in range(8):
            for r in range(4):
                A(f"v_accvgpr_read_b32 v{TMP+4*tf+r}, a{4*(tf*2+tm)+r}")
        for k in range(8):
            for i in range(2):
                A(f"v_cvt_pk_bf16_f32 v{SND+2*k+i}, v{TMP+4*k+2*i}, v{TMP+4*k+2*i+1}")
        for k in range(16):
            A(f"v_min_u32 v{SND+k}, s34, v{SND+k}")
        for i in range(4):
            A(f"buffer_store_dwordx4 {v(SND+4*i,4)}, v{ex}, s[48:51], s26 offen offset:{1024*i} sc1")
    def own(tm):
        for tf in range(8):
            for r in range(4):
                A(f"v_accvgpr_read_b32 v{OW+4*tf+r}, a{4*(tf*2+tm)+r}")
    def fetch(R=RP):
        for i in range(4):
            A(f"buffer_load_dwordx4 {v(R+4*i,4)}, v{ex}, s[48:51], s27 offen offset:{1024*i} sc1")
    P2 = cfg.get('poll2')
    PK = cfg.get('pkepi')
    RP1 = 48
    A(f"""
    s_mov_b32 s34, 0xfffffffe
    s_mov_b32 s35, 0xbfb8aa3b
    s_cmp_eq_u32 s24, 0
    s_cbranch_scc1 {L}_kh0
    """)
    send(0); fetch(); own(1)
    A(f"s_branch {L}_sent")
    A.label(f"{L}_kh0")
    send(1); fetch(); own(0)
    A.label(f"{L}_sent")
    A("s_mov_b32 s70, 0")
    def check(R):
        A(f"v_max3_u32 v{t0}, v{R}, v{R+1}, v{R+2}")
        for i in range(3, 15, 2):
            A(f"v_max3_u32 v{t0}, v{t0}, v{R+i}, v{R+i+1}")
        A(f"""
        v_max_u32 v{t0}, v{t0}, v{R+15}
        v_cmp_eq_u32 vcc, -1, v{t0}
        s_nop 4
        """)
    if P2:
        A(f"s_sleep {P2}")
        fetch(RP1)
        A.label(f"{L}_chk")
        A("s_waitcnt vmcnt(4)")
        check(RP)
        A(f"s_cbranch_vccz {L}_got")
        fetch(RP)
        A("s_waitcnt vmcnt(4)")
        check(RP1)
        A(f"""
        s_cbranch_vccz {L}_got1
        s_add_u32 s70, s70, 1
        s_cmp_ge_u32 s70, {SPIN}
        s_cbranch_scc1 {L}_got1
        """)
        fetch(RP1)
        A(f"s_branch {L}_chk")
    else:
        A.label(f"{L}_chk")
        A("s_waitcnt vmcnt(0)")
        check(RP)
        A(f"""
        s_cbranch_vccz {L}_got
        s_add_u32 s70, s70, 1
        s_cmp_ge_u32 s70, {SPIN}
        s_cbranch_scc1 {L}_got
        """)
        fetch()
        A(f"s_branch {L}_chk")
    def final(R):
        stamp(A, cfg, 4)
        A("s_mov_b32 s34, 0xffff0000")
        E = [112 + i for i in range(8)]
        G = 120
        T = [124, 125, 126, 127]
        K = 128
        if PK:
            A(f"v_mov_b32 v{K}, s35\nv_mov_b32 v{K+1}, s35\nv_mov_b32 v{K+2}, 1.0\nv_mov_b32 v{K+3}, 1.0")
        for fp in range(4):
            O = [OW + 4*(2*fp + t) + r for t in range(2) for r in range(4)]
            for t in range(2):
                for i in range(2):
                    src = R + 2*(2*fp + t) + i
                    A(f"v_lshlrev_b32 v{E[4*t+2*i]}, 16, v{src}")
                    A(f"v_and_b32 v{E[4*t+2*i+1]}, s34, v{src}")
            if PK:
                for i in range(0, 8, 2): A(f"v_pk_add_f32 {v(O[i],2)}, {v(O[i],2)}, {v(E[i],2)}")
            else:
                for i in range(8): A(f"v_add_f32 v{O[i]}, v{O[i]}, v{E[i]}")
            for i in range(4):
                A(f"v_cvt_pk_bf16_f32 v{G+i}, v{O[2*i]}, v{O[2*i+1]}")
            for i in range(4):
                A(f"v_lshlrev_b32 v{O[2*i]}, 16, v{G+i}")
                A(f"v_and_b32 v{O[2*i+1]}, s34, v{G+i}")
            if PK:
                for i in range(0, 8, 2): A(f"v_pk_mul_f32 {v(E[i],2)}, {v(O[i],2)}, {v(K,2)}")
            else:
                for i in range(8): A(f"v_mul_f32 v{E[i]}, s35, v{O[i]}")
            for i in range(8): A(f"v_exp_f32 v{E[i]}, v{E[i]}")
            if PK:
                for i in range(0, 8, 2): A(f"v_pk_add_f32 {v(E[i],2)}, {v(E[i],2)}, {v(K+2,2)}")
            else:
                for i in range(8): A(f"v_add_f32 v{E[i]}, 1.0, v{E[i]}")
            for i in range(8): A(f"v_rcp_f32 v{E[i]}, v{E[i]}")
            if PK:
                for i in range(0, 8, 2): A(f"v_pk_mul_f32 {v(E[i],2)}, {v(O[i],2)}, {v(E[i],2)}")
            else:
                for i in range(8): A(f"v_mul_f32 v{E[i]}, v{O[i]}, v{E[i]}")
            for i in range(4): A(f"v_cvt_pk_bf16_f32 v{G+i}, v{E[2*i]}, v{E[2*i+1]}")
            A(f"v_permlane16_swap_b32 v{G}, v{G+2}")
            A(f"v_permlane16_swap_b32 v{G+1}, v{G+3}")
            sp, xp = SP + 4*fp, XP + 4*fp
            if PK:
                for i in range(4):
                    A(f"v_lshlrev_b32 v{E[2*i]}, 16, v{sp+i}")
                    A(f"v_and_b32 v{E[2*i+1]}, s34, v{sp+i}")
                    A(f"v_lshlrev_b32 v{O[2*i]}, 16, v{G+i}")
                    A(f"v_and_b32 v{O[2*i+1]}, s34, v{G+i}")
                for i in range(4): A(f"v_pk_mul_f32 {v(E[2*i],2)}, {v(E[2*i],2)}, {v(O[2*i],2)}")
                for i in range(4): A(f"v_cvt_pk_bf16_f32 v{G+i}, v{E[2*i]}, v{E[2*i+1]}")
                for i in range(4):
                    A(f"v_lshlrev_b32 v{E[2*i]}, 16, v{G+i}")
                    A(f"v_and_b32 v{E[2*i+1]}, s34, v{G+i}")
                    A(f"v_lshlrev_b32 v{O[2*i]}, 16, v{xp+i}")
                    A(f"v_and_b32 v{O[2*i+1]}, s34, v{xp+i}")
                for i in range(4): A(f"v_pk_add_f32 {v(E[2*i],2)}, {v(O[2*i],2)}, {v(E[2*i],2)}")
                for i in range(4): A(f"v_cvt_pk_bf16_f32 v{sp+i}, v{E[2*i]}, v{E[2*i+1]}")
            else:
                for i in range(4):
                    a0, a1, b0, b1 = T
                    A(f"v_lshlrev_b32 v{a0}, 16, v{sp+i}")
                    A(f"v_and_b32 v{a1}, s34, v{sp+i}")
                    A(f"v_lshlrev_b32 v{b0}, 16, v{G+i}")
                    A(f"v_and_b32 v{b1}, s34, v{G+i}")
                    A(f"v_mul_f32 v{a0}, v{a0}, v{b0}")
                    A(f"v_mul_f32 v{a1}, v{a1}, v{b1}")
                    A(f"v_cvt_pk_bf16_f32 v{a0}, v{a0}, v{a1}")
                    A(f"v_lshlrev_b32 v{b0}, 16, v{a0}")
                    A(f"v_and_b32 v{b1}, s34, v{a0}")
                    A(f"v_lshlrev_b32 v{a0}, 16, v{xp+i}")
                    A(f"v_and_b32 v{a1}, s34, v{xp+i}")
                    A(f"v_add_f32 v{a0}, v{a0}, v{b0}")
                    A(f"v_add_f32 v{a1}, v{a1}, v{b1}")
                    A(f"v_cvt_pk_bf16_f32 v{sp+i}, v{a0}, v{a1}")
            A(f"buffer_store_dwordx4 {v(sp,4)}, v{vx_}, s[36:39], s40 offen offset:{64*fp}{ST}")
        A("s_endpgm")
    A.label(f"{L}_got")
    final(RP)
    if P2:
        A.label(f"{L}_got1")
        final(RP1)

    A.label(f"{L}_loader")
    vx, vw = 2, 3
    if F3L: vx = 188
    A("s_sub_u32 s25, s25, 4            ; lw")
    A(f"""
    v_lshlrev_b32 v{vx}, 4, v1
    s_lshl_b32 s26, s25, 12
    """)
    if WIMG:
        A(f"""
        s_mul_i32 s41, s23, {3584*256}
        s_mul_i32 s28, s24, {1792*256}
        s_add_u32 s41, s41, s28
        s_add_u32 s41, s41, s26
        """)
    else:
        assert not F3L
        A(f"""
        s_mul_i32 s41, s24, {1792*2048}
        s_lshl_b32 s28, s23, 8
        s_add_u32 s41, s41, s28
        v_lshrrev_b32 v8, 4, v1          ; l>>4
        v_and_b32 v9, 15, v1             ; p16
        v_lshrrev_b32 v10, 1, v9         ; c32'
        v_and_b32 v9, 1, v9
        v_lshlrev_b32 v9, 4, v9          ; half*16
        s_lshl_b32 s27, s25, 4           ; 16 lw
        v_add_u32 v11, s27, v8           ; 16lw + (l>>4)
        v_lshlrev_b32 v11, 11, v11
        v_add_u32 v11, v11, v9
        """)
        for i in range(4):
            A(f"""
            v_or_b32 v12, {((i>>1)&1)<<2}, v8
            v_xor_b32 v12, v12, v10
            v_lshlrev_b32 v12, 5, v12
            v_add_u32 v12, v12, v11
            v_add_u32 v{vw+i}, {4*i*2048 - 1024*i}, v12
            """)
    A(f"""
    s_mov_b32 s31, 0
    s_add_u32 s27, s26, {TABL}
    s_waitcnt lgkmcnt(0)
    """)
    if WIMG:
        srd_from(A, 16, 8, 9, W2I_OFF, W2I_SZ)
    else:
        srd_from(A, 16, 6, 7, 0, 3584 * 2048)
    q = []
    def tables(sr):
        srd_table(A, sr, "tab_f3", 16384)
        A("s_mov_b32 m0, s27")
        for i in range(4):
            A(f"buffer_load_dwordx4 v{vx}, s[{sr}:{sr+3}], s26 offen offset:{1024*i} lds"); q.append('t')
    def issue(tag):
        for half in range(2):
            A(f"s_add_u32 m0, s31, s26\ns_add_u32 s31, s31, {STAGE}")
            for i in range(4):
                A(f"buffer_load_dwordx4 v{vx if WIMG else vw+i}, s[16:19], s41 offen offset:{1024*i} lds"); q.append(tag)
            A(f"s_add_u32 s41, s41, {0 if cfg.get('fixw') else 64*(256 if WIMG else 2048)}")
        A(f"s_cmp_eq_u32 s31, {STAGE*NS}\ns_cselect_b32 s31, 0, s31")
    def wait_for(tag, text=True):
        last = max(i for i, t in enumerate(q) if t == tag)
        n = len(q) - 1 - last
        if text: A(f"s_waitcnt vmcnt({n})")
        return n
    if F3L:
        p0, p1, p2 = f3_consumer(A, cfg, YS=44, SS=12)
        issue(0)
        A("v_mov_b32 v72, v1")
        p0(); q.extend(['y'] * 5)
        tables(48)
        issue(1); issue(2)
        srd_from(A, 12, 8, 9, S_OFF, S_SZ)
        wait_for(0); A("s_barrier")
        p1(wait_for('y', False))
        wait_for(1); A("s_barrier"); issue(3)
        def mid():
            wait_for(2); A("s_barrier"); issue(4)
        def after():
            pass
        p2(after, mid); q.extend(['st'] * 4)
        wait_for(3); A("s_barrier"); issue(5)
        wait_for(4); A("s_barrier"); issue(6)
        wait_for(5); A("s_barrier"); issue(7)
        A(f"""
        s_cmp_lg_u32 s25, 0
        s_cbranch_scc1 {L}_nosig
        s_lshr_b32 s60, s20, 2
        s_lshl_b32 s60, s60, 2
        v_mov_b32 v8, s60
        v_mov_b32 v9, 1
        s_mov_b64 exec, 1
        global_atomic_add v8, v9, s[54:55] sc1
        s_mov_b64 exec, -1
        {L}_nosig:
        s_mov_b32 s30, 5
        """)
    else:
        tables(44)
        for i in range(3): issue(i)
        wait_for('t')
        A("s_barrier")
        wait_for(0)
        A("s_barrier")
        A("s_mov_b32 s30, 0")
    A.label(f"{L}_lloop")
    A("s_waitcnt vmcnt(8)")
    A("s_barrier")
    issue('l')
    A(f"""
    s_add_u32 s30, s30, 1
    s_cmp_lt_u32 s30, 10
    s_cbranch_scc1 {L}_lloop
    """)
    q.clear(); q.extend([11]*8 + [12]*8)
    wait_for(11); A("s_barrier")
    if F3L:
        A(f"""
        v_and_b32 v8, 3, v72
        v_lshlrev_b32 v8, 2, v8
        s_lshl_b32 s60, s22, 4
        v_add_u32 v8, s60, v8
        global_load_dword v9, v8, s[54:55] sc1
        """)
    else:
        A(f"""
        s_lshl_b32 s60, s22, 2
        v_mov_b32 v8, s60
        global_load_dword v9, v8, s[54:55] sc1
        """)
    q.append('p')
    issue(13)
    wait_for('p')
    def ready(neg):
        if F3L:
            A(f"v_cmp_gt_u32 vcc, 4, v9\ns_cmp_eq_u64 vcc, 0")
        else:
            A("v_readfirstlane_b32 s60, v9\ns_cmp_ge_u32 s60, 16")
    ready(0)
    A(f"""
    s_cbranch_scc1 {L}_ready
    s_mov_b32 s70, 0
    {L}_poll:
    s_add_u32 s70, s70, 1
    s_cmp_ge_u32 s70, {SPIN}
    s_cbranch_scc1 {L}_ready
    s_sleep 1
    global_load_dword v9, v8, s[54:55] sc1
    s_waitcnt vmcnt(0)
    """)
    ready(1)
    A(f"""
    s_cbranch_scc0 {L}_poll
    {L}_ready:
    """)
    A("s_barrier")
    wait_for(13); A("s_barrier")
    A("s_endpgm")
```

```python
from asmlib import *
from layout import *
from consts import *
from k1 import srd_from, srd_table, wave_reduce
import f2 as F2

STAGE = 49152
XSZ = 32768
NS = 3
KSTEPS = 16
WSTRIDE = 7168
PAO = 2 * STAGE
XS, NYQ, STL = 16384, 32768, 32768 + 64
STATL = NS * STAGE
CSL = STATL + 4096
LDS_KA = 163840
SPIN = 400000
STAT_OFF, STAT_SZ = 0, 16384
SMB, SNB, SSLOT, SRHO = 70, 71, 72, 73

def gen_ka(A, L, cfg):
    SC = ' sc1'
    A(f"""
    s_cmp_ge_u32 s2, 256
    s_cbranch_scc1 {L}_done
    s_load_dwordx2 s[4:5], s[0:1], {ARG_X}
    s_load_dwordx4 s[8:11], s[0:1], {ARG_WR}
    s_load_dwordx2 s[6:7], s[0:1], {ARG_WS}
    s_load_dwordx4 s[60:63], s[0:1], {ARG_W1}
    s_load_dwordx2 s[64:65], s[0:1], {ARG_DBG}
    v_readfirstlane_b32 s25, v0
    v_and_b32 v1, 63, v0
    s_lshr_b32 s25, s25, 6
    s_and_b32 s20, s2, 7             ; xcd
    s_lshr_b32 s{SSLOT}, s2, 3       ; slot
    s_and_b32 s22, s20, 1
    s_lshl_b32 s22, s22, 2
    s_and_b32 s23, s{SSLOT}, 3
    s_add_u32 s{SMB}, s22, s23       ; mb
    s_lshr_b32 s23, s20, 1
    s_mul_i32 s23, s23, 7
    s_lshr_b32 s24, s{SSLOT}, 2
    s_add_u32 s{SNB}, s23, s24       ; nb
    s_lshl_b32 s20, s20, 5
    s_add_u32 s20, s20, s{SSLOT}     ; rho
    s_mov_b32 s{SRHO}, s20
    s_cmp_ge_u32 s25, 4
    s_cbranch_scc1 {L}_hi
    """)
    rows(A, L, cfg)
    A(f"""
    s_cmp_ge_u32 s{SSLOT}, 28
    s_cbranch_scc1 {L}_f2lo
    """)
    consumer(A, L, cfg)
    A.label(f"{L}_hi")
    hi(A, L, cfg)
    loader(A, L, cfg)
    A.label(f"{L}_f2hi")
    A("s_add_u32 s25, s25, 4")
    A("s_waitcnt vmcnt(0)")
    A.label(f"{L}_f2lo")
    A("s_barrier")
    A(f"""
    s_and_b32 s20, s2, 7
    s_lshl_b32 s26, s20, 2
    s_sub_u32 s21, s{SSLOT}, 28
    s_add_u32 s26, s26, s21          ; f
    """)
    def sync():
        if cfg.get('poif2'):
            srd_from(A, 36, 6, 7, E_OFF, E_SZ)
            A(f"""
            s_lshl_b32 s28, s26, 3
            s_add_u32 s28, s28, s25
            s_lshl_b32 s28, s28, 14
            v_lshlrev_b32 v12, 4, v1
            """)
            for i in range(4):
                A(f"v_mov_b32 v{8+i}, -1")
            for i in range(16):
                A(f"buffer_store_dwordx4 v[8:11], v12, s[36:39], s28 offen offset:{1024*(i&3)}{cfg.get('pst', '')}")
                if i & 3 == 3 and i < 15: A("s_add_u32 s28, s28, 4096")
        A(f"""
        s_cmp_lg_u32 s25, 4
        s_cbranch_scc1 {L}_f2go
        s_and_b32 s28, s{SRHO}, 0xfc
        v_mov_b32 v6, s28
        v_mov_b32 v7, 1
        s_mov_b64 exec, 1
        global_atomic_add v6, v7, s[64:65] sc1
        s_mov_b64 exec, -1
        v_lshlrev_b32 v6, 2, v1
        s_mov_b32 s29, 0
        {('s_sleep %d' % cfg['sleep0']) if cfg.get('sleep0') else ''}
        {L}_f2poll:
        {('s_sleep %d' % cfg['sleep']) if cfg.get('sleep') else ''}
        {('s_branch %s_f2go' % L) if cfg.get('nopoll') else ''}
        global_load_dword v7, v6, s[64:65] sc1
        s_add_u32 s29, s29, 1
        s_cmp_ge_u32 s29, {SPIN}
        s_cbranch_scc1 {L}_f2go
        s_waitcnt vmcnt(0)
        v_cmp_gt_u32 vcc, 4, v7
        s_cmp_lg_u64 vcc, 0
        s_cbranch_scc1 {L}_f2poll
        {L}_f2go:
        s_waitcnt vmcnt(0)
        s_barrier
        """)
    c = dict(st=cfg.get('stf2', ''), stamps=cfg.get('stamps'), ka=sync, cont=cfg.get('cont'), pack=cfg.get('pack'), y32=cfg.get('y32'))
    F2.gen_f2(A, f"{L}f", c)
    A.label(f"{L}_done")
    A("s_endpgm")


def rows(A, L, cfg):
    RAW = [8, 16]
    F = [24, 40]
    TAB = 64
    TW = 96
    D1 = [128, 160]
    D2 = [128, 160]
    A(f"""
    s_lshr_b32 s21, s20, 7             ; gamma
    s_lshl_b32 s21, s21, 4
    s_lshr_b32 s22, s20, 5
    s_and_b32 s22, s22, 1              ; hi
    s_lshl_b32 s22, s22, 2
    s_add_u32 s21, s21, s22
    s_lshr_b32 s22, s25, 1
    s_lshl_b32 s22, s22, 3
    s_add_u32 s21, s21, s22
    s_and_b32 s22, s25, 1
    s_lshl_b32 s22, s22, 1
    s_add_u32 s21, s21, s22
    s_lshl_b32 s21, s21, 6
    s_lshr_b32 s22, s20, 6
    s_and_b32 s22, s22, 1
    s_lshl_b32 s22, s22, 5
    s_add_u32 s21, s21, s22
    s_and_b32 s22, s20, 31
    s_add_u32 s21, s21, s22
    s_lshl_b32 s21, s21, 11
    s_add_u32 s22, s21, 131072         ; row B
    v_lshlrev_b32 v2, 4, v1            ; lane*16
    s_waitcnt lgkmcnt(0)
    """)
    srd_from(A, 12, 4, 5, 0, 4 * MB)
    A(f"""
    buffer_load_dwordx4 v[{RAW[0]}:{RAW[0]+3}], v2, s[12:15], s21 offen
    buffer_load_dwordx4 v[{RAW[0]+4}:{RAW[0]+7}], v2, s[12:15], s21 offen offset:1024
    buffer_load_dwordx4 v[{RAW[1]}:{RAW[1]+3}], v2, s[12:15], s22 offen
    buffer_load_dwordx4 v[{RAW[1]+4}:{RAW[1]+7}], v2, s[12:15], s22 offen offset:1024
    """)
    srd_table(A, 16, "tab_f1", 16384)
    A("s_mov_b32 s26, 4096\ns_mov_b32 s27, 8192\ns_mov_b32 s28, 12288")
    for i in range(16):
        so = ["0", "s26", "s27", "s28"][i >> 2]
        A(f"buffer_load_dwordx4 v[{TAB+4*i}:{TAB+4*i+3}], v2, s[16:19], {so} offen offset:{1024*(i&3)}")
    A(f"""
    s_lshl_b32 s33, s25, 12
    s_add_u32 s33, s33, {PAO}
    v_add_u32 v4, s33, v2
    v_lshrrev_b32 v5, 5, v1
    v_lshlrev_b32 v5, 3, v5
    v_bfe_u32 v6, v1, 2, 2
    v_add_u32 v5, v5, v6
    v_lshlrev_b32 v5, 6, v5
    v_bfe_u32 v6, v1, 4, 1
    v_lshlrev_b32 v6, 5, v6
    v_add_u32 v5, v5, v6
    v_and_b32 v6, 3, v1
    v_lshlrev_b32 v6, 3, v6
    v_add_u32 v5, v5, v6
    v_add_u32 v5, s33, v5
    v_and_b32 v6, 31, v1
    v_lshlrev_b32 v6, 4, v6
    v_lshrrev_b32 v7, 5, v1
    v_lshlrev_b32 v7, 11, v7
    v_add_u32 v6, v6, v7
    s_lshl_b32 s33, s25, 2
    s_add_u32 s33, s33, {PAO + XS}
    v_add_u32 v6, s33, v6
    s_lshl_b32 s33, s25, 4
    s_add_u32 s33, s33, {PAO + STL}
    v_mov_b32 v3, s33
    """)
    A("s_mov_b32 s34, 0xffff0000")
    A("s_waitcnt vmcnt(16)")
    for r in range(2):
        for i in range(8):
            A(f"v_lshlrev_b32 v{F[r]+2*i}, 16, v{RAW[r]+i}")
            A(f"v_and_b32 v{F[r]+2*i+1}, s34, v{RAW[r]+i}")
    S = [56, 57]
    T = [58, 59, 60, 61]
    for r in range(2):
        A(f"v_add_f32 v{S[r]}, v{F[r]}, v{F[r]+1}")
    for i in range(2, 16):
        for r in range(2):
            A(f"v_add_f32 v{S[r]}, v{S[r]}, v{F[r]+i}")
    wave_reduce(A, S)
    for r in range(2):
        A(f"v_readlane_b32 s{44+r}, v{S[r]}, 63")
    for r in range(2):
        A(f"v_mov_b32 v{T[r]}, 0x3a800000")
        A(f"v_mul_f32 v{T[r]}, s{44+r}, v{T[r]}")
    for i in range(16):
        for r in range(2):
            A(f"v_sub_f32 v{T[2+r]}, v{F[r]+i}, v{T[r]}")
            if i == 0:
                A(f"v_mul_f32 v{S[r]}, v{T[2+r]}, v{T[2+r]}")
            else:
                A(f"v_fmac_f32 v{S[r]}, v{T[2+r]}, v{T[2+r]}")
    wave_reduce(A, S)
    for r in range(2):
        A(f"v_readlane_b32 s{46+r}, v{S[r]}, 63")
    for r in range(2):
        A(f"v_cvt_pk_bf16_f32 v{T[r]}, v{T[r]}, v{T[r]}")
        A(f"v_and_b32 v{T[r]}, s34, v{T[r]}")
        A(f"v_mov_b32 v{T[2+r]}, 0x3a800000")
        A(f"v_mul_f32 v{T[2+r]}, s{46+r}, v{T[2+r]}")
        A(f"v_cvt_pk_bf16_f32 v{T[2+r]}, v{T[2+r]}, v{T[2+r]}")
        A(f"v_and_b32 v{T[2+r]}, s34, v{T[2+r]}")
        A(f"v_add_f32 v{T[2+r]}, 0x3727c5ac, v{T[2+r]}")
        A(f"v_cvt_pk_bf16_f32 v{T[2+r]}, v{T[2+r]}, v{T[2+r]}")
        A(f"v_and_b32 v{T[2+r]}, s34, v{T[2+r]}")
        A(f"v_sqrt_f32 v{T[2+r]}, v{T[2+r]}")
        A(f"v_cvt_pk_bf16_f32 v{T[2+r]}, v{T[2+r]}, v{T[2+r]}")
        A(f"v_and_b32 v{T[2+r]}, s34, v{T[2+r]}")
        A(f"v_rcp_f32 v{T[2+r]}, v{T[2+r]}")
    A(f"""
    s_mov_b64 exec, 1
    ds_write_b128 v3, v[58:61]
    s_mov_b64 exec, -1
    """)
    U = [62, 63]
    for i in range(8):
        for r in range(2):
            a0, a1 = F[r]+2*i, F[r]+2*i+1
            A(f"v_sub_f32 v{a0}, v{a0}, v{T[r]}")
            A(f"v_sub_f32 v{a1}, v{a1}, v{T[r]}")
            A(f"v_cvt_pk_bf16_f32 v{U[r]}, v{a0}, v{a1}")
            A(f"v_lshlrev_b32 v{a0}, 16, v{U[r]}")
            A(f"v_and_b32 v{a1}, s34, v{U[r]}")
            A(f"v_mul_f32 v{a0}, v{a0}, v{T[2+r]}")
            A(f"v_mul_f32 v{a1}, v{a1}, v{T[2+r]}")
            A(f"v_cvt_pk_bf16_f32 v{RAW[r]+i}, v{a0}, v{a1}")
    for r in range(2):
        A(f"ds_write_b128 v4, v[{RAW[r]}:{RAW[r]+3}] offset:{2048*r}")
        A(f"ds_write_b128 v4, v[{RAW[r]+4}:{RAW[r]+7}] offset:{2048*r + 1024}")
    A("s_waitcnt lgkmcnt(0)")
    AF = [24, 40]
    for r in range(2):
        for t in range(2):
            for u in range(2):
                A(f"ds_read_b64_tr_b16 v[{AF[r]+4*t+2*u}:{AF[r]+4*t+2*u+1}], v5 offset:{2048*r + 1024*t + 256*u}")
    A("s_waitcnt vmcnt(0) lgkmcnt(0)")
    for r in range(2):
        for part in range(2):
            for t in range(2):
                d = v(D1[r] + 16*part, 16)
                A(f"v_mfma_f32_32x32x16_bf16 {d}, {v(AF[r]+4*t,4)}, {v(TAB+8*part+4*t,4)}, {'0' if t == 0 else d}")
    T = [58, 59, 60, 61]
    NY = [56, 57]
    PK = [192, 208]
    for r in range(2):
        Dr, Di = D1[r], D1[r] + 16
        A(f"v_sub_f32 v{NY[r]}, v{Dr}, v{Dr+1}")
        for i in range(2, 16):
            A(f"v_{'add' if i % 2 == 0 else 'sub'}_f32 v{NY[r]}, v{NY[r]}, v{Dr+i}")
    for r in range(2):
        Dr, Di = D1[r], D1[r] + 16
        for e in range(16):
            t1, t2 = T[0] + (e & 1) * 2, T[1] + (e & 1) * 2
            A(f"v_mul_f32 v{t1}, v{Di+e}, v{TW+16+e}")
            A(f"v_mul_f32 v{t2}, v{Di+e}, v{TW+e}")
            A(f"v_fma_f32 v{Di+e}, v{Dr+e}, v{TW+16+e}, v{t2}")
            A(f"v_fma_f32 v{Dr+e}, v{Dr+e}, v{TW+e}, -v{t1}")
            if e & 1:
                b, q = e >> 3, (e & 7) >> 1
                A(f"v_cvt_pk_bf16_f32 v{PK[r]+4*b+q}, v{Dr+e-1}, v{Dr+e}")
                A(f"v_cvt_pk_bf16_f32 v{PK[r]+8+4*b+q}, v{Di+e-1}, v{Di+e}")
    for r in range(2):
        d = v(D2[r], 16)
        first = True
        for pin in range(2):
            for b in range(2):
                A(f"v_mfma_f32_32x32x16_bf16 {d}, {v(TAB+16+8*pin+4*b,4)}, {v(PK[r]+8*pin+4*b,4)}, {'0' if first else d}")
                first = False
    for r in range(2):
        A(f"v_readlane_b32 s{44+r}, v{NY[r]}, 32")
    for r in range(2):
        A(f"v_add_f32 v{NY[r]}, s{44+r}, v{NY[r]}")
    A(f"v_cvt_pk_bf16_f32 v{NY[0]}, v{NY[0]}, v{NY[1]}")
    PACK = cfg.get('pack')
    A(f"""
    s_lshl_b32 s33, s25, 2
    s_add_u32 s33, s33, {PAO + XS + 8192 if PACK else PAO + NYQ}
    v_mov_b32 v58, s33
    v_cmp_eq_u32 vcc, 0, v1
    v_mov_b32 v59, 1.0
    v_mov_b32 v60, 0.5
    v_cndmask_b32 v59, v59, v60, vcc
    """)
    def nyw():
        A(f"""
        s_mov_b64 exec, 1
        ds_write_b32 v58, v{NY[0]}
        s_mov_b64 exec, -1
        """)
    if not PACK: nyw()
    for r in range(2):
        A(f"v_mul_f32 v{D2[r]}, v{D2[r]}, v59")
    for e in range(8):
        o0 = 2 * (8 * (e >> 2) + (e & 3))
        a_, b_ = 60 + 2 * (e & 1), 61 + 2 * (e & 1)
        A(f"v_cvt_pk_bf16_f32 v{a_}, v{D2[0]+e}, v{D2[1]+e}")
        A(f"v_cvt_pk_bf16_f32 v{b_}, v{D2[0]+8+e}, v{D2[1]+8+e}")
        A(f"ds_write2st64_b32 v6, v{a_}, v{b_} offset0:{o0} offset1:{o0+32}")
    if PACK: nyw()
    A("s_waitcnt lgkmcnt(0)")
    A("s_barrier")
    stamp(A, cfg, 4)


def hi(A, L, cfg):
    SC = cfg.get('scx', ' sc1')
    SCW = cfg.get('scw', ' sc1')
    A(f"""
    s_sub_u32 s25, s25, 4              ; lw
    s_and_b32 s21, s2, 63              ; combo
    s_lshr_b32 s22, s2, 6              ; crange
    s_lshr_b32 s23, s21, 2
    s_and_b32 s24, s21, 3              ; oct
    s_lshl_b32 s26, s24, 3
    s_lshl_b32 s27, s23, 7
    s_add_u32 s27, s27, s26
    s_mul_i32 s28, s27, 1026
    s_add_u32 s29, s28, 32832
    s_add_u32 s30, s28, {2*32832}
    s_add_u32 s31, s28, {3*32832}
    s_lshl_b32 s33, s22, 7
    s_lshl_b32 s34, s25, 5
    s_add_u32 s33, s33, s34
    v_and_b32 v2, 31, v1
    v_add_u32 v2, s33, v2              ; c
    v_lshrrev_b32 v4, 5, v1            ; half
    v_mul_u32_u24 v3, 4104, v4
    v_lshl_add_u32 v3, v2, 1, v3
    s_waitcnt lgkmcnt(0)
    """)
    srd_from(A, 12, 8, 9, 0, 2048 * 1026)
    srd_from(A, 16, 10, 11, 0, 2048 * 1026)
    srd_from(A, 36, 6, 7, WT_OFF, WT_SZ)
    if cfg.get('pfcode'):
        srd_table(A, 40, "ka_kernel", "code_end-ka_kernel")
        A(f"""
        s_mul_i32 s44, s25, {2*8192}
        v_lshlrev_b32 v51, 7, v1
        v_add_u32 v51, s44, v51
        buffer_load_dword v52, v51, s[40:43], 0 offen
        v_add_u32 v51, 8192, v51
        buffer_load_dword v52, v51, s[40:43], 0 offen
        """)
        if cfg['pfcode'] > 1:
            srd_table(A, 44, "tab_f3", 16384)
            A("v_lshlrev_b32 v51, 7, v1")
            A("s_lshl_b32 s56, s25, 13")
            A("v_add_u32 v51, s56, v51")
            A("buffer_load_dword v52, v51, s[44:47], 0 offen")
    so = ["s28", "s29", "s30", "s31"]
    for i in range(4):
        for r in range(4):
            A(f"buffer_load_ushort v{8+4*i+r}, v3, s[12:15], {so[r]} offen offset:{1026*i}")
            A(f"buffer_load_ushort v{24+4*i+r}, v3, s[16:19], {so[r]} offen offset:{1026*i}")
    A(f"""
    s_cmp_eq_u32 s22, 3
    s_cselect_b32 s40, 1, 0
    s_cmp_eq_u32 s25, 0
    s_cselect_b32 s40, s40, 0
    s_cmp_eq_u32 s40, 0
    s_cbranch_scc1 {L}_noex1
    """)
    PACK = cfg.get('pack')
    if PACK:
        A(f"""
        v_and_b32 v5, 7, v1
        v_bfe_u32 v6, v1, 3, 2
        v_lshl_add_u32 v5, v6, 5, v5
        v_add_u32 v5, s27, v5                  ; m
        v_sub_u32 v6, 2048, v5
        v_and_b32 v6, 2047, v6                 ; -m
        v_mul_u32_u24 v5, 1026, v5
        v_mul_u32_u24 v6, 1026, v6
        """)
        for k, (vv, off) in enumerate([(5, 0), (6, 0), (5, 1024), (6, 1024)]):
            A(f"buffer_load_ushort v{40+2*k}, v{vv}, s[12:15], 0 offen offset:{off}")
            A(f"buffer_load_ushort v{41+2*k}, v{vv}, s[16:19], 0 offen offset:{off}")
    else:
        A(f"""
        v_and_b32 v5, 7, v1
        v_mul_u32_u24 v6, 1026, v5
        v_add_u32 v6, 1024, v6
        s_mov_b64 exec, 0xff
        """)
        for r in range(4):
            A(f"buffer_load_ushort v{40+r}, v6, s[12:15], {so[r]} offen")
            A(f"buffer_load_ushort v{44+r}, v6, s[16:19], {so[r]} offen")
        A("s_mov_b64 exec, -1")
    A.label(f"{L}_noex1")
    A(f"""
    s_cmp_ge_u32 s{SSLOT}, 28
    s_cbranch_scc1 {L}_hitab
    """)
    srd_from(A, 48, 4, 5, 0, 4 * MB)
    srd_from(A, 52, 60, 61, 0, 1024 * WSTRIDE)
    vx, vw = 64, 72
    A(f"""
    s_lshr_b32 s56, s{SMB}, 2
    s_lshl_b32 s56, s56, 4
    s_and_b32 s57, s{SMB}, 1
    s_lshl_b32 s57, s57, 2
    s_add_u32 s56, s56, s57          ; p base
    s_lshl_b32 s56, s56, 6
    s_lshr_b32 s57, s{SMB}, 1
    s_and_b32 s57, s57, 1
    s_lshl_b32 s57, s57, 5
    s_add_u32 s56, s56, s57
    s_lshl_b32 s57, s25, 3
    s_add_u32 s56, s56, s57          ; n base
    s_lshl_b32 s56, s56, 11          ; X soffset
    s_lshl_b32 s57, s{SNB}, 8
    v_lshrrev_b32 v76, 5, v1
    v_lshlrev_b32 v76, 3, v76
    v_bfe_u32 v77, v1, 4, 1
    v_lshlrev_b32 v77, 1, v77
    v_add_u32 v76, v76, v77
    v_bfe_u32 v77, v1, 3, 1
    v_add_u32 v76, v76, v77          ; p lane
    v_lshlrev_b32 v76, 17, v76       ; * 64 rows * 2048
    v_and_b32 v77, 7, v1
    v_lshrrev_b32 v78, 4, v1
    """)
    for i in range(8):
        A(f"""
        v_or_b32 v79, {4*(i&1)}, v78
        v_xor_b32 v79, v79, v77
        v_lshlrev_b32 v79, 4, v79
        v_add_u32 v79, v79, v76
        v_add_u32 v{vx+i}, {2048*i - 1024*(i&3)}, v79
        """)
    A(f"""
    v_and_b32 v76, 15, v1             ; p16
    v_lshrrev_b32 v77, 1, v76         ; c32'
    v_and_b32 v76, 1, v76
    v_lshlrev_b32 v76, 4, v76         ; half*16
    s_lshl_b32 s58, s25, 4            ; 16 lw
    v_add_u32 v79, s58, v78           ; 16lw + (l>>4)
    s_mov_b32 s59, {WSTRIDE}
    v_mul_lo_u32 v79, v79, s59
    v_add_u32 v79, v79, v76
    """)
    for i in range(4):
        A(f"""
        v_or_b32 v76, {((i>>1)&1)<<2}, v78
        v_xor_b32 v76, v76, v77
        v_lshlrev_b32 v76, 5, v76
        v_add_u32 v76, v76, v79
        v_add_u32 v{vw+i}, {4*i*WSTRIDE - 1024*i}, v76
        """)
    A(f"""
    s_lshl_b32 s58, s25, 13
    s_lshl_b32 s59, s25, 12
    s_add_u32 s59, s59, {XSZ}
    s_mov_b32 s66, 0
    """)
    issue(A); issue(A)
    A(f"s_branch {L}_hiw")
    A.label(f"{L}_hitab")
    srd_table(A, 48, "tab_f2", F2.NFR * 1024 + 8192)
    A("v_lshlrev_b32 v64, 4, v1")
    for i in range(11):
        A(f"s_add_u32 s56, s25, {4*i}")
        if i == 10:
            A(f"s_min_u32 s56, s56, {F2.NFR-1}")
        A("s_lshl_b32 s56, s56, 10")
        A("s_mov_b32 m0, s56")
        A("buffer_load_dwordx4 v64, s[48:51], s56 offen lds")
    A.label(f"{L}_hiw")
    WTL = PAO + 33280
    A(f"""
    s_lshr_b32 s34, s23, 1
    s_lshl_b32 s34, s34, 10
    s_and_b32 s35, s23, 1
    s_lshl_b32 s35, s35, 9
    s_add_u32 s34, s34, s35
    s_lshl_b32 s35, s26, 4
    s_add_u32 s35, s35, s34
    s_lshl_b32 s34, s25, 12
    s_add_u32 s34, s34, {WTL}
    v_and_b32 v48, 31, v1
    v_lshlrev_b32 v48, 7, v48
    v_lshrrev_b32 v49, 5, v1
    v_lshlrev_b32 v49, 6, v49
    v_add_u32 v48, v48, v49
    v_add_u32 v48, s34, v48
    v_lshlrev_b32 v49, 4, v1
    v_add_u32 v49, s34, v49
    v_lshrrev_b32 v4, 3, v1
    v_add_u32 v4, s33, v4
    v_lshlrev_b32 v4, 13, v4
    v_and_b32 v50, 7, v1
    v_lshlrev_b32 v50, 4, v50
    v_add_u32 v4, v4, v50              ; (c0 + (l >> 3)) * 8192 + (l & 7) * 16
    s_waitcnt vmcnt(0)
    s_cmp_eq_u32 s40, 0
    s_cbranch_scc1 {L}_noex2
    """)
    if PACK:
        for k in range(8):
            A(f"v_lshlrev_b32 v{40+k}, 16, v{40+k}")
        A(f"""
        v_add_f32 v40, v40, v42                ; 2 Ur
        v_sub_f32 v41, v41, v43                ; 2 Ui
        v_add_f32 v44, v44, v46                ; 2 Vr
        v_sub_f32 v45, v45, v47                ; 2 Vi
        v_cmp_gt_u32 vcc, 32, v1
        v_mov_b32 v46, 0.5
        v_mov_b32 v47, -0.5
        v_cndmask_b32 v46, v47, v46, vcc       ; sign / 2
        v_mul_f32 v44, v44, v46
        v_mul_f32 v45, v45, v46
        v_fma_f32 v40, v40, 0.5, v44
        v_fma_f32 v41, v41, 0.5, v45
        v_mul_f32 v40, 0.5, v40
        v_mul_f32 v41, 0.5, v41
        v_cvt_pk_bf16_f32 v40, v40, v41
        v_and_b32 v5, 7, v1
        v_lshlrev_b32 v5, 4, v5
        v_bfe_u32 v6, v1, 3, 2
        v_lshl_add_u32 v5, v6, 2, v5
        v_mov_b32 v6, {513*8192}
        v_mov_b32 v7, {512*8192}
        v_cndmask_b32 v6, v7, v6, vcc
        v_add_u32 v5, v6, v5
        buffer_store_dword v40, v5, s[36:39], s35 offen{SCW}
        """)
    else:
        A(f"""
        v_lshlrev_b32 v5, 4, v5
        v_add_u32 v5, {512*8192}, v5
        v_lshl_or_b32 v40, v44, 16, v40
        v_lshl_or_b32 v41, v45, 16, v41
        v_lshl_or_b32 v42, v46, 16, v42
        v_lshl_or_b32 v43, v47, 16, v43
        s_mov_b64 exec, 0xff
        buffer_store_dwordx4 v[40:43], v5, s[36:39], s35 offen{SCW}
        s_mov_b64 exec, -1
        """)
    A.label(f"{L}_noex2")
    for i in range(4):
        for r in range(4):
            A(f"v_lshl_or_b32 v{8+4*i+r}, v{24+4*i+r}, 16, v{8+4*i+r}")
        A(f"ds_write_b128 v48, v[{8+4*i}:{11+4*i}] offset:{16*i}")
    A("s_waitcnt lgkmcnt(0)")
    for j in range(4):
        A(f"ds_read_b128 v[{24+4*j}:{27+4*j}], v49 offset:{1024*j}")
    for j in range(4):
        A(f"s_waitcnt lgkmcnt({3-j})")
        A(f"s_add_u32 s34, s35, {j*8*8192}")
        A(f"buffer_store_dwordx4 v[{24+4*j}:{27+4*j}], v4, s[36:39], s34 offen{SCW}")
    srd_from(A, 40, 6, 7, X1_OFF, X1_SZ)
    srd_from(A, 44, 6, 7, STAT_OFF, STAT_SZ)
    A(f"""
    v_and_b32 v80, 255, v0             ; t
    v_and_b32 v81, 1, v80
    v_lshlrev_b32 v81, 13, v81
    v_lshrrev_b32 v82, 1, v80
    v_lshlrev_b32 v82, 4, v82
    v_add_u32 v81, v81, v82
    v_add_u32 v81, {PAO + XS}, v81
    v_lshrrev_b32 v82, 2, v80
    v_lshlrev_b32 v82, 14, v82
    v_and_b32 v83, 3, v80
    v_lshlrev_b32 v83, 4, v83
    v_add_u32 v82, v82, v83
    s_lshl_b32 s33, s{SRHO}, 6          ; rho*64
    s_add_u32 s26, s33, {1*MB}
    s_add_u32 s27, s33, {2*MB}
    s_add_u32 s28, s33, {3*MB}
    s_add_u32 s29, s33, {4*MB}
    v_lshlrev_b32 v83, 4, v1            ; lane*16
    v_mov_b32 v104, {PAO + NYQ}
    v_add_u32 v105, {PAO + STL}, v83
    s_barrier                           ; B1
    """)
    for i in range(4):
        A(f"ds_read_b128 v[{84+4*i}:{87+4*i}], v81 offset:{2048*i}")
    A("ds_read_b128 v[100:103], v104")
    A("ds_read_b128 v[108:111], v105")
    for i in range(4):
        A(f"s_waitcnt lgkmcnt({5-i})")
        so_ = ["s33", "s26", "s27", "s28"][i]
        A(f"buffer_store_dwordx4 v[{84+4*i}:{87+4*i}], v82, s[40:43], {so_} offen{SC}")
    A(f"""
    s_waitcnt lgkmcnt(0)
    s_cmp_eq_u32 s25, 0
    s_cbranch_scc0 {L}_nony
    """)
    if not PACK:
        A(f"""
        v_cmp_eq_u32 vcc, 0, v1
        v_cndmask_b32 v100, 0, v100, vcc
        v_cndmask_b32 v101, 0, v101, vcc
        v_cndmask_b32 v102, 0, v102, vcc
        v_cndmask_b32 v103, 0, v103, vcc
        s_mov_b64 exec, 3
        buffer_store_dwordx4 v[100:103], v83, s[40:43], s29 offen{SC}
        """)
    A(f"""
    s_mov_b64 exec, 15
    buffer_store_dwordx4 v[108:111], v83, s[44:47], s33 offen{SC}
    s_mov_b64 exec, -1
    {L}_nony:
    s_cmp_ge_u32 s{SSLOT}, 28
    s_cbranch_scc1 {L}_f2hi
    """)


VX, VW = 64, 72
def issue(A):
    A("s_add_u32 m0, s66, s58")
    for i in range(8):
        if i == 4: A("s_add_u32 m0, m0, 4096")
        A(f"buffer_load_dwordx4 v{VX+i}, s[48:51], s56 offen offset:{1024*(i&3)} lds")
    A(f"""
    s_add_u32 m0, s66, s59
    s_add_u32 s56, s56, 128
    s_add_u32 s66, s66, {STAGE}
    buffer_load_dwordx4 v{VW}, s[52:55], s57 offen lds
    buffer_load_dwordx4 v{VW+1}, s[52:55], s57 offen offset:1024 lds
    buffer_load_dwordx4 v{VW+2}, s[52:55], s57 offen offset:2048 lds
    buffer_load_dwordx4 v{VW+3}, s[52:55], s57 offen offset:3072 lds
    s_add_u32 s57, s57, {64*WSTRIDE}
    s_cmp_eq_u32 s66, {STAGE*NS}
    s_cselect_b32 s66, 0, s66
    """)


def loader(A, L, cfg):
    A("s_barrier")
    issue(A)
    relay = cfg.get('relayw2', True)
    poison = cfg.get('poison', True) and not cfg.get('poif2')
    q = []
    q.append(('s2', 12))
    def wait_for(tag, alt=0):
        idx = max(i for i, (t, n) in enumerate(q) if t == tag)
        n = sum(c for t, c in q[idx+1:] if t != 'sig')
        sig = any(t == 'sig' for t, c in q[idx+1:])
        if sig:
            lab = A.uid(L + "_w") if hasattr(A, 'uid') else None
            A(f"""
            s_cmp_eq_u32 s25, 0
            s_cbranch_scc1 {L}_wa{tag}
            s_waitcnt vmcnt({n})
            s_branch {L}_wb{tag}
            {L}_wa{tag}:
            s_waitcnt vmcnt({n+1})
            {L}_wb{tag}:
            """)
        else:
            A(f"s_waitcnt vmcnt({n})")
        del q[:idx+1]
    A(f"""
    s_mul_i32 s26, s{SMB}, 28
    s_add_u32 s26, s26, s{SNB}       ; idx
    """)
    if relay:
        CBS = 3584 * 256
        A(f"""
        s_lshl_b32 s27, s26, 4
        s_lshl_b32 s28, s25, 2
        s_add_u32 s27, s27, s28
        s_lshl_b32 s28, s27, 11
        s_lshl_b32 s27, s27, 8
        v_lshlrev_b32 v16, 4, v1         ; lane*16
        v_lshrrev_b32 v17, 4, v1
        v_mul_u32_u24 v17, {CBS // 256}, v17
        v_lshlrev_b32 v17, 8, v17        ; (lane>>4)*CBS
        v_and_b32 v18, 1, v1
        v_lshlrev_b32 v18, 4, v18
        v_add_u32 v17, v17, v18
        v_bfe_u32 v18, v1, 1, 3          ; c32
        s_lshr_b32 s29, s25, 1
        s_lshl_b32 s29, s29, 2           ; ((k>>3)&1)<<2
        """)
        for r in range(4):
            A(f"""
            s_or_b32 s30, s29, {r}
            v_xor_b32 v19, s30, v18
            v_lshlrev_b32 v19, 5, v19
            v_add_u32 v{20+r}, v17, v19
            """)
        srd_from(A, 12, 62, 63, 0, 3584 * 2048)
        srd_from(A, 16, 6, 7, W2I_OFF, W2I_SZ)
    if poison:
        srd_from(A, 36, 6, 7, E_OFF, E_SZ)
        A(f"""
        s_lshl_b32 s30, s26, 2
        s_add_u32 s30, s30, s25
        s_lshl_b32 s30, s30, 10
        v_lshlrev_b32 v24, 4, v1
        v_add_u32 v24, s30, v24
        """)
        for i in range(1, 5):
            A(f"v_add_u32 v{24+i}, {896*1024}, v{24+i-1}")
        for i in range(4):
            A(f"v_mov_b32 v{100+i}, -1")
    for b in range(KSTEPS):
        if 1 <= b < KSTEPS - 1 and b != 14:
            wait_for(f's{b+1}')
        ls = cfg.get('lst', {0: 0, 1: 1, 4: 4, 9: 5})
        if b in ls: stamp(A, cfg, ls[b])
        if b == 14:
            A(f"""
            s_waitcnt vmcnt(0)
            s_mov_b32 s31, 0
            {L}_spoll:
            v_cmp_gt_u32 vcc, 4, v9
            s_cmp_eq_u64 vcc, 0
            s_cbranch_scc1 {L}_sready
            s_add_u32 s31, s31, 1
            s_cmp_ge_u32 s31, {SPIN}
            s_cbranch_scc1 {L}_sready
            s_sleep 1
            global_load_dword v9, v8, s[64:65] sc1
            s_waitcnt vmcnt(0)
            s_branch {L}_spoll
            {L}_sready:
            buffer_load_dwordx2 v[12:13], v10, s[44:47], s33 offen sc1
            """)
            q.clear()
        A("s_barrier")
        if b + 3 < KSTEPS:
            issue(A); q.append((f's{b+3}', 12))
        if relay and b == 3:
            for r in range(4):
                for hf in range(2):
                    A(f"s_add_u32 s30, s28, {r*2048}")
                    A(f"buffer_load_dwordx4 {v(32+8*r+4*hf,4)}, v16, s[12:15], s30 offen offset:{1024*hf}")
            q.append(('w2l', 8))
        if relay and b == 6:
            for r in range(4):
                for hf in range(2):
                    A(f"s_add_u32 s30, s27, {r*256 + hf*4*3584*256}")
                    A(f"buffer_store_dwordx4 {v(32+8*r+4*hf,4)}, v{20+r}, s[16:19], s30 offen{cfg.get('wst', ' sc1')}")
            q.append(('w2s', 8))
        if poison and b == 9:
            for i in range(5):
                A(f"buffer_store_dwordx4 v[100:103], v{24+i}, s[36:39], 0 offen{cfg.get('pst', '')}")
            q.append(('poi', 5))
        if b == 12:
            A(f"""
            s_lshl_b32 s30, s{SMB}, 5
            v_and_b32 v8, 7, v1
            v_lshlrev_b32 v8, 2, v8
            v_add_u32 v8, s30, v8
            global_load_dword v9, v8, s[64:65] sc1
            s_lshl_b32 s33, s{SMB}, 11
            s_lshl_b32 s30, s25, 9
            s_add_u32 s33, s33, s30
            v_lshlrev_b32 v10, 3, v1
            s_add_u32 s30, s30, {STATL}
            v_add_u32 v11, s30, v10
            """)
            q.append(('poll', 1))
    A(f"""
    s_waitcnt vmcnt(0)
    ds_write_b64 v11, v[12:13]
    s_waitcnt lgkmcnt(0)
    s_barrier
    s_endpgm
    """)


def consumer(A, L, cfg):
    XA, WA, XB, WB = 128, 160, 176, 208
    xa0, xa1, wa = 224, 225, 226
    lane, t0, t1, t2, t3 = 230, 231, 232, 233, 234
    ONES, CS = 236, 240
    acc = lambda i, n=1: v(i, n)
    A(f"""
    v_mov_b32 v{lane}, v1
    s_and_b32 s26, s25, 1            ; wm
    s_lshr_b32 s27, s25, 1           ; wf
    v_and_b32 v{t0}, 15, v{lane}     ; i = l&15
    v_lshrrev_b32 v{t1}, 4, v{lane}  ; G
    v_lshrrev_b32 v{t2}, 1, v{t0}    ; sw
    v_xor_b32 v{t2}, v{t2}, v{t1}    ; G ^ sw
    v_lshlrev_b32 v{t2}, 4, v{t2}
    v_lshlrev_b32 v{t3}, 7, v{t0}    ; row*128
    v_add_u32 v{t2}, v{t2}, v{t3}
    s_lshl_b32 s28, s26, 14          ; wm*128*128
    v_add_u32 v{xa0}, s28, v{t2}
    v_xor_b32 v{xa1}, 64, v{xa0}
    v_lshrrev_b32 v{t2}, 2, v{t0}    ; r'
    v_and_b32 v{t3}, 1, v{t1}
    v_lshlrev_b32 v{t3}, 2, v{t3}
    v_or_b32 v{t3}, v{t3}, v{t2}     ; f(k)
    v_lshlrev_b32 v{t1}, 3, v{t1}    ; 8G
    v_add_u32 v{t1}, v{t1}, v{t2}    ; 8G + r'
    v_lshlrev_b32 v{t1}, 8, v{t1}    ; *256
    v_and_b32 v{t0}, 3, v{t0}        ; cc
    v_lshlrev_b32 v{t0}, 3, v{t0}
    v_add_u32 v{t1}, v{t1}, v{t0}
    v_add_u32 v{t1}, {XSZ}, v{t1}
    s_lshl_b32 s28, s27, 2           ; wf*4
    s_lshl_b32 s29, s26, 1
    s_add_u32 s28, s28, s29
    """)
    for tf in range(4):
        A(f"""
        s_xor_b32 s29, s28, {tf}
        v_xor_b32 v{t0}, s29, v{t3}
        v_lshlrev_b32 v{t0}, 5, v{t0}
        v_add_u32 v{wa+tf}, v{t0}, v{t1}
        """)
    t12 = cfg.get('touch', 0)
    if t12 & 1:
        srd_from(A, 44, 60, 61, 0, 1024 * WSTRIDE)
        A(f"""
        s_and_b32 s28, s{SMB}, 3
        s_lshl_b32 s28, s28, 8
        s_lshl_b32 s29, s25, 6
        s_add_u32 s28, s28, s29
        v_add_u32 v250, s28, v{lane}          ; k
        v_mul_u32_u24 v250, {WSTRIDE}, v250
        s_lshl_b32 s28, s{SNB}, 8
        buffer_load_dword v251, v250, s[44:47], s28 offen
        buffer_load_dword v251, v250, s[44:47], s28 offen offset:128
        """)
    if t12 & 2:
        srd_from(A, 48, 62, 63, 0, 3584 * 2048)
        A(f"""
        s_mul_i32 s28, s{SMB}, 28
        s_add_u32 s28, s28, s{SNB}
        s_lshl_b32 s28, s28, 15
        s_lshl_b32 s29, s25, 13
        s_add_u32 s28, s28, s29
        v_lshlrev_b32 v250, 7, v{lane}
        buffer_load_dword v251, v250, s[48:51], s28 offen
        """)
    for i in range(128):
        A(f"v_mov_b32 v{i}, 0")
    for i in range(4): A(f"v_mov_b32 v{ONES+i}, 0x3f803f80")
    for i in range(8): A(f"v_mov_b32 v{CS+i}, 0")
    A(f"""
    s_and_b32 s28, s{SRHO}, 0xfc
    v_mov_b32 v248, s28
    v_mov_b32 v249, 1
    s_cmp_eq_u32 s25, 0
    s_cselect_b32 s37, {cfg.get('sigstep', 1)}, -1     ; wave 0 signals behind the barrier of this step
    """)

    def reads(xset, wset, xreg, h):
        r = []
        xs = [f"ds_read_b128 {v(xset+4*tm,4)}, v{xreg} offset:{2048*tm}" for tm in range(8)]
        ws = []
        for tf in range(4):
            for u in range(2):
                ws.append(f"ds_read_b64_tr_b16 {v(wset+4*tf+2*u,2)}, v{wa+tf} offset:{h*8192+u*1024}")
        for i in range(8):
            r.append(ws[i]); r.append(xs[i])
        return r

    def unit(xset, wset, rd, extra=()):
        mf = []
        for tm in range(8):
            order = range(4) if tm % 2 == 0 else range(3, -1, -1)
            for tf in order:
                d = acc(4*(tf*8+tm), 4)
                mf.append(f"v_mfma_f32_16x16x32_bf16 {d}, {v(wset+4*tf,4)}, {v(xset+4*tm,4)}, {d}")
            if tm in (3, 6):
                tf = 0 if tm == 3 else 1
                d = v(CS + 4*tf, 4)
                mf.append(f"v_mfma_f32_16x16x32_bf16 {d}, {v(wset+4*tf,4)}, {v(ONES,4)}, {d}")
        rd = list(rd); extra = list(extra)
        for i, m in enumerate(mf):
            A(m)
            if i < len(rd):
                A(rd[i])
            elif extra:
                A(extra.pop(0))
        for e in extra: A(e)

    A("s_barrier")
    stamp(A, cfg, 0); stamp(A, cfg, 2, True)
    for r in reads(XA, WA, xa0, 0): A(r)
    A(f"""
    s_mov_b32 s30, 0                 ; step
    s_mov_b32 s31, 0
    s_waitcnt lgkmcnt(0)
    """)
    A.label(f"{L}_cloop")
    A(f"""
    s_add_u32 s32, s31, {STAGE}
    s_cmp_eq_u32 s32, {STAGE*NS}
    s_cselect_b32 s32, 0, s32
    s_sub_u32 s33, s32, s31          ; delta
    s_mov_b32 s31, s32
    """)
    unit(XA, WA, reads(XB, WB, xa1, 1))
    adv = [f"v_add_u32 v{xa0}, s33, v{xa0}"] + [f"v_add_u32 v{wa+t}, s33, v{wa+t}" for t in range(4)]
    for e in adv: A(e)
    A("s_waitcnt lgkmcnt(0)")
    A("s_barrier")
    A(f"""
    s_cmp_lg_u32 s30, s37
    s_cbranch_scc1 {L}_nosig
    s_mov_b64 exec, 1
    global_atomic_add v248, v249, s[64:65] sc1
    s_mov_b64 exec, -1
    {L}_nosig:
    """)
    unit(XB, WB, reads(XA, WA, xa0, 0), extra=[f"v_xor_b32 v{xa1}, 64, v{xa0}"])
    A(f"""
    s_add_u32 s30, s30, 1
    s_cmp_lt_u32 s30, {KSTEPS}
    s_waitcnt lgkmcnt(0)
    s_cbranch_scc1 {L}_cloop
    """)
    stamp(A, cfg, 1); stamp(A, cfg, 3, True)
    CS2, ST, C1, ONE = 160, 176, 192, 194
    A(f"""
    s_lshl_b32 s28, s25, 11
    s_add_u32 s28, s28, {CSL}
    v_lshlrev_b32 v{t0}, 5, v{lane}
    v_add_u32 v{t1}, s28, v{t0}
    v_xor_b32 v{t2}, 2048, v{t1}
    ds_write_b128 v{t1}, {v(CS,4)}
    ds_write_b128 v{t1}, {v(CS+4,4)} offset:16
    v_and_b32 v{t0}, 15, v{lane}
    v_lshrrev_b32 v{t3}, 1, v{t0}
    v_lshlrev_b32 v{t3}, 4, v{t3}
    v_and_b32 v{t0}, 1, v{t0}
    v_lshlrev_b32 v{t0}, 2, v{t0}
    v_add_u32 v{t3}, v{t3}, v{t0}
    s_lshl_b32 s28, s26, 10
    s_add_u32 s28, s28, {STATL}
    v_add_u32 v{t3}, s28, v{t3}
    """)
    srd_from(A, 12, 6, 7, H_OFF, H_SZ)
    A(f"""
    s_lshl_b32 s28, s{SMB}, 4
    s_lshl_b32 s29, s26, 3
    s_add_u32 s28, s28, s29
    s_mul_i32 s28, s28, 112
    s_lshl_b32 s29, s{SNB}, 2
    s_add_u32 s28, s28, s29
    s_lshl_b32 s29, s27, 1
    s_add_u32 s28, s28, s29
    s_lshl_b32 s34, s28, 10
    v_and_b32 v{t0}, 15, v{lane}
    v_lshrrev_b32 v{xa1}, 4, v{lane}  ; G
    v_and_b32 v{xa0}, 1, v{xa1}
    v_lshlrev_b32 v{xa0}, 1, v{xa0}
    v_lshrrev_b32 v{xa1}, 1, v{xa1}
    v_or_b32 v{xa1}, v{xa1}, v{xa0}     ; cG
    v_lshlrev_b32 v{xa1}, 8, v{xa1}
    v_lshlrev_b32 v{t0}, 4, v{t0}
    v_add_u32 v{xa0}, v{t0}, v{xa1}
    s_lshl_b32 s28, s26, 10
    v_add_u32 v{xa0}, s28, v{xa0}
    v_xor_b32 v{xa1}, 1024, v{xa0}
    s_mov_b32 s35, 0xbfb8aa3b        ; -log2(e)
    v_mov_b32 v{ONE}, 1.0
    v_mov_b32 v{ONE+1}, 1.0
    s_waitcnt lgkmcnt(0)
    s_barrier
    """)
    for i in range(8): A(f"v_mov_b32 v{CS2+i}, v{CS+i}")
    A(f"ds_read_b128 {v(CS2+8,4)}, v{t2}")
    A(f"ds_read_b128 {v(CS2+12,4)}, v{t2} offset:16")
    for tm in range(8):
        A(f"ds_read2_b32 {v(ST+2*tm,2)}, v{t3} offset0:{32*tm} offset1:{32*tm+2}")
    A("s_waitcnt lgkmcnt(0)")
    rowstep = 112 * 1024
    P = 196
    nbuf = 0
    pk = cfg.get('pk', True)
    for tm in range(8):
        mu = ST + 2*tm
        A(f"v_mul_f32 v{C1}, s35, v{mu+1}")
        for fp in range(2):
            base = (128, 196)[nbuf % 2]
            nbuf += 1
            U = base + 8
            E = base + 16
            prs = [(4*((2*fp+t)*8+tm) + 2*h, CS2 + 4*(2*fp+t) + 2*h) for t in range(2) for h in range(2)]
            if pk:
                for i, (T, c) in enumerate(prs):
                    A(f"v_pk_fma_f32 {v(U+2*i,2)}, {v(c,2)}, {v(mu,2)}, {v(T,2)} op_sel_hi:[1,0,1] neg_lo:[0,1,0] neg_hi:[0,1,0]")
                for i in range(4):
                    A(f"v_pk_mul_f32 {v(E+2*i,2)}, {v(U+2*i,2)}, {v(C1,2)} op_sel_hi:[1,0]")
                for i in range(8): A(f"v_exp_f32 v{E+i}, v{E+i}")
                for i in range(4):
                    A(f"v_pk_mul_f32 {v(U+2*i,2)}, {v(U+2*i,2)}, {v(mu,2)} op_sel:[0,1] op_sel_hi:[1,1]")
                for i in range(4):
                    A(f"v_pk_add_f32 {v(E+2*i,2)}, {v(E+2*i,2)}, {v(ONE,2)}")
                for i in range(8): A(f"v_rcp_f32 v{E+i}, v{E+i}")
                for i in range(4):
                    A(f"v_pk_mul_f32 {v(E+2*i,2)}, {v(U+2*i,2)}, {v(E+2*i,2)}")
            else:
                for i, (T, c) in enumerate(prs):
                    for h in range(2):
                        A(f"v_fma_f32 v{U+2*i+h}, -v{mu}, v{c+h}, v{T+h}")
                for i in range(8): A(f"v_mul_f32 v{E+i}, v{C1}, v{U+i}")
                for i in range(8): A(f"v_exp_f32 v{E+i}, v{E+i}")
                for i in range(8): A(f"v_mul_f32 v{U+i}, v{mu+1}, v{U+i}")
                for i in range(8): A(f"v_add_f32 v{E+i}, 1.0, v{E+i}")
                for i in range(8): A(f"v_rcp_f32 v{E+i}, v{E+i}")
                for i in range(8): A(f"v_mul_f32 v{E+i}, v{U+i}, v{E+i}")
            for i in range(4): A(f"v_cvt_pk_bf16_f32 v{base+i}, v{E+2*i}, v{E+2*i+1}")
            A(f"v_permlane16_swap_b32 v{base}, v{base+2}")
            A(f"v_permlane16_swap_b32 v{base+1}, v{base+3}")
            A(f"s_add_u32 s36, s34, {rowstep*tm}")
            A(f"buffer_store_dwordx4 {v(base,4)}, v{xa1 if fp else xa0}, s[12:15], s36 offen{cfg.get('st', '')}")
    A("s_endpgm")
```

```python
from asmlib import *
from layout import *
from consts import *
from k1 import srd_from, srd_table, tw_quads, table_text
import numpy as np

NFR = 42
def f2_table():
    fr, tw = f2_tables()
    fl = []
    def tri(c):
        return [c.real, c.imag, -c.imag]
    for g in range(2):
        for qb in range(2):
            fl += tri(fr['B1', g, qb])
    for a in range(2):
        for b in range(2):
            for beta in range(2):
                fl += tri(fr['F64', a, b, beta])
    for beta in range(2):
        fl += tri(fr['A4', 1, beta])
    assert len(fl) == NFR
    a = np.stack([pack_frag(f) for f in fl])
    return np.concatenate([a.reshape(-1), tw_quads(tw.real, tw.imag).reshape(-1)])

def iB1(g, qb): return (g * 2 + qb) * 3
def iF64(a, b, beta): return 12 + ((a * 2 + b) * 2 + beta) * 3
def iA4(beta): return 36 + beta * 3
R_, I_, N_ = 0, 1, 2


def schedule(A, groups, blocks, per_gap, tail=()):
    done = set()
    pend = [dict(b, pos=0) for b in blocks]
    nm = 0
    gend = {}
    def emit_block(b, n=None):
        k = 0
        while b['pos'] < len(b['ins']) and (n is None or k < n):
            A(b['ins'][b['pos']]); b['pos'] += 1; k += 1
        if b['pos'] == len(b['ins']):
            done.add(b['name'])
        return k
    def avail(b):
        a = b['after']
        return a in gend and nm >= gend[a] + b.get('delay', 1)
    def fill(n):
        for b in pend:
            if b['name'] in done:
                continue
            if not avail(b):
                break
            n -= emit_block(b, n)
            if n <= 0:
                break
    for gi, g in enumerate(groups):
        for d in g.get('deps', []):
            for b in pend:
                if b['name'] in done: continue
                assert b['after'] in gend, (gi, d, b['name'])
                emit_block(b)
                if b['name'] == d: break
            assert d in done
        for p in g.get('pre', []): A(p)
        A("s_waitcnt lgkmcnt(0)")
        for mi, m in enumerate(g['mf']):
            A(m); nm += 1
            if mi == 0 and gi + 1 < len(groups):
                for r in groups[gi + 1]['reads']: A(r)
                fill(max(0, per_gap - 3))
            else:
                fill(per_gap)
        gend[gi] = nm
        for p in g.get('post', []): A(p)
    for b in pend:
        if b['name'] not in done: emit_block(b)
    for t in tail: A(t)


def gen_f2(A, name, cfg):
    L = name
    ST = cfg.get('st', '')
    KA = cfg.get('ka')
    LD = ' sc1' if KA else ''
    per_gap = cfg.get('per_gap', 5)
    XI = 8
    DA, DB = 40, 72
    PA = 104
    PB = 136
    W = 152
    T0 = 184
    CB = [216, 228]
    TMP = 240
    vL16, vL64, vLds = 2, 3, 4
    A(f"""
    v_lshlrev_b32 v{vL16}, 4, v1
    v_lshlrev_b32 v{vL64}, 6, v1
    """)
    Y32 = cfg.get('y32')
    vLo = vL64
    if Y32:
        vLo = 7

    srd_table(A, 16, "tab_f2", NFR * 1024 + 8192)
    srd_from(A, 8, 6, 7, X1_OFF, X1_SZ)
    srd_from(A, 12, 6, 7, WT_OFF, WT_SZ)
    srd_from(A, 20, 6, 7, Y1_OFF, Y1_SZ)
    A(f"""
    s_lshl_b32 s27, s26, 3
    s_add_u32 s27, s27, s25            ; cp
    s_lshl_b32 s40, s27, 14
    s_lshl_b32 s41, s27, 14
    s_add_u32 s42, s40, 32             ; col B
    s_add_u32 s43, s41, 8192
    s_mov_b32 s44, s42                 ; third
    s_mov_b32 s45, s43
    s_mov_b32 s46, 2
    """)
    PACK = cfg.get('pack')
    if PACK:
        A(f"""
        s_cmp_eq_u32 s27, 0
        s_cselect_b32 s41, {513*8192}, s41
        """)
    else:
        A(f"""
        s_cmp_eq_u32 s27, {cfg.get('extra_cp', 0)}
        s_cselect_b32 s44, {256*16384}, s44
        s_cselect_b32 s45, {512*8192}, s45
        s_cselect_b32 s46, 3, s46
        """)
    def xloads(so):
        out = []
        out.append(f"s_add_u32 s47, {so}, 4096")
        out.append(f"s_add_u32 s48, {so}, 8192")
        out.append(f"s_add_u32 s49, {so}, 12288")
        for qb in range(2):
            for g in range(2):
                sreg = [so, "s47", "s48", "s49"][g * 2 + qb]
                for part in range(2):
                    r = XI + ((qb * 2 + g) * 2 + part) * 4
                    out.append(f"buffer_load_dwordx4 {v(r,4)}, v{vL64}, s[8:11], {sreg} offen offset:{16*part}{LD}")
        return out
    def wloads(so):
        out = [f"s_add_u32 s50, {so}, 4096"]
        for blk in range(2):
            for g in range(4):
                out.append(f"buffer_load_dwordx4 {v(W+16*blk+4*g,4)}, v{vL16}, s[12:15], {so if blk == 0 else 's50'} offen offset:{1024*g}{LD}")
        return out
    if not KA:
        for t in xloads("s40"): A(t)
        for t in wloads("s41"): A(t)
    for i in range(0 if KA else 6):
        A(f"s_add_u32 s28, s25, {8*i}")
        if i == 5:
            A(f"s_min_u32 s28, s28, {NFR-1}")
        A(f"s_lshl_b32 s28, s28, 10")
        A(f"s_mov_b32 m0, s28")
        A(f"buffer_load_dwordx4 v{vL16}, s[16:19], s28 offen lds")
    A(f"s_mov_b32 s28, {NFR*1024}\ns_add_u32 s29, s28, 4096")
    for i in range(8):
        A(f"buffer_load_dwordx4 {v(T0+4*i,4)}, v{vL16}, s[16:19], {'s28' if i < 4 else 's29'} offen offset:{1024*(i&3)}")
    A(f"v_mov_b32 v{vLds}, v{vL16}")
    A("s_mov_b32 s34, 0xffff0000")
    CONT = cfg.get('cont')
    AT, BT = 43008, 43008 + 8 * 4352
    vAw, vBw, vAr, vBr = 248, 249, 250, 251
    if KA and CONT:
        A(f"""
        s_mul_i32 s28, s25, 4352
        s_add_u32 s28, s28, {AT}
        s_mul_i32 s29, s25, 8448
        s_add_u32 s29, s29, {BT}
        v_lshrrev_b32 v5, 2, v1
        v_lshlrev_b32 v5, 4, v5              ; (l >> 2) * 16
        v_and_b32 v6, 1, v1                  ; part
        v_bfe_u32 v7, v1, 1, 1               ; column
        v_mul_u32_u24 v{vAw}, {2048 + 64}, v6
        v_add_u32 v{vAw}, s28, v{vAw}
        v_mul_u32_u24 v{vBw}, {4096 + 64}, v6
        v_add_u32 v{vBw}, s29, v{vBw}
        v_add_u32 v{vBw}, 128, v{vBw}
        v_cmp_eq_u32 vcc, 0, v7
        v_cndmask_b32 v{vAw}, v{vBw}, v{vAw}, vcc
        v_add_u32 v{vAw}, v5, v{vAw}
        v_lshlrev_b32 v5, 11, v7
        v_add_u32 v{vBw}, v5, v{vAw}
        v_add_u32 v{vAr}, s28, v{vL16}
        s_add_u32 s29, s29, 128
        v_add_u32 v{vBr}, s29, v{vL16}
        """)
        KA()
        stamp(A, cfg, 5)
        A("s_and_b32 s47, s40, 0xffffc000")
        for k in range(4):
            if k: A("s_add_u32 s47, s47, 4096")
            for q in range(4):
                A(f"buffer_load_dwordx4 {v(DA+16*k+4*q,4)}, v{vL16}, s[8:11], s47 offen offset:{1024*q}{LD}")
        for t in wloads("s41"): A(t)
        def areads(j, half):
            g, qb = j >> 1, j & 1
            return [f"ds_read_b128 {v(XI + ((qb*2+g)*2 + part)*4, 4)}, v{vAr} offset:{(2048+64)*part + 1024*(j - 2*half)}" for part in range(2)]
        for half in range(2):
            for q in range(8):
                A(f"s_waitcnt vmcnt({8 + 15 - (8*half + q)})")
                A(f"ds_write_b128 v{vBw if half else vAw}, {v(DA+4*(8*half+q),4)} offset:{256*q}")
            A("s_waitcnt lgkmcnt(0)")
            for j in (2*half, 2*half + 1):
                for t in areads(j, half): A(t)
            A("s_waitcnt lgkmcnt(0)")
    elif KA:
        KA()
        stamp(A, cfg, 5)
        for t in xloads("s40"): A(t)
        for t in wloads("s41"): A(t)
        A("s_waitcnt vmcnt(8)")
    else:
        A("s_waitcnt vmcnt(0)")
        A("s_barrier")
    stamp(A, cfg, 0); stamp(A, cfg, 2, True)

    def creads(setn, base, order=(R_, I_, N_)):
        return [f"ds_read_b128 {v(CB[setn]+4*k,4)}, v{vLds} offset:{(base+order[k])*1024}" for k in range(3)]
    CONJ = (R_, N_, I_)
    def mf(D, X, setn, first, constA):
        cr, ci, cn = (v(CB[setn] + 4 * k, 4) for k in range(3))
        Dr, Di = v(D, 16), v(D + 16, 16)
        xr, xi = v(X[0], 4), v(X[1], 4)
        def one(d, x, c, zero):
            a, b = (c, x) if constA else (x, c)
            return f"v_mfma_f32_32x32x16_bf16 {d}, {a}, {b}, {'0' if zero else d}"
        return [one(Dr, xr, cr, first), one(Di, xr, ci, first), one(Dr, xi, cn, False), one(Di, xi, cr, False)]
    def make(special):
        groups = []
        def add(reads_base, order, D, X, first, constA, deps=(), **kw):
            n = len(groups) & 1
            groups.append(dict(reads=creads(n, reads_base, order), mf=mf(D, X, n, first, constA), deps=list(deps), **kw))
        Dq = [DA, DB]
        xin = lambda g, qb: (XI + ((qb * 2 + g) * 2) * 4, XI + ((qb * 2 + g) * 2 + 1) * 4)
        Tp = lambda qb, b: (PA + ((qb * 2 + b) * 2) * 4, PA + ((qb * 2 + b) * 2 + 1) * 4)
        Pp = lambda blk, b: ((PB if blk == 0 else PA) + (b * 2) * 4, (PB if blk == 0 else PA) + (b * 2 + 1) * 4)
        Up = lambda qb, b: ((PA + 16 if qb == 0 else PB) + (b * 2) * 4, (PA + 16 if qb == 0 else PB) + (b * 2 + 1) * 4)
        for qb in range(2):
            for g in range(2):
                add(iB1(g, qb), (R_, I_, N_), Dq[qb], xin(g, qb), g == 0, False)
        def breads():
            out = []
            for j in range(4):
                g, qb = j >> 1, j & 1
                for part in range(2):
                    out.append(f"ds_read_b128 {v(XI + ((qb*2+g)*2 + part)*4, 4)}, v{vBr} offset:{(4096+64)*part + 1024*j}")
            return out
        if special:
            q = ["s_mov_b32 s47, %d" % (512*8192), "s_add_u32 s48, s47, 4096"]
            for blk in range(2):
                for g in range(4):
                    q.append(f"buffer_load_dwordx4 {v(XI+16*blk+4*g,4)}, v{vL16}, s[12:15], {'s47' if blk == 0 else 's48'} offen offset:{1024*g}{LD}")
            groups[3]['post'] = q
        elif CONT:
            groups[3]['post'] = (["s_cmp_eq_u32 s46, s55", f"s_cbranch_scc0 {L}_xg"] + breads() + [f"s_branch {L}_xd", f"{L}_xg:",
                                  "s_cmp_lt_u32 s46, 2", f"s_cbranch_scc1 {L}_xd"] + xloads("s42") + [f"{L}_xd:"])
        else:
            groups[3]['post'] = xloads("s42")
        for blk in range(2):
            for qb in range(2):
                for b in range(2):
                    deps = []
                    if blk == 0 and b == 0: deps = [f"TW{qb}"]
                    add(iF64(blk, qb, b), (R_, I_, N_), Dq[blk], Tp(qb, b), qb == 0 and b == 0, True, deps)
        for qb in range(2):
            for blk in range(2):
                for b in range(2):
                    deps = []
                    if qb == 0 and b == 0: deps = [f"WM{blk}"]
                    add(iF64(qb, blk, b), CONJ, Dq[qb], Pp(blk, b), blk == 0 and b == 0, False, deps)
        groups[14]['post'] = wloads("s43")
        if special:
            groups[14]['post'] += breads()
        elif CONT and (ALIAS & 2):
            po = [f"v_mov_b32 v{W+i}, -1" for i in range(4)] + ["s_lshl_b32 s47, s27, 14"]
            for i in range(16):
                po.append(f"buffer_store_dwordx4 {v(W,4)}, v{vL16}, s[12:15], s47 offen offset:{1024*(i&3)}")
                if i & 3 == 3 and i < 15: po.append("s_add_u32 s47, s47, 4096")
            groups[14]['post'] = (["s_cmp_lt_u32 s46, 2", f"s_cbranch_scc1 {L}_wp"] + wloads("s43") + [f"s_branch {L}_wd", f"{L}_wp:"]
                                  + po + [f"{L}_wd:"])
        elif CONT:
            groups[14]['post'] = ["s_cmp_lt_u32 s46, 2", f"s_cbranch_scc1 {L}_wd"] + wloads("s43") + [f"{L}_wd:"]
        for qb in range(2):
            for b in range(2):
                deps = [f"TI{qb}"] if b == 0 else []
                if qb == 0:
                    add(iB1(b, 0), CONJ, Dq[0], Up(0, b), b == 0, True, deps)
                else:
                    add(iA4(b), (R_, I_, N_), Dq[1], Up(1, b), b == 0, True, deps)
        blocks = []
        def tw_block(nm, D, dst, after, conj):
            ins = []
            Dr, Di = D, D + 16
            for e in range(16):
                t1, t2 = TMP + 2 * (e & 1), TMP + 2 * (e & 1) + 1
                br, bi = T0 + e, T0 + 16 + e
                ins.append(f"v_mul_f32 v{t1}, v{Di+e}, v{bi}")
                ins.append(f"v_mul_f32 v{t2}, v{Di+e}, v{br}")
                if not conj:
                    ins.append(f"v_fma_f32 v{Di+e}, v{Dr+e}, v{bi}, v{t2}")
                    ins.append(f"v_fma_f32 v{Dr+e}, v{Dr+e}, v{br}, -v{t1}")
                else:
                    ins.append(f"v_fma_f32 v{Di+e}, -v{Dr+e}, v{bi}, v{t2}")
                    ins.append(f"v_fma_f32 v{Dr+e}, v{Dr+e}, v{br}, v{t1}")
                if e & 1:
                    b, q = e >> 3, (e & 7) >> 1
                    ins.append(f"v_cvt_pk_bf16_f32 v{dst(b)[0]+q}, v{Dr+e-1}, v{Dr+e}")
                    ins.append(f"v_cvt_pk_bf16_f32 v{dst(b)[1]+q}, v{Di+e-1}, v{Di+e}")
            blocks.append(dict(name=nm, ins=ins, after=after, delay=2))
        def wm_block(nm, D, blk, after):
            ins = []
            if blk == 0:
                ins.append("s_waitcnt vmcnt(0)" if CONT else "s_waitcnt vmcnt(8)")
            Dr, Di = D, D + 16
            for e in range(16):
                o = 4 * (e & 1)
                t1, t2, wr, wi = TMP + o, TMP + o + 1, TMP + o + 2, TMP + o + 3
                w = W + 16 * blk + e
                ins.append(f"v_lshlrev_b32 v{wr}, 16, v{w}")
                ins.append(f"v_and_b32 v{wi}, s34, v{w}")
                ins.append(f"v_mul_f32 v{t1}, v{Di+e}, v{wi}")
                ins.append(f"v_mul_f32 v{t2}, v{Di+e}, v{wr}")
                ins.append(f"v_fma_f32 v{Di+e}, v{Dr+e}, v{wi}, v{t2}")
                ins.append(f"v_fma_f32 v{Dr+e}, v{Dr+e}, v{wr}, -v{t1}")
                if e & 1:
                    b, q = e >> 3, (e & 7) >> 1
                    ins.append(f"v_cvt_pk_bf16_f32 v{Pp(blk,b)[0]+q}, v{Dr+e-1}, v{Dr+e}")
                    ins.append(f"v_cvt_pk_bf16_f32 v{Pp(blk,b)[1]+q}, v{Di+e-1}, v{Di+e}")
            blocks.append(dict(name=nm, ins=ins, after=after, delay=2))
        def out_block(nm, D, qb, after):
            ins = []
            base = PA if qb == 0 else PA + 16
            for part in range(2):
                for g in range(2):
                    r = base + (part * 2 + g) * 4
                    for q in range(4):
                        s_ = D + 16 * part + 8 * g + 2 * q
                        ins.append(f"v_cvt_pk_bf16_f32 v{r+q}, v{s_}, v{s_+1}")
                    so = ["s51", "s52", "s53", "s54"][g * 2 + qb]
                    ins.append(f"buffer_store_dwordx4 {v(r,4)}, v{vLo}, s[20:23], {so} offen offset:{16*part}{ST}")
            blocks.append(dict(name=nm, ins=ins, after=after, delay=2))
        tw_block("TW0", DA, lambda b: Tp(0, b), 1, False)
        tw_block("TW1", DB, lambda b: Tp(1, b), 3, False)
        def zw_block(nm, D, blk, after):
            ins = []
            for e in range(16):
                u = ((e & 3) >> 1) + 4 * (e >> 2) + 16 * blk
                ins.append(f"ds_write2st64_b32 v{vZ + (e & 1)}, v{D+e}, v{D+16+e} offset0:{u} offset1:{u+IMO}")
            if blk == 0:
                ins.append(f"ds_write2st64_b32 v{vZ}, v{D}, v{D+16} offset0:32 offset1:{32+IMO}")
            blocks.append(dict(name=nm, ins=ins, after=after, delay=2))
        def wms_block(nm, D, blk, after):
            ins = []
            Dr, Di = D, D + 16
            RB = PA + 16
            def rd(c):
                out = []
                for e in range(4*c, 4*c + 4):
                    j = 3 - (e & 3)
                    u = (j >> 1) + 4 * (3 - (e >> 2)) + 16 * (1 - blk)
                    out.append(f"ds_read2st64_b32 {v(RB + 8*(c&1) + 2*(e&3), 2)}, v{vZ + 2 + (j & 1)} offset0:{u} offset1:{u+IMO}")
                return out
            if blk == 0:
                ins.append("s_waitcnt vmcnt(0)")
            ins += rd(0)
            for c in range(4):
                ins.append("s_waitcnt lgkmcnt(0)")
                if c < 3: ins += rd(c + 1)
                for e in range(4*c, 4*c + 4):
                    t1, t2, pr, pi, qr, qi = (TMP + k for k in range(6))
                    rr = RB + 8*(c&1) + 2*(e&3); ri = rr + 1
                    w = W + 16 * blk + e; q = XI + 16 * blk + e
                    ins += [f"v_lshlrev_b32 v{qr}, 16, v{q}", f"v_and_b32 v{qi}, s34, v{q}",
                            f"v_lshlrev_b32 v{pr}, 16, v{w}", f"v_and_b32 v{pi}, s34, v{w}",
                            f"v_mul_f32 v{t1}, v{rr}, v{qr}", f"v_mul_f32 v{t2}, v{rr}, v{qi}",
                            f"v_fma_f32 v{t1}, v{ri}, v{qi}, v{t1}", f"v_fma_f32 v{t2}, -v{ri}, v{qr}, v{t2}",
                            f"v_fma_f32 v{t1}, -v{Di+e}, v{pi}, v{t1}", f"v_fma_f32 v{t2}, v{Dr+e}, v{pi}, v{t2}",
                            f"v_fma_f32 v{Dr+e}, v{Dr+e}, v{pr}, v{t1}", f"v_fma_f32 v{Di+e}, v{Di+e}, v{pr}, v{t2}"]
                    if e & 1:
                        b, qq = e >> 3, (e & 7) >> 1
                        ins.append(f"v_cvt_pk_bf16_f32 v{Pp(blk,b)[0]+qq}, v{Dr+e-1}, v{Dr+e}")
                        ins.append(f"v_cvt_pk_bf16_f32 v{Pp(blk,b)[1]+qq}, v{Di+e-1}, v{Di+e}")
            blocks.append(dict(name=nm, ins=ins, after=after, delay=2))
        if special:
            zw_block("ZW0", DA, 0, 7)
            zw_block("ZW1", DB, 1, 11)
            wms_block("WM0", DA, 0, 11)
            wms_block("WM1", DB, 1, 11)
        else:
            wm_block("WM0", DA, 0, 7)
            wm_block("WM1", DB, 1, 11)
        tw_block("TI0", DA, lambda b: Up(0, b), 15, True)
        tw_block("TI1", DB, lambda b: Up(1, b), 19, True)
        out_block("OUT0", DA, 0, 21)
        out_block("OUT1", DB, 1, 23)

        return groups, blocks
    ZP, IMO, vZ = BT + 8 * 8448, 35, 252
    if Y32:
        A(f"v_lshlrev_b32 v{vLo}, 5, v1")
    A("s_mov_b32 s55, s46")
    def head(groups):
        if Y32:
            A(f"""
            s_and_b32 s51, s40, 32
            s_lshl_b32 s51, s51, 8
            s_and_b32 s52, s40, 0xffffffc0
            s_add_u32 s51, s51, s52
            s_add_u32 s52, s51, 2048
            s_add_u32 s53, s51, 4096
            s_add_u32 s54, s51, 6144
            """)
        else:
            A(f"""
            s_mov_b32 s51, s40
            s_add_u32 s52, s40, 4096
            s_add_u32 s53, s40, 8192
            s_add_u32 s54, s40, 12288
            """)
        for r in groups[0]['reads']: A(r)
        A("s_waitcnt vmcnt(8)")
    def nextcol():
        A(f"""
        s_mov_b32 s40, s42
        s_mov_b32 s41, s43
        s_mov_b32 s42, s44
        s_mov_b32 s43, s45
        s_sub_u32 s46, s46, 1
        """)
    if PACK:
        assert CONT
        A(f"""
        s_cmp_eq_u32 s27, 0
        s_cbranch_scc0 {L}_col
        v_and_b32 v5, 31, v1
        v_lshrrev_b32 v6, 5, v1
        v_lshlrev_b32 v6, 7, v6
        v_add_u32 v5, v5, v6                 ; ml
        v_lshlrev_b32 v5, 2, v5
        v_add_u32 v{vZ}, {ZP}, v5
        v_add_u32 v{vZ+1}, 128, v{vZ}
        v_sub_u32 v{vZ+2}, {ZP + 640}, v5
        v_add_u32 v{vZ+3}, 128, v{vZ+2}
        """)
        groups, blocks = make(True)
        head(groups)
        schedule(A, groups, blocks, per_gap)
        nextcol()
    A.label(f"{L}_col")
    groups, blocks = make(False)
    head(groups)
    schedule(A, groups, blocks, per_gap)
    nextcol()
    A(f"""
    s_cmp_lg_u32 s46, 0
    s_cbranch_scc1 {L}_col
    """)
    stamp(A, cfg, 1); stamp(A, cfg, 3, True)
    A("s_endpgm")
```

```python
from asmlib import *
from layout import *
from k1 import srd_from, srd_table

STAGE = 16384
NS = 8
NSTEP = 28
TABL = NS * STAGE
STG = TABL + 16384
LDS_K3 = STG + 16384
SPIN = 400000

def f3_consumer(A, cfg, YS=44, SS=16):
    Y32 = cfg.get('y32')
    D1 = [0, 32]
    TW, YP, RD = 112, 144, 160
    TAB = 0
    SP = RD
    T = [176, 177, 178, 179, 180, 181]
    vny, vw_, vr_, vt_, vy, vz = 182, 183, 184, 185, 186, 187
    lane = 72
    def part0():
        srd_from(A, YS, 8, 9, Y1_OFF, Y1_SZ)
        A(f"""
        s_lshl_b32 s60, s25, 6
        v_add_u32 v{T[0]}, s60, v{lane}            ; t = w*64 + lane
        v_lshrrev_b32 v{vy}, {1 if Y32 else 2}, v{T[0]}
        v_lshlrev_b32 v{vy}, {13 if Y32 else 14}, v{vy}
        v_and_b32 v{T[1]}, {1 if Y32 else 3}, v{T[0]}
        v_lshlrev_b32 v{T[1]}, 4, v{T[1]}
        v_add_u32 v{vy}, v{vy}, v{T[1]}            ; Y voffset
        s_lshl_b32 s60, s20, {5 if Y32 else 6}               ; rho*64
        s_add_u32 s61, s60, {1*MB}
        s_add_u32 s62, s60, {2*MB}
        s_add_u32 s63, s60, {3*MB}
        s_add_u32 s64, s60, {16 if cfg.get('pack') else 4*MB}
        s_lshl_b32 s65, s25, 2
        s_add_u32 s64, s64, s65
        v_mov_b32 v{vz}, 0
        """)
        for i in range(4):
            A(f"buffer_load_dwordx4 {v(YP+4*i,4)}, v{vy}, s[{YS}:{YS+3}], s{60+i} offen")
        A(f"buffer_load_dword v{vny}, v{vz}, s[{YS}:{YS+3}], s64 offen")
        A(f"""
        v_and_b32 v{vw_}, 1, v{T[0]}
        v_lshlrev_b32 v{vw_}, 13, v{vw_}
        v_lshrrev_b32 v{T[1]}, 1, v{T[0]}
        v_lshlrev_b32 v{T[1]}, 4, v{T[1]}
        v_add_u32 v{vw_}, v{vw_}, v{T[1]}
        v_add_u32 v{vw_}, {STG}, v{vw_}
        v_and_b32 v{vr_}, 31, v{lane}
        v_lshlrev_b32 v{vr_}, 4, v{vr_}
        v_lshrrev_b32 v{T[1]}, 5, v{lane}
        v_lshlrev_b32 v{T[1]}, 11, v{T[1]}
        v_add_u32 v{vr_}, v{vr_}, v{T[1]}
        s_add_u32 s65, s65, {STG}
        v_add_u32 v{vr_}, s65, v{vr_}
        v_lshlrev_b32 v{vt_}, 4, v{lane}
        v_add_u32 v{vt_}, {TABL}, v{vt_}
        s_mov_b32 s67, 0x05040100
        s_mov_b32 s68, 0x07060302
        s_mov_b32 s69, 0xffff0000
        """)
    def part1(vm=8):
        A(f"s_waitcnt vmcnt({vm})")
        for i in range(4):
            A(f"ds_write_b128 v{vw_}, {v(YP+4*i,4)} offset:{2048*i}")
        A("s_waitcnt lgkmcnt(0)")
    if SOUT:
        SROW = """s_lshr_b32 s60, s20, 7
        s_lshl_b32 s60, s60, 4
        s_lshr_b32 s61, s20, 5
        s_and_b32 s61, s61, 1
        s_lshl_b32 s61, s61, 2
        s_add_u32 s60, s60, s61
        s_lshr_b32 s61, s25, 1
        s_lshl_b32 s61, s61, 3
        s_add_u32 s60, s60, s61
        s_and_b32 s61, s25, 1
        s_lshl_b32 s61, s61, 1
        s_add_u32 s60, s60, s61
        s_lshl_b32 s60, s60, 6
        s_lshr_b32 s61, s20, 6
        s_and_b32 s61, s61, 1
        s_lshl_b32 s61, s61, 5
        s_add_u32 s60, s60, s61
        s_and_b32 s61, s20, 31
        s_add_u32 s60, s60, s61
        s_lshl_b32 s60, s60, 11
        s_add_u32 s61, s60, 131072"""
    else:
        SROW = """s_lshl_b32 s60, s20, 3
        s_lshl_b32 s61, s25, 1
        s_add_u32 s60, s60, s61
        s_lshl_b32 s60, s60, 11
        s_add_u32 s61, s60, 2048"""
    def part2(after_twiddle, mid=None):
        for t in range(2):
            for q in range(4):
                o0 = 2 * (8 * t + q)
                A(f"ds_read2st64_b32 {v(RD+8*t+2*q,2)}, v{vr_} offset0:{o0} offset1:{o0+32}")
        order = [0, 1, 2, 3, 8, 9, 10, 11, 12, 13, 14, 15, 4, 5, 6, 7]
        for i in order:
            dst = a(TAB+4*i,4) if i < 8 else v(TW+4*(i-8),4)
            A(f"ds_read_b128 {dst}, v{vt_} offset:{1024*i}")
        AF = YP
        A("s_waitcnt lgkmcnt(12)")
        for t in range(2):
            for q in range(4):
                a_, b_ = RD + 8*t + 2*q, RD + 8*t + 2*q + 1
                A(f"v_perm_b32 v{AF+4*t+q}, v{b_}, v{a_}, s67")
                A(f"v_perm_b32 v{AF+8+4*t+q}, v{b_}, v{a_}, s68")
        for t in range(2):
            for r in range(2):
                for part in range(2):
                    d = v(D1[r] + 16*part, 16)
                    A(f"v_mfma_f32_32x32x16_bf16 {d}, {v(AF+8*r+4*t,4)}, {a(TAB+8*part+4*t,4)}, {'0' if t == 0 else d}")
        A(f"""
        v_and_b32 v{vw_}, 31, v{lane}
        v_lshlrev_b32 v{vw_}, 6, v{vw_}
        v_lshrrev_b32 v{vr_}, 5, v{lane}
        v_lshlrev_b32 v{vr_}, 4, v{vr_}
        v_add_u32 v{vw_}, v{vw_}, v{vr_}
        {SROW}
        v_lshlrev_b32 v{T[4]}, 16, v{vny}
        v_and_b32 v{T[5]}, s69, v{vny}
        v_mul_f32 v{T[4]}, 0x35000000, v{T[4]}
        v_mul_f32 v{T[5]}, 0x35000000, v{T[5]}
        s_waitcnt lgkmcnt(0)
        """)
        PK = [RD, YP]
        for r in range(2):
            Dr, Di = D1[r], D1[r] + 16
            for e in range(16):
                t1, t2 = T[(e & 1) * 2], T[(e & 1) * 2 + 1]
                A(f"v_mul_f32 v{t1}, v{Di+e}, v{TW+16+e}")
                A(f"v_mul_f32 v{t2}, v{Di+e}, v{TW+e}")
                A(f"v_fma_f32 v{Di+e}, v{Dr+e}, v{TW+16+e}, v{t2}")
                A(f"v_fma_f32 v{Dr+e}, v{Dr+e}, v{TW+e}, -v{t1}")
                if e & 1:
                    b, q = e >> 3, (e & 7) >> 1
                    A(f"v_cvt_pk_bf16_f32 v{PK[r]+4*b+q}, v{Dr+e-1}, v{Dr+e}")
                    A(f"v_cvt_pk_bf16_f32 v{PK[r]+8+4*b+q}, v{Di+e-1}, v{Di+e}")
            if r == 0:
                seq = [(pin, b) for pin in range(2) for b in range(2)]
                for k, (pin, b) in enumerate(seq):
                    d = v(D1[0], 16)
                    A(f"v_mfma_f32_32x32x16_bf16 {d}, {v(PK[0]+8*pin+4*b,4)}, {a(TAB+16+8*pin+4*b,4)}, {'0' if k == 0 else d}")
                if mid: mid()
        after_twiddle()
        for k, (pin, b) in enumerate(seq):
            d = v(D1[1], 16)
            A(f"v_mfma_f32_32x32x16_bf16 {d}, {v(PK[1]+8*pin+4*b,4)}, {a(TAB+16+8*pin+4*b,4)}, {'0' if k == 0 else d}")
        for r in range(2):
            for e in range(16):
                A(f"v_{'add' if e % 2 == 0 else 'sub'}_f32 v{D1[r]+e}, v{D1[r]+e}, v{T[4+r]}")
            for t in range(2):
                base = SP + 8*r + 4*t
                for h in range(2):
                    for i in range(2):
                        e = 4 * (2*t + h) + 2*i
                        A(f"v_cvt_pk_bf16_f32 v{base+2*h+i}, v{D1[r]+e}, v{D1[r]+e+1}")
                A(f"v_permlane32_swap_b32 v{base}, v{base+2}")
                A(f"v_permlane32_swap_b32 v{base+1}, v{base+3}")
                A(f"buffer_store_dwordx4 {v(base,4)}, v{vw_}, s[{SS}:{SS+3}], s{60+r} offen offset:{32*t} sc1")
    return part0, part1, part2


def gen_gemm4(A, name, cfg):
    L = name
    ST = cfg.get('st', '')
    WIMG = cfg.get('wimg', False)
    A(f"""
    s_load_dwordx2 s[6:7], s[0:1], {ARG_W2}
    s_load_dwordx2 s[8:9], s[0:1], {ARG_WS}
    s_load_dwordx2 s[4:5], s[0:1], {ARG_X}
    s_load_dwordx4 s[52:55], s[0:1], {ARG_OUT}
    v_readfirstlane_b32 s25, v0
    s_lshr_b32 s25, s25, 6
    v_and_b32 v1, 63, v0             ; lane
    s_cmp_ge_u32 s25, 4
    s_cbranch_scc1 {L}_loader
    """)
    WA, WB = 0, 32
    wa = 64
    lane, t0, t1, t2, t3 = 72, 73, 74, 75, 76
    ex, vx_, vs_ = 77, 78, 79
    XR = 80
    xb = 188
    wa2 = 176
    XP, SP = 144, 160
    F3L = cfg.get('f3l')
    if not F3L:
        p0, p1, p2 = f3_consumer(A, cfg)
    HT = 112 * 1024
    def xloads(slot):
        r = []
        for h in range(2):
            for tm in range(2):
                r.append(f"buffer_load_dwordx4 {v(XR+16*slot+8*h+4*tm,4)}, v{xb if tm else ex}, s[56:59], s33 offen offset:{1024*h}")
        r.append(f"s_add_u32 s33, s33, {0 if cfg.get('fixx') else 2048}")
        return r
    A(f"""
    v_mov_b32 v{lane}, v1
    v_lshlrev_b32 v{ex}, 4, v1
    v_add_u32 v{xb}, {HT}, v{ex}
    s_lshl_b32 s33, s22, 3
    s_lshl_b32 s28, s25, 1
    s_add_u32 s33, s33, s28
    s_mul_i32 s33, s33, 112
    s_mul_i32 s28, s24, 56
    s_add_u32 s33, s33, s28
    s_lshl_b32 s33, s33, 10
    s_waitcnt lgkmcnt(0)
    """)
    if not F3L: p0()
    srd_from(A, 56, 8, 9, H_OFF, H_SZ)
    for x in xloads(0) + xloads(1) + (xloads(2) if F3L else []): A(x)
    A(f"""
    v_and_b32 v{t0}, 15, v{lane}     ; i = l&15
    v_lshrrev_b32 v{t1}, 4, v{lane}  ; G
    v_lshrrev_b32 v{t2}, 2, v{t0}    ; r'
    v_and_b32 v{t3}, 1, v{t1}
    v_lshlrev_b32 v{t3}, 2, v{t3}
    v_or_b32 v{t3}, v{t3}, v{t2}     ; f(k)
    v_lshlrev_b32 v{t1}, 3, v{t1}    ; 8G
    v_add_u32 v{t1}, v{t1}, v{t2}    ; 8G + r'
    v_lshlrev_b32 v{t1}, 8, v{t1}    ; *256
    v_and_b32 v{t0}, 3, v{t0}        ; cc
    v_lshlrev_b32 v{t0}, 3, v{t0}
    v_add_u32 v{t1}, v{t1}, v{t0}
    """)
    for tf in range(8):
        A(f"""
        v_xor_b32 v{t0}, {tf}, v{t3}
        v_lshlrev_b32 v{t0}, 5, v{t0}
        v_add_u32 v{wa+tf}, v{t0}, v{t1}
        """)
    for i in range(32, 64):
        A(f"v_accvgpr_write_b32 a{i}, 0")
    A(f"""
    v_and_b32 v{t1}, 15, v{lane}         ; i
    v_lshrrev_b32 v{t2}, 4, v{lane}      ; G
    v_and_b32 v{t3}, 1, v{t2}
    v_lshlrev_b32 v{t3}, 1, v{t3}
    v_lshrrev_b32 v{t2}, 1, v{t2}
    v_or_b32 v{t2}, v{t2}, v{t3}         ; cG
    v_lshlrev_b32 v{t2}, 4, v{t2}
    v_lshlrev_b32 v{vs_}, 11, v{t1}
    v_add_u32 v{vs_}, v{vs_}, v{t2}
    v_bfe_u32 v{t3}, v{t1}, 2, 1
    v_lshlrev_b32 v{t3}, 3, v{t3}
    v_and_b32 v{vx_}, 3, v{t1}
    v_add_u32 v{vx_}, v{vx_}, v{t3}
    v_lshlrev_b32 v{vx_}, 6, v{vx_}
    v_lshrrev_b32 v{t3}, 3, v{t1}
    v_add_u32 v{vx_}, v{vx_}, v{t3}
    v_lshlrev_b32 v{vx_}, 11, v{vx_}
    v_add_u32 v{vx_}, v{vx_}, v{t2}
    s_lshl_b32 s28, s22, 4
    s_lshl_b32 s29, s25, 2
    s_add_u32 s28, s28, s29
    s_lshl_b32 s29, s24, 1
    s_add_u32 s28, s28, s29
    s_lshr_b32 s29, s28, 7               ; gamma
    s_lshl_b32 s29, s29, 4
    s_lshr_b32 s30, s28, 5
    s_and_b32 s30, s30, 1
    s_lshl_b32 s30, s30, 2
    s_add_u32 s29, s29, s30
    s_lshl_b32 s29, s29, 6
    s_lshr_b32 s30, s28, 6
    s_and_b32 s30, s30, 1
    s_lshl_b32 s30, s30, 5
    s_add_u32 s29, s29, s30
    s_and_b32 s30, s28, 31
    s_add_u32 s29, s29, s30              ; nS
    s_lshl_b32 s29, s29, 11
    s_lshl_b32 s30, s23, 8               ; cb2*256
    s_add_u32 s40, s29, s30
    s_lshl_b32 s28, s28, 14
    s_add_u32 s42, s28, s30              ; s soffset
    s_lshl_b32 s26, s22, 3
    s_add_u32 s26, s26, s23
    s_lshl_b32 s26, s26, 1
    s_add_u32 s26, s26, s24
    s_xor_b32 s27, s26, 1
    s_lshl_b32 s26, s26, 14
    s_lshl_b32 s27, s27, 14
    s_lshl_b32 s28, s25, 12
    s_add_u32 s26, s26, s28
    s_add_u32 s27, s27, s28
    """)
    srd_from(A, 12, 4, 5, 0, 4 * MB)
    srd_from(A, 16, 8, 9, S_OFF, S_SZ)
    srd_from(A, 36, 52, 53, 0, 4 * MB)
    srd_from(A, 48, 8, 9, E_OFF, E_SZ)
    if not F3L:
        p1()
        A("s_barrier")
        def after_twiddle():
            for x in xloads(2): A(x)
        p2(after_twiddle)
    for i in range(32):
        A(f"v_accvgpr_write_b32 a{i}, 0")
    for tf in range(8):
        A(f"v_add_u32 v{wa2+tf}, 65536, v{wa+tf}")

    def reads(wset, stage, h):
        r = []
        base = wa if stage < 4 else wa2
        for tf in range(8):
            for u in range(2):
                r.append(f"ds_read_b64_tr_b16 {v(wset+4*tf+2*u,2)}, v{base+tf} offset:{(stage&3)*STAGE+h*8192+u*1024}")
        return r

    def unit(slot, h, wset, rd, extra=(), vm=None, bar=False, postbar=None):
        mf = []
        for tf in range(8):
            order = (0, 1) if tf % 2 == 0 else (1, 0)
            for tm in order:
                d = a(4*(tf*2+tm), 4)
                mf.append(f"v_mfma_f32_16x16x32_bf16 {d}, {v(wset+4*tf,4)}, {v(XR+16*slot+8*h+4*tm,4)}, {d}")
        rd = list(rd); extra = list(extra)
        hasrd = bool(rd)
        for i, m in enumerate(mf):
            if i % 2 == 0:
                n = 14 if hasrd else 14 - i
                A(f"s_waitcnt vmcnt({vm}) lgkmcnt({n})" if (i == 0 and vm is not None) else f"s_waitcnt lgkmcnt({n})")
            A(m)
            if i == 0 and bar:
                A("s_barrier")
                if postbar: postbar()
            if rd: A(rd.pop(0))
            if extra and i >= 2 and i % 2 == 1: A(extra.pop(0))
        for e in extra: A(e)

    early = []
    for fp in range(4):
        if SOUT:
            early.append(f"buffer_load_dwordx4 {v(SP+4*fp,4)}, v{vx_}, s[36:39], s40 offen offset:{64*fp} sc1")
        else:
            early.append(f"buffer_load_dwordx4 {v(SP+4*fp,4)}, v{vs_}, s[16:19], s42 offen offset:{64*fp} sc1")
    for fp in range(4):
        early.append(f"buffer_load_dwordx4 {v(XP+4*fp,4)}, v{vx_}, s[12:15], s40 offen offset:{64*fp}")

    A("s_barrier")
    stamp(A, cfg, 0); stamp(A, cfg, 2, True)
    for r in reads(WA, 0, 0): A(r)
    def cstep(st, vm, xl=True, extraA=(), postbar=None, last=False):
        j = st & 3
        exA = (xloads((j + 3) % 4) if xl else []) + list(extraA)
        unit(j, 0, WA, reads(WB, st, 1), extra=exA, vm=vm)
        unit(j, 1, WB, [] if last else reads(WA, (st + 1) % 8, 0), bar=(st & 1 == 1 and not last), postbar=postbar)
    def signal():
        A(f"""
        s_cmp_lg_u32 s25, 0
        s_cbranch_scc1 {L}_nosig
        s_lshr_b32 s60, s20, 4
        s_lshl_b32 s60, s60, 2
        v_mov_b32 v{t0}, s60
        v_mov_b32 v{t1}, 1
        s_mov_b64 exec, 1
        global_atomic_add v{t0}, v{t1}, s[54:55] sc1
        s_mov_b64 exec, -1
        {L}_nosig:
        """)
    if F3L:
        for st in range(4): cstep(st, 8)
    else:
        cstep(0, 12); cstep(1, 12); cstep(2, 12); cstep(3, 8, postbar=signal)
    A("s_mov_b32 s30, 0")
    A.label(f"{L}_cloop")
    for st in (4, 5, 6, 7, 0, 1, 2, 3): cstep(st, 8)
    A(f"""
    s_add_u32 s30, s30, 1
    s_cmp_lt_u32 s30, 2
    s_cbranch_scc1 {L}_cloop
    """)
    for st in (4, 5, 6, 7): cstep(st, 8)
    cstep(0, 8, extraA=early); cstep(1, 16, xl=False); cstep(2, 12, xl=False); cstep(3, 8, xl=False, last=True)
    stamp(A, cfg, 1); stamp(A, cfg, 3, True)
    RP = 32
    SND = 0
    TMP = 80
    OW = 80
    def send(tm):
        for tf in range(8):
            for r in range(4):
                A(f"v_accvgpr_read_b32 v{TMP+4*tf+r}, a{4*(tf*2+tm)+r}")
        for k in range(8):
            for i in range(2):
                A(f"v_cvt_pk_bf16_f32 v{SND+2*k+i}, v{TMP+4*k+2*i}, v{TMP+4*k+2*i+1}")
        for k in range(16):
            A(f"v_min_u32 v{SND+k}, s34, v{SND+k}")
        for i in range(4):
            A(f"buffer_store_dwordx4 {v(SND+4*i,4)}, v{ex}, s[48:51], s26 offen offset:{1024*i} sc1")
    def own(tm):
        for tf in range(8):
            for r in range(4):
                A(f"v_accvgpr_read_b32 v{OW+4*tf+r}, a{4*(tf*2+tm)+r}")
    def fetch(R=RP):
        for i in range(4):
            A(f"buffer_load_dwordx4 {v(R+4*i,4)}, v{ex}, s[48:51], s27 offen offset:{1024*i} sc1")
    P2 = cfg.get('poll2')
    PK = cfg.get('pkepi')
    RP1 = 48
    A(f"""
    s_mov_b32 s34, 0xfffffffe
    s_mov_b32 s35, 0xbfb8aa3b
    s_cmp_eq_u32 s24, 0
    s_cbranch_scc1 {L}_kh0
    """)
    send(0); fetch(); own(1)
    A(f"s_branch {L}_sent")
    A.label(f"{L}_kh0")
    send(1); fetch(); own(0)
    A.label(f"{L}_sent")
    A("s_mov_b32 s70, 0")
    def check(R):
        A(f"v_max3_u32 v{t0}, v{R}, v{R+1}, v{R+2}")
        for i in range(3, 15, 2):
            A(f"v_max3_u32 v{t0}, v{t0}, v{R+i}, v{R+i+1}")
        A(f"""
        v_max_u32 v{t0}, v{t0}, v{R+15}
        v_cmp_eq_u32 vcc, -1, v{t0}
        s_nop 4
        """)
    if P2:
        A(f"s_sleep {P2}")
        fetch(RP1)
        A.label(f"{L}_chk")
        A("s_waitcnt vmcnt(4)")
        check(RP)
        A(f"s_cbranch_vccz {L}_got")
        fetch(RP)
        A("s_waitcnt vmcnt(4)")
        check(RP1)
        A(f"""
        s_cbranch_vccz {L}_got1
        s_add_u32 s70, s70, 1
        s_cmp_ge_u32 s70, {SPIN}
        s_cbranch_scc1 {L}_got1
        """)
        fetch(RP1)
        A(f"s_branch {L}_chk")
    else:
        A.label(f"{L}_chk")
        A("s_waitcnt vmcnt(0)")
        check(RP)
        A(f"""
        s_cbranch_vccz {L}_got
        s_add_u32 s70, s70, 1
        s_cmp_ge_u32 s70, {SPIN}
        s_cbranch_scc1 {L}_got
        """)
        fetch()
        A(f"s_branch {L}_chk")
    def final(R):
        stamp(A, cfg, 4)
        A("s_mov_b32 s34, 0xffff0000")
        E = [112 + i for i in range(8)]
        G = 120
        T = [124, 125, 126, 127]
        K = 128
        if PK:
            A(f"v_mov_b32 v{K}, s35\nv_mov_b32 v{K+1}, s35\nv_mov_b32 v{K+2}, 1.0\nv_mov_b32 v{K+3}, 1.0")
        for fp in range(4):
            O = [OW + 4*(2*fp + t) + r for t in range(2) for r in range(4)]
            for t in range(2):
                for i in range(2):
                    src = R + 2*(2*fp + t) + i
                    A(f"v_lshlrev_b32 v{E[4*t+2*i]}, 16, v{src}")
                    A(f"v_and_b32 v{E[4*t+2*i+1]}, s34, v{src}")
            if PK:
                for i in range(0, 8, 2): A(f"v_pk_add_f32 {v(O[i],2)}, {v(O[i],2)}, {v(E[i],2)}")
            else:
                for i in range(8): A(f"v_add_f32 v{O[i]}, v{O[i]}, v{E[i]}")
            for i in range(4):
                A(f"v_cvt_pk_bf16_f32 v{G+i}, v{O[2*i]}, v{O[2*i+1]}")
            for i in range(4):
                A(f"v_lshlrev_b32 v{O[2*i]}, 16, v{G+i}")
                A(f"v_and_b32 v{O[2*i+1]}, s34, v{G+i}")
            if PK:
                for i in range(0, 8, 2): A(f"v_pk_mul_f32 {v(E[i],2)}, {v(O[i],2)}, {v(K,2)}")
            else:
                for i in range(8): A(f"v_mul_f32 v{E[i]}, s35, v{O[i]}")
            for i in range(8): A(f"v_exp_f32 v{E[i]}, v{E[i]}")
            if PK:
                for i in range(0, 8, 2): A(f"v_pk_add_f32 {v(E[i],2)}, {v(E[i],2)}, {v(K+2,2)}")
            else:
                for i in range(8): A(f"v_add_f32 v{E[i]}, 1.0, v{E[i]}")
            for i in range(8): A(f"v_rcp_f32 v{E[i]}, v{E[i]}")
            if PK:
                for i in range(0, 8, 2): A(f"v_pk_mul_f32 {v(E[i],2)}, {v(O[i],2)}, {v(E[i],2)}")
            else:
                for i in range(8): A(f"v_mul_f32 v{E[i]}, v{O[i]}, v{E[i]}")
            for i in range(4): A(f"v_cvt_pk_bf16_f32 v{G+i}, v{E[2*i]}, v{E[2*i+1]}")
            A(f"v_permlane16_swap_b32 v{G}, v{G+2}")
            A(f"v_permlane16_swap_b32 v{G+1}, v{G+3}")
            sp, xp = SP + 4*fp, XP + 4*fp
            if PK:
                for i in range(4):
                    A(f"v_lshlrev_b32 v{E[2*i]}, 16, v{sp+i}")
                    A(f"v_and_b32 v{E[2*i+1]}, s34, v{sp+i}")
                    A(f"v_lshlrev_b32 v{O[2*i]}, 16, v{G+i}")
                    A(f"v_and_b32 v{O[2*i+1]}, s34, v{G+i}")
                for i in range(4): A(f"v_pk_mul_f32 {v(E[2*i],2)}, {v(E[2*i],2)}, {v(O[2*i],2)}")
                for i in range(4): A(f"v_cvt_pk_bf16_f32 v{G+i}, v{E[2*i]}, v{E[2*i+1]}")
                for i in range(4):
                    A(f"v_lshlrev_b32 v{E[2*i]}, 16, v{G+i}")
                    A(f"v_and_b32 v{E[2*i+1]}, s34, v{G+i}")
                    A(f"v_lshlrev_b32 v{O[2*i]}, 16, v{xp+i}")
                    A(f"v_and_b32 v{O[2*i+1]}, s34, v{xp+i}")
                for i in range(4): A(f"v_pk_add_f32 {v(E[2*i],2)}, {v(O[2*i],2)}, {v(E[2*i],2)}")
                for i in range(4): A(f"v_cvt_pk_bf16_f32 v{sp+i}, v{E[2*i]}, v{E[2*i+1]}")
            else:
                for i in range(4):
                    a0, a1, b0, b1 = T
                    A(f"v_lshlrev_b32 v{a0}, 16, v{sp+i}")
                    A(f"v_and_b32 v{a1}, s34, v{sp+i}")
                    A(f"v_lshlrev_b32 v{b0}, 16, v{G+i}")
                    A(f"v_and_b32 v{b1}, s34, v{G+i}")
                    A(f"v_mul_f32 v{a0}, v{a0}, v{b0}")
                    A(f"v_mul_f32 v{a1}, v{a1}, v{b1}")
                    A(f"v_cvt_pk_bf16_f32 v{a0}, v{a0}, v{a1}")
                    A(f"v_lshlrev_b32 v{b0}, 16, v{a0}")
                    A(f"v_and_b32 v{b1}, s34, v{a0}")
                    A(f"v_lshlrev_b32 v{a0}, 16, v{xp+i}")
                    A(f"v_and_b32 v{a1}, s34, v{xp+i}")
                    A(f"v_add_f32 v{a0}, v{a0}, v{b0}")
                    A(f"v_add_f32 v{a1}, v{a1}, v{b1}")
                    A(f"v_cvt_pk_bf16_f32 v{sp+i}, v{a0}, v{a1}")
            A(f"buffer_store_dwordx4 {v(sp,4)}, v{vx_}, s[36:39], s40 offen offset:{64*fp}{ST}")
        A("s_endpgm")
    A.label(f"{L}_got")
    final(RP)
    if P2:
        A.label(f"{L}_got1")
        final(RP1)

    A.label(f"{L}_loader")
    vx, vw = 2, 3
    if F3L: vx, vw = 188, 64
    A("s_sub_u32 s25, s25, 4            ; lw")
    A(f"""
    v_lshlrev_b32 v{vx}, 4, v1
    s_lshl_b32 s26, s25, 12
    """)
    if WIMG:
        A(f"""
        s_mul_i32 s41, s23, {3584*256}
        s_mul_i32 s28, s24, {1792*256}
        s_add_u32 s41, s41, s28
        s_add_u32 s41, s41, s26
        """)
    else:
        A(f"""
        s_mul_i32 s41, s24, {1792*2048}
        s_lshl_b32 s28, s23, 8
        s_add_u32 s41, s41, s28
        v_lshrrev_b32 v8, 4, v1          ; l>>4
        v_and_b32 v9, 15, v1             ; p16
        v_lshrrev_b32 v10, 1, v9         ; c32'
        v_and_b32 v9, 1, v9
        v_lshlrev_b32 v9, 4, v9          ; half*16
        s_lshl_b32 s27, s25, 4           ; 16 lw
        v_add_u32 v11, s27, v8           ; 16lw + (l>>4)
        v_lshlrev_b32 v11, 11, v11
        v_add_u32 v11, v11, v9
        """)
        for i in range(4):
            A(f"""
            v_or_b32 v12, {((i>>1)&1)<<2}, v8
            v_xor_b32 v12, v12, v10
            v_lshlrev_b32 v12, 5, v12
            v_add_u32 v12, v12, v11
            v_add_u32 v{vw+i}, {4*i*2048 - 1024*i}, v12
            """)
    A(f"""
    s_mov_b32 s31, 0
    s_add_u32 s27, s26, {TABL}
    s_waitcnt lgkmcnt(0)
    """)
    if WIMG:
        srd_from(A, 16, 8, 9, W2I_OFF, W2I_SZ)
    else:
        srd_from(A, 16, 6, 7, 0, 3584 * 2048)
    q = []
    def tables(sr):
        srd_table(A, sr, "tab_f3", 16384)
        A("s_mov_b32 m0, s27")
        for i in range(4):
            A(f"buffer_load_dwordx4 v{vx}, s[{sr}:{sr+3}], s26 offen offset:{1024*i} lds"); q.append('t')
    def issue(tag):
        for half in range(2):
            A(f"s_add_u32 m0, s31, s26\ns_add_u32 s31, s31, {STAGE}")
            for i in range(4):
                A(f"buffer_load_dwordx4 v{vx if WIMG else vw+i}, s[16:19], s41 offen offset:{1024*i} lds"); q.append(tag)
            A(f"s_add_u32 s41, s41, {0 if cfg.get('fixw') else 64*(256 if WIMG else 2048)}")
        A(f"s_cmp_eq_u32 s31, {STAGE*NS}\ns_cselect_b32 s31, 0, s31")
    def wait_for(tag, text=True):
        last = max(i for i, t in enumerate(q) if t == tag)
        n = len(q) - 1 - last
        if text: A(f"s_waitcnt vmcnt({n})")
        return n
    if F3L:
        p0, p1, p2 = f3_consumer(A, cfg, YS=44, SS=12)
        issue(0)
        A("v_mov_b32 v72, v1")
        p0(); q.extend(['y'] * 5)
        tables(48)
        issue(1); issue(2)
        if SOUT: srd_from(A, 12, 52, 53, 0, 4 * MB)
        else: srd_from(A, 12, 8, 9, S_OFF, S_SZ)
        wait_for(0); A("s_barrier")
        p1(wait_for('y', False))
        wait_for(1); A("s_barrier"); issue(3)
        def mid():
            wait_for(2); A("s_barrier"); issue(4)
        def after():
            pass
        p2(after, mid); q.extend(['st'] * 4)
        wait_for(3); A("s_barrier"); issue(5)
        wait_for(4); A("s_barrier"); issue(6)
        wait_for(5); A("s_barrier"); issue(7)
        A(f"""
        s_cmp_lg_u32 s25, 0
        s_cbranch_scc1 {L}_nosig
        s_lshr_b32 s60, s20, 2
        s_lshl_b32 s60, s60, 2
        v_mov_b32 v8, s60
        v_mov_b32 v9, 1
        s_mov_b64 exec, 1
        global_atomic_add v8, v9, s[54:55] sc1
        s_mov_b64 exec, -1
        {L}_nosig:
        s_mov_b32 s30, 5
        """)
    else:
        tables(44)
        for i in range(3): issue(i)
        wait_for('t')
        A("s_barrier")
        wait_for(0)
        A("s_barrier")
        A("s_mov_b32 s30, 0")
    A.label(f"{L}_lloop")
    A("s_waitcnt vmcnt(8)")
    A("s_barrier")
    issue('l')
    A(f"""
    s_add_u32 s30, s30, 1
    s_cmp_lt_u32 s30, 10
    s_cbranch_scc1 {L}_lloop
    """)
    q.clear(); q.extend([11]*8 + [12]*8)
    wait_for(11); A("s_barrier")
    if F3L:
        A(f"""
        v_and_b32 v8, 3, v72
        v_lshlrev_b32 v8, 2, v8
        s_lshl_b32 s60, s22, 4
        v_add_u32 v8, s60, v8
        global_load_dword v9, v8, s[54:55] sc1
        """)
    else:
        A(f"""
        s_lshl_b32 s60, s22, 2
        v_mov_b32 v8, s60
        global_load_dword v9, v8, s[54:55] sc1
        """)
    q.append('p')
    issue(13)
    wait_for('p')
    def ready(neg):
        if F3L:
            A(f"v_cmp_gt_u32 vcc, 4, v9\ns_cmp_eq_u64 vcc, 0")
        else:
            A("v_readfirstlane_b32 s60, v9\ns_cmp_ge_u32 s60, 16")
    ready(0)
    A(f"""
    s_cbranch_scc1 {L}_ready
    s_mov_b32 s70, 0
    {L}_poll:
    s_add_u32 s70, s70, 1
    s_cmp_ge_u32 s70, {SPIN}
    s_cbranch_scc1 {L}_ready
    s_sleep 1
    global_load_dword v9, v8, s[54:55] sc1
    s_waitcnt vmcnt(0)
    """)
    ready(1)
    A(f"""
    s_cbranch_scc0 {L}_poll
    {L}_ready:
    """)
    A("s_barrier")
    wait_for(13); A("s_barrier")
    A("s_endpgm")
```

```python
from asmlib import *
from layout import *
from consts import *
from k1 import srd_from, srd_table, wave_reduce
import f2 as F2

STAGE = 49152
XSZ = 32768
NS = 3
KSTEPS = 16
WSTRIDE = 7168
PAO = 2 * STAGE
XS, NYQ, STL = 16384, 32768, 32768 + 64
STATL = NS * STAGE
CSL = STATL + 4096
LDS_KA = 163840
SPIN = 400000
STAT_OFF, STAT_SZ = 0, 16384
SMB, SNB, SSLOT, SRHO = 70, 71, 72, 73

def gen_ka(A, L, cfg):
    SC = ' sc1'
    A(f"""
    s_cmp_ge_u32 s2, 256
    s_cbranch_scc1 {L}_done
    s_load_dwordx2 s[4:5], s[0:1], {ARG_X}
    s_load_dwordx4 s[8:11], s[0:1], {ARG_WR}
    s_load_dwordx2 s[6:7], s[0:1], {ARG_WS}
    s_load_dwordx4 s[60:63], s[0:1], {ARG_W1}
    s_load_dwordx2 s[64:65], s[0:1], {ARG_DBG}
    v_readfirstlane_b32 s25, v0
    v_and_b32 v1, 63, v0
    s_lshr_b32 s25, s25, 6
    s_and_b32 s20, s2, 7             ; xcd
    s_lshr_b32 s{SSLOT}, s2, 3       ; slot
    s_and_b32 s22, s20, 1
    s_lshl_b32 s22, s22, 2
    s_and_b32 s23, s{SSLOT}, 3
    s_add_u32 s{SMB}, s22, s23       ; mb
    s_lshr_b32 s23, s20, 1
    s_mul_i32 s23, s23, 7
    s_lshr_b32 s24, s{SSLOT}, 2
    s_add_u32 s{SNB}, s23, s24       ; nb
    s_lshl_b32 s20, s20, 5
    s_add_u32 s20, s20, s{SSLOT}     ; rho
    s_mov_b32 s{SRHO}, s20
    s_cmp_ge_u32 s25, 4
    s_cbranch_scc1 {L}_hi
    """)
    rows(A, L, cfg)
    A(f"""
    s_cmp_ge_u32 s{SSLOT}, 28
    s_cbranch_scc1 {L}_f2lo
    """)
    consumer(A, L, cfg)
    A.label(f"{L}_hi")
    hi(A, L, cfg)
    loader(A, L, cfg)
    A.label(f"{L}_f2hi")
    A("s_add_u32 s25, s25, 4")
    A("s_waitcnt vmcnt(0)")
    A.label(f"{L}_f2lo")
    A("s_barrier")
    A(f"""
    s_and_b32 s20, s2, 7
    s_lshl_b32 s26, s20, 2
    s_sub_u32 s21, s{SSLOT}, 28
    s_add_u32 s26, s26, s21          ; f
    """)
    def sync():
        if cfg.get('poif2'):
            srd_from(A, 36, 6, 7, E_OFF, E_SZ)
            A(f"""
            s_lshl_b32 s28, s26, 3
            s_add_u32 s28, s28, s25
            s_lshl_b32 s28, s28, 14
            v_lshlrev_b32 v12, 4, v1
            """)
            for i in range(4):
                A(f"v_mov_b32 v{8+i}, -1")
            for i in range(16):
                A(f"buffer_store_dwordx4 v[8:11], v12, s[36:39], s28 offen offset:{1024*(i&3)}{cfg.get('pst', '')}")
                if i & 3 == 3 and i < 15: A("s_add_u32 s28, s28, 4096")
        A(f"""
        s_cmp_lg_u32 s25, 4
        s_cbranch_scc1 {L}_f2go
        s_and_b32 s28, s{SRHO}, 0xfc
        v_mov_b32 v6, s28
        v_mov_b32 v7, 1
        s_mov_b64 exec, 1
        global_atomic_add v6, v7, s[64:65] sc1
        s_mov_b64 exec, -1
        v_lshlrev_b32 v6, 2, v1
        s_mov_b32 s29, 0
        {('s_sleep %d' % cfg['sleep0']) if cfg.get('sleep0') else ''}
        {L}_f2poll:
        {('s_sleep %d' % cfg['sleep']) if cfg.get('sleep') else ''}
        {('s_branch %s_f2go' % L) if cfg.get('nopoll') else ''}
        global_load_dword v7, v6, s[64:65] sc1
        s_add_u32 s29, s29, 1
        s_cmp_ge_u32 s29, {SPIN}
        s_cbranch_scc1 {L}_f2go
        s_waitcnt vmcnt(0)
        v_cmp_gt_u32 vcc, 4, v7
        s_cmp_lg_u64 vcc, 0
        s_cbranch_scc1 {L}_f2poll
        {L}_f2go:
        s_waitcnt vmcnt(0)
        s_barrier
        """)
    c = dict(st=cfg.get('stf2', ''), stamps=cfg.get('stamps'), ka=sync, cont=cfg.get('cont'), pack=cfg.get('pack'), y32=cfg.get('y32'))
    F2.gen_f2(A, f"{L}f", c)
    A.label(f"{L}_done")
    A("s_endpgm")


def rows(A, L, cfg):
    RAW = [8, 16]
    F = [24, 40]
    TAB = 64
    TW = 96
    D1 = [128, 160]
    D2 = [128, 160]
    A(f"""
    s_lshr_b32 s21, s20, 7             ; gamma
    s_lshl_b32 s21, s21, 4
    s_lshr_b32 s22, s20, 5
    s_and_b32 s22, s22, 1              ; hi
    s_lshl_b32 s22, s22, 2
    s_add_u32 s21, s21, s22
    s_lshr_b32 s22, s25, 1
    s_lshl_b32 s22, s22, 3
    s_add_u32 s21, s21, s22
    s_and_b32 s22, s25, 1
    s_lshl_b32 s22, s22, 1
    s_add_u32 s21, s21, s22
    s_lshl_b32 s21, s21, 6
    s_lshr_b32 s22, s20, 6
    s_and_b32 s22, s22, 1
    s_lshl_b32 s22, s22, 5
    s_add_u32 s21, s21, s22
    s_and_b32 s22, s20, 31
    s_add_u32 s21, s21, s22
    s_lshl_b32 s21, s21, 11
    s_add_u32 s22, s21, 131072         ; row B
    v_lshlrev_b32 v2, 4, v1            ; lane*16
    s_waitcnt lgkmcnt(0)
    """)
    srd_from(A, 12, 4, 5, 0, 4 * MB)
    A(f"""
    buffer_load_dwordx4 v[{RAW[0]}:{RAW[0]+3}], v2, s[12:15], s21 offen
    buffer_load_dwordx4 v[{RAW[0]+4}:{RAW[0]+7}], v2, s[12:15], s21 offen offset:1024
    buffer_load_dwordx4 v[{RAW[1]}:{RAW[1]+3}], v2, s[12:15], s22 offen
    buffer_load_dwordx4 v[{RAW[1]+4}:{RAW[1]+7}], v2, s[12:15], s22 offen offset:1024
    """)
    srd_table(A, 16, "tab_f1", 16384)
    A("s_mov_b32 s26, 4096\ns_mov_b32 s27, 8192\ns_mov_b32 s28, 12288")
    for i in range(16):
        so = ["0", "s26", "s27", "s28"][i >> 2]
        A(f"buffer_load_dwordx4 v[{TAB+4*i}:{TAB+4*i+3}], v2, s[16:19], {so} offen offset:{1024*(i&3)}")
    A(f"""
    s_lshl_b32 s33, s25, 12
    s_add_u32 s33, s33, {PAO}
    v_add_u32 v4, s33, v2
    v_lshrrev_b32 v5, 5, v1
    v_lshlrev_b32 v5, 3, v5
    v_bfe_u32 v6, v1, 2, 2
    v_add_u32 v5, v5, v6
    v_lshlrev_b32 v5, 6, v5
    v_bfe_u32 v6, v1, 4, 1
    v_lshlrev_b32 v6, 5, v6
    v_add_u32 v5, v5, v6
    v_and_b32 v6, 3, v1
    v_lshlrev_b32 v6, 3, v6
    v_add_u32 v5, v5, v6
    v_add_u32 v5, s33, v5
    v_and_b32 v6, 31, v1
    v_lshlrev_b32 v6, 4, v6
    v_lshrrev_b32 v7, 5, v1
    v_lshlrev_b32 v7, 11, v7
    v_add_u32 v6, v6, v7
    s_lshl_b32 s33, s25, 2
    s_add_u32 s33, s33, {PAO + XS}
    v_add_u32 v6, s33, v6
    s_lshl_b32 s33, s25, 4
    s_add_u32 s33, s33, {PAO + STL}
    v_mov_b32 v3, s33
    """)
    A("s_mov_b32 s34, 0xffff0000")
    A("s_waitcnt vmcnt(16)")
    for r in range(2):
        for i in range(8):
            A(f"v_lshlrev_b32 v{F[r]+2*i}, 16, v{RAW[r]+i}")
            A(f"v_and_b32 v{F[r]+2*i+1}, s34, v{RAW[r]+i}")
    S = [56, 57]
    T = [58, 59, 60, 61]
    for r in range(2):
        A(f"v_add_f32 v{S[r]}, v{F[r]}, v{F[r]+1}")
    for i in range(2, 16):
        for r in range(2):
            A(f"v_add_f32 v{S[r]}, v{S[r]}, v{F[r]+i}")
    wave_reduce(A, S)
    for r in range(2):
        A(f"v_readlane_b32 s{44+r}, v{S[r]}, 63")
    for r in range(2):
        A(f"v_mov_b32 v{T[r]}, 0x3a800000")
        A(f"v_mul_f32 v{T[r]}, s{44+r}, v{T[r]}")
    for i in range(16):
        for r in range(2):
            A(f"v_sub_f32 v{T[2+r]}, v{F[r]+i}, v{T[r]}")
            if i == 0:
                A(f"v_mul_f32 v{S[r]}, v{T[2+r]}, v{T[2+r]}")
            else:
                A(f"v_fmac_f32 v{S[r]}, v{T[2+r]}, v{T[2+r]}")
    wave_reduce(A, S)
    for r in range(2):
        A(f"v_readlane_b32 s{46+r}, v{S[r]}, 63")
    for r in range(2):
        A(f"v_cvt_pk_bf16_f32 v{T[r]}, v{T[r]}, v{T[r]}")
        A(f"v_and_b32 v{T[r]}, s34, v{T[r]}")
        A(f"v_mov_b32 v{T[2+r]}, 0x3a800000")
        A(f"v_mul_f32 v{T[2+r]}, s{46+r}, v{T[2+r]}")
        A(f"v_cvt_pk_bf16_f32 v{T[2+r]}, v{T[2+r]}, v{T[2+r]}")
        A(f"v_and_b32 v{T[2+r]}, s34, v{T[2+r]}")
        A(f"v_add_f32 v{T[2+r]}, 0x3727c5ac, v{T[2+r]}")
        A(f"v_cvt_pk_bf16_f32 v{T[2+r]}, v{T[2+r]}, v{T[2+r]}")
        A(f"v_and_b32 v{T[2+r]}, s34, v{T[2+r]}")
        A(f"v_sqrt_f32 v{T[2+r]}, v{T[2+r]}")
        A(f"v_cvt_pk_bf16_f32 v{T[2+r]}, v{T[2+r]}, v{T[2+r]}")
        A(f"v_and_b32 v{T[2+r]}, s34, v{T[2+r]}")
        A(f"v_rcp_f32 v{T[2+r]}, v{T[2+r]}")
    A(f"""
    s_mov_b64 exec, 1
    ds_write_b128 v3, v[58:61]
    s_mov_b64 exec, -1
    """)
    U = [62, 63]
    for i in range(8):
        for r in range(2):
            a0, a1 = F[r]+2*i, F[r]+2*i+1
            A(f"v_sub_f32 v{a0}, v{a0}, v{T[r]}")
            A(f"v_sub_f32 v{a1}, v{a1}, v{T[r]}")
            A(f"v_cvt_pk_bf16_f32 v{U[r]}, v{a0}, v{a1}")
            A(f"v_lshlrev_b32 v{a0}, 16, v{U[r]}")
            A(f"v_and_b32 v{a1}, s34, v{U[r]}")
            A(f"v_mul_f32 v{a0}, v{a0}, v{T[2+r]}")
            A(f"v_mul_f32 v{a1}, v{a1}, v{T[2+r]}")
            A(f"v_cvt_pk_bf16_f32 v{RAW[r]+i}, v{a0}, v{a1}")
    for r in range(2):
        A(f"ds_write_b128 v4, v[{RAW[r]}:{RAW[r]+3}] offset:{2048*r}")
        A(f"ds_write_b128 v4, v[{RAW[r]+4}:{RAW[r]+7}] offset:{2048*r + 1024}")
    A("s_waitcnt lgkmcnt(0)")
    AF = [24, 40]
    for r in range(2):
        for t in range(2):
            for u in range(2):
                A(f"ds_read_b64_tr_b16 v[{AF[r]+4*t+2*u}:{AF[r]+4*t+2*u+1}], v5 offset:{2048*r + 1024*t + 256*u}")
    A("s_waitcnt vmcnt(0) lgkmcnt(0)")
    for r in range(2):
        for part in range(2):
            for t in range(2):
                d = v(D1[r] + 16*part, 16)
                A(f"v_mfma_f32_32x32x16_bf16 {d}, {v(AF[r]+4*t,4)}, {v(TAB+8*part+4*t,4)}, {'0' if t == 0 else d}")
    T = [58, 59, 60, 61]
    NY = [56, 57]
    PK = [192, 208]
    for r in range(2):
        Dr, Di = D1[r], D1[r] + 16
        A(f"v_sub_f32 v{NY[r]}, v{Dr}, v{Dr+1}")
        for i in range(2, 16):
            A(f"v_{'add' if i % 2 == 0 else 'sub'}_f32 v{NY[r]}, v{NY[r]}, v{Dr+i}")
    for r in range(2):
        Dr, Di = D1[r], D1[r] + 16
        for e in range(16):
            t1, t2 = T[0] + (e & 1) * 2, T[1] + (e & 1) * 2
            A(f"v_mul_f32 v{t1}, v{Di+e}, v{TW+16+e}")
            A(f"v_mul_f32 v{t2}, v{Di+e}, v{TW+e}")
            A(f"v_fma_f32 v{Di+e}, v{Dr+e}, v{TW+16+e}, v{t2}")
            A(f"v_fma_f32 v{Dr+e}, v{Dr+e}, v{TW+e}, -v{t1}")
            if e & 1:
                b, q = e >> 3, (e & 7) >> 1
                A(f"v_cvt_pk_bf16_f32 v{PK[r]+4*b+q}, v{Dr+e-1}, v{Dr+e}")
                A(f"v_cvt_pk_bf16_f32 v{PK[r]+8+4*b+q}, v{Di+e-1}, v{Di+e}")
    for r in range(2):
        d = v(D2[r], 16)
        first = True
        for pin in range(2):
            for b in range(2):
                A(f"v_mfma_f32_32x32x16_bf16 {d}, {v(TAB+16+8*pin+4*b,4)}, {v(PK[r]+8*pin+4*b,4)}, {'0' if first else d}")
                first = False
    for r in range(2):
        A(f"v_readlane_b32 s{44+r}, v{NY[r]}, 32")
    for r in range(2):
        A(f"v_add_f32 v{NY[r]}, s{44+r}, v{NY[r]}")
    A(f"v_cvt_pk_bf16_f32 v{NY[0]}, v{NY[0]}, v{NY[1]}")
    PACK = cfg.get('pack')
    A(f"""
    s_lshl_b32 s33, s25, 2
    s_add_u32 s33, s33, {PAO + XS + 8192 if PACK else PAO + NYQ}
    v_mov_b32 v58, s33
    v_cmp_eq_u32 vcc, 0, v1
    v_mov_b32 v59, 1.0
    v_mov_b32 v60, 0.5
    v_cndmask_b32 v59, v59, v60, vcc
    """)
    def nyw():
        A(f"""
        s_mov_b64 exec, 1
        ds_write_b32 v58, v{NY[0]}
        s_mov_b64 exec, -1
        """)
    if not PACK: nyw()
    for r in range(2):
        A(f"v_mul_f32 v{D2[r]}, v{D2[r]}, v59")
    for e in range(8):
        o0 = 2 * (8 * (e >> 2) + (e & 3))
        a_, b_ = 60 + 2 * (e & 1), 61 + 2 * (e & 1)
        A(f"v_cvt_pk_bf16_f32 v{a_}, v{D2[0]+e}, v{D2[1]+e}")
        A(f"v_cvt_pk_bf16_f32 v{b_}, v{D2[0]+8+e}, v{D2[1]+8+e}")
        A(f"ds_write2st64_b32 v6, v{a_}, v{b_} offset0:{o0} offset1:{o0+32}")
    if PACK: nyw()
    A("s_waitcnt lgkmcnt(0)")
    A("s_barrier")
    stamp(A, cfg, 4)


def hi(A, L, cfg):
    SC = cfg.get('scx', ' sc1')
    SCW = cfg.get('scw', ' sc1')
    A(f"""
    s_sub_u32 s25, s25, 4              ; lw
    s_and_b32 s21, s2, 63              ; combo
    s_lshr_b32 s22, s2, 6              ; crange
    s_lshr_b32 s23, s21, 2
    s_and_b32 s24, s21, 3              ; oct
    s_lshl_b32 s26, s24, 3
    s_lshl_b32 s27, s23, 7
    s_add_u32 s27, s27, s26
    s_mul_i32 s28, s27, 1026
    s_add_u32 s29, s28, 32832
    s_add_u32 s30, s28, {2*32832}
    s_add_u32 s31, s28, {3*32832}
    s_lshl_b32 s33, s22, 7
    s_lshl_b32 s34, s25, 5
    s_add_u32 s33, s33, s34
    v_and_b32 v2, 31, v1
    v_add_u32 v2, s33, v2              ; c
    v_lshrrev_b32 v4, 5, v1            ; half
    v_mul_u32_u24 v3, 4104, v4
    v_lshl_add_u32 v3, v2, 1, v3
    s_waitcnt lgkmcnt(0)
    """)
    srd_from(A, 12, 8, 9, 0, 2048 * 1026)
    srd_from(A, 16, 10, 11, 0, 2048 * 1026)
    srd_from(A, 36, 6, 7, WT_OFF, WT_SZ)
    if cfg.get('pfcode'):
        srd_table(A, 40, "ka_kernel", "code_end-ka_kernel")
        A(f"""
        s_mul_i32 s44, s25, {2*8192}
        v_lshlrev_b32 v51, 7, v1
        v_add_u32 v51, s44, v51
        buffer_load_dword v52, v51, s[40:43], 0 offen
        v_add_u32 v51, 8192, v51
        buffer_load_dword v52, v51, s[40:43], 0 offen
        """)
        if cfg['pfcode'] > 1:
            srd_table(A, 44, "tab_f3", 16384)
            A("v_lshlrev_b32 v51, 7, v1")
            A("s_lshl_b32 s56, s25, 13")
            A("v_add_u32 v51, s56, v51")
            A("buffer_load_dword v52, v51, s[44:47], 0 offen")
    so = ["s28", "s29", "s30", "s31"]
    for i in range(4):
        for r in range(4):
            A(f"buffer_load_ushort v{8+4*i+r}, v3, s[12:15], {so[r]} offen offset:{1026*i}")
            A(f"buffer_load_ushort v{24+4*i+r}, v3, s[16:19], {so[r]} offen offset:{1026*i}")
    A(f"""
    s_cmp_eq_u32 s22, 3
    s_cselect_b32 s40, 1, 0
    s_cmp_eq_u32 s25, 0
    s_cselect_b32 s40, s40, 0
    s_cmp_eq_u32 s40, 0
    s_cbranch_scc1 {L}_noex1
    """)
    PACK = cfg.get('pack')
    if PACK:
        A(f"""
        v_and_b32 v5, 7, v1
        v_bfe_u32 v6, v1, 3, 2
        v_lshl_add_u32 v5, v6, 5, v5
        v_add_u32 v5, s27, v5                  ; m
        v_sub_u32 v6, 2048, v5
        v_and_b32 v6, 2047, v6                 ; -m
        v_mul_u32_u24 v5, 1026, v5
        v_mul_u32_u24 v6, 1026, v6
        """)
        for k, (vv, off) in enumerate([(5, 0), (6, 0), (5, 1024), (6, 1024)]):
            A(f"buffer_load_ushort v{40+2*k}, v{vv}, s[12:15], 0 offen offset:{off}")
            A(f"buffer_load_ushort v{41+2*k}, v{vv}, s[16:19], 0 offen offset:{off}")
    else:
        A(f"""
        v_and_b32 v5, 7, v1
        v_mul_u32_u24 v6, 1026, v5
        v_add_u32 v6, 1024, v6
        s_mov_b64 exec, 0xff
        """)
        for r in range(4):
            A(f"buffer_load_ushort v{40+r}, v6, s[12:15], {so[r]} offen")
            A(f"buffer_load_ushort v{44+r}, v6, s[16:19], {so[r]} offen")
        A("s_mov_b64 exec, -1")
    A.label(f"{L}_noex1")
    A(f"""
    s_cmp_ge_u32 s{SSLOT}, 28
    s_cbranch_scc1 {L}_hitab
    """)
    srd_from(A, 48, 4, 5, 0, 4 * MB)
    srd_from(A, 52, 60, 61, 0, 1024 * WSTRIDE)
    vx, vw = 64, 72
    A(f"""
    s_lshr_b32 s56, s{SMB}, 2
    s_lshl_b32 s56, s56, 4
    s_and_b32 s57, s{SMB}, 1
    s_lshl_b32 s57, s57, 2
    s_add_u32 s56, s56, s57          ; p base
    s_lshl_b32 s56, s56, 6
    s_lshr_b32 s57, s{SMB}, 1
    s_and_b32 s57, s57, 1
    s_lshl_b32 s57, s57, 5
    s_add_u32 s56, s56, s57
    s_lshl_b32 s57, s25, 3
    s_add_u32 s56, s56, s57          ; n base
    s_lshl_b32 s56, s56, 11          ; X soffset
    s_lshl_b32 s57, s{SNB}, 8
    v_lshrrev_b32 v76, 5, v1
    v_lshlrev_b32 v76, 3, v76
    v_bfe_u32 v77, v1, 4, 1
    v_lshlrev_b32 v77, 1, v77
    v_add_u32 v76, v76, v77
    v_bfe_u32 v77, v1, 3, 1
    v_add_u32 v76, v76, v77          ; p lane
    v_lshlrev_b32 v76, 17, v76       ; * 64 rows * 2048
    v_and_b32 v77, 7, v1
    v_lshrrev_b32 v78, 4, v1
    """)
    for i in range(8):
        A(f"""
        v_or_b32 v79, {4*(i&1)}, v78
        v_xor_b32 v79, v79, v77
        v_lshlrev_b32 v79, 4, v79
        v_add_u32 v79, v79, v76
        v_add_u32 v{vx+i}, {2048*i - 1024*(i&3)}, v79
        """)
    A(f"""
    v_and_b32 v76, 15, v1             ; p16
    v_lshrrev_b32 v77, 1, v76         ; c32'
    v_and_b32 v76, 1, v76
    v_lshlrev_b32 v76, 4, v76         ; half*16
    s_lshl_b32 s58, s25, 4            ; 16 lw
    v_add_u32 v79, s58, v78           ; 16lw + (l>>4)
    s_mov_b32 s59, {WSTRIDE}
    v_mul_lo_u32 v79, v79, s59
    v_add_u32 v79, v79, v76
    """)
    for i in range(4):
        A(f"""
        v_or_b32 v76, {((i>>1)&1)<<2}, v78
        v_xor_b32 v76, v76, v77
        v_lshlrev_b32 v76, 5, v76
        v_add_u32 v76, v76, v79
        v_add_u32 v{vw+i}, {4*i*WSTRIDE - 1024*i}, v76
        """)
    A(f"""
    s_lshl_b32 s58, s25, 13
    s_lshl_b32 s59, s25, 12
    s_add_u32 s59, s59, {XSZ}
    s_mov_b32 s66, 0
    """)
    issue(A); issue(A)
    A(f"s_branch {L}_hiw")
    A.label(f"{L}_hitab")
    srd_table(A, 48, "tab_f2", F2.NFR * 1024 + 8192)
    A("v_lshlrev_b32 v64, 4, v1")
    for i in range(11):
        A(f"s_add_u32 s56, s25, {4*i}")
        if i == 10:
            A(f"s_min_u32 s56, s56, {F2.NFR-1}")
        A("s_lshl_b32 s56, s56, 10")
        A("s_mov_b32 m0, s56")
        A("buffer_load_dwordx4 v64, s[48:51], s56 offen lds")
    A.label(f"{L}_hiw")
    WTL = PAO + 33280
    A(f"""
    s_lshr_b32 s34, s23, 1
    s_lshl_b32 s34, s34, 10
    s_and_b32 s35, s23, 1
    s_lshl_b32 s35, s35, 9
    s_add_u32 s34, s34, s35
    s_lshl_b32 s35, s26, 4
    s_add_u32 s35, s35, s34
    s_lshl_b32 s34, s25, 12
    s_add_u32 s34, s34, {WTL}
    v_and_b32 v48, 31, v1
    v_lshlrev_b32 v48, 7, v48
    v_lshrrev_b32 v49, 5, v1
    v_lshlrev_b32 v49, 6, v49
    v_add_u32 v48, v48, v49
    v_add_u32 v48, s34, v48
    v_lshlrev_b32 v49, 4, v1
    v_add_u32 v49, s34, v49
    v_lshrrev_b32 v4, 3, v1
    v_add_u32 v4, s33, v4
    v_lshlrev_b32 v4, 13, v4
    v_and_b32 v50, 7, v1
    v_lshlrev_b32 v50, 4, v50
    v_add_u32 v4, v4, v50              ; (c0 + (l >> 3)) * 8192 + (l & 7) * 16
    s_waitcnt vmcnt(0)
    s_cmp_eq_u32 s40, 0
    s_cbranch_scc1 {L}_noex2
    """)
    if PACK:
        for k in range(8):
            A(f"v_lshlrev_b32 v{40+k}, 16, v{40+k}")
        A(f"""
        v_add_f32 v40, v40, v42                ; 2 Ur
        v_sub_f32 v41, v41, v43                ; 2 Ui
        v_add_f32 v44, v44, v46                ; 2 Vr
        v_sub_f32 v45, v45, v47                ; 2 Vi
        v_cmp_gt_u32 vcc, 32, v1
        v_mov_b32 v46, 0.5
        v_mov_b32 v47, -0.5
        v_cndmask_b32 v46, v47, v46, vcc       ; sign / 2
        v_mul_f32 v44, v44, v46
        v_mul_f32 v45, v45, v46
        v_fma_f32 v40, v40, 0.5, v44
        v_fma_f32 v41, v41, 0.5, v45
        v_mul_f32 v40, 0.5, v40
        v_mul_f32 v41, 0.5, v41
        v_cvt_pk_bf16_f32 v40, v40, v41
        v_and_b32 v5, 7, v1
        v_lshlrev_b32 v5, 4, v5
        v_bfe_u32 v6, v1, 3, 2
        v_lshl_add_u32 v5, v6, 2, v5
        v_mov_b32 v6, {513*8192}
        v_mov_b32 v7, {512*8192}
        v_cndmask_b32 v6, v7, v6, vcc
        v_add_u32 v5, v6, v5
        buffer_store_dword v40, v5, s[36:39], s35 offen{SCW}
        """)
    else:
        A(f"""
        v_lshlrev_b32 v5, 4, v5
        v_add_u32 v5, {512*8192}, v5
        v_lshl_or_b32 v40, v44, 16, v40
        v_lshl_or_b32 v41, v45, 16, v41
        v_lshl_or_b32 v42, v46, 16, v42
        v_lshl_or_b32 v43, v47, 16, v43
        s_mov_b64 exec, 0xff
        buffer_store_dwordx4 v[40:43], v5, s[36:39], s35 offen{SCW}
        s_mov_b64 exec, -1
        """)
    A.label(f"{L}_noex2")
    for i in range(4):
        for r in range(4):
            A(f"v_lshl_or_b32 v{8+4*i+r}, v{24+4*i+r}, 16, v{8+4*i+r}")
        A(f"ds_write_b128 v48, v[{8+4*i}:{11+4*i}] offset:{16*i}")
    A("s_waitcnt lgkmcnt(0)")
    for j in range(4):
        A(f"ds_read_b128 v[{24+4*j}:{27+4*j}], v49 offset:{1024*j}")
    for j in range(4):
        A(f"s_waitcnt lgkmcnt({3-j})")
        A(f"s_add_u32 s34, s35, {j*8*8192}")
        A(f"buffer_store_dwordx4 v[{24+4*j}:{27+4*j}], v4, s[36:39], s34 offen{SCW}")
    srd_from(A, 40, 6, 7, X1_OFF, X1_SZ)
    srd_from(A, 44, 6, 7, STAT_OFF, STAT_SZ)
    A(f"""
    v_and_b32 v80, 255, v0             ; t
    v_and_b32 v81, 1, v80
    v_lshlrev_b32 v81, 13, v81
    v_lshrrev_b32 v82, 1, v80
    v_lshlrev_b32 v82, 4, v82
    v_add_u32 v81, v81, v82
    v_add_u32 v81, {PAO + XS}, v81
    v_lshrrev_b32 v82, 2, v80
    v_lshlrev_b32 v82, 14, v82
    v_and_b32 v83, 3, v80
    v_lshlrev_b32 v83, 4, v83
    v_add_u32 v82, v82, v83
    s_lshl_b32 s33, s{SRHO}, 6          ; rho*64
    s_add_u32 s26, s33, {1*MB}
    s_add_u32 s27, s33, {2*MB}
    s_add_u32 s28, s33, {3*MB}
    s_add_u32 s29, s33, {4*MB}
    v_lshlrev_b32 v83, 4, v1            ; lane*16
    v_mov_b32 v104, {PAO + NYQ}
    v_add_u32 v105, {PAO + STL}, v83
    s_barrier                           ; B1
    """)
    for i in range(4):
        A(f"ds_read_b128 v[{84+4*i}:{87+4*i}], v81 offset:{2048*i}")
    A("ds_read_b128 v[100:103], v104")
    A("ds_read_b128 v[108:111], v105")
    for i in range(4):
        A(f"s_waitcnt lgkmcnt({5-i})")
        so_ = ["s33", "s26", "s27", "s28"][i]
        A(f"buffer_store_dwordx4 v[{84+4*i}:{87+4*i}], v82, s[40:43], {so_} offen{SC}")
    A(f"""
    s_waitcnt lgkmcnt(0)
    s_cmp_eq_u32 s25, 0
    s_cbranch_scc0 {L}_nony
    """)
    if not PACK:
        A(f"""
        v_cmp_eq_u32 vcc, 0, v1
        v_cndmask_b32 v100, 0, v100, vcc
        v_cndmask_b32 v101, 0, v101, vcc
        v_cndmask_b32 v102, 0, v102, vcc
        v_cndmask_b32 v103, 0, v103, vcc
        s_mov_b64 exec, 3
        buffer_store_dwordx4 v[100:103], v83, s[40:43], s29 offen{SC}
        """)
    A(f"""
    s_mov_b64 exec, 15
    buffer_store_dwordx4 v[108:111], v83, s[44:47], s33 offen{SC}
    s_mov_b64 exec, -1
    {L}_nony:
    s_cmp_ge_u32 s{SSLOT}, 28
    s_cbranch_scc1 {L}_f2hi
    """)


VX, VW = 64, 72
def issue(A):
    A("s_add_u32 m0, s66, s58")
    for i in range(8):
        if i == 4: A("s_add_u32 m0, m0, 4096")
        A(f"buffer_load_dwordx4 v{VX+i}, s[48:51], s56 offen offset:{1024*(i&3)} lds")
    A(f"""
    s_add_u32 m0, s66, s59
    s_add_u32 s56, s56, 128
    s_add_u32 s66, s66, {STAGE}
    buffer_load_dwordx4 v{VW}, s[52:55], s57 offen lds
    buffer_load_dwordx4 v{VW+1}, s[52:55], s57 offen offset:1024 lds
    buffer_load_dwordx4 v{VW+2}, s[52:55], s57 offen offset:2048 lds
    buffer_load_dwordx4 v{VW+3}, s[52:55], s57 offen offset:3072 lds
    s_add_u32 s57, s57, {64*WSTRIDE}
    s_cmp_eq_u32 s66, {STAGE*NS}
    s_cselect_b32 s66, 0, s66
    """)


def loader(A, L, cfg):
    A("s_barrier")
    issue(A)
    relay = cfg.get('relayw2', True)
    poison = cfg.get('poison', True) and not cfg.get('poif2') and not (ALIAS & 2)
    q = []
    q.append(('s2', 12))
    def wait_for(tag, alt=0):
        idx = max(i for i, (t, n) in enumerate(q) if t == tag)
        n = sum(c for t, c in q[idx+1:] if t != 'sig')
        sig = any(t == 'sig' for t, c in q[idx+1:])
        if sig:
            lab = A.uid(L + "_w") if hasattr(A, 'uid') else None
            A(f"""
            s_cmp_eq_u32 s25, 0
            s_cbranch_scc1 {L}_wa{tag}
            s_waitcnt vmcnt({n})
            s_branch {L}_wb{tag}
            {L}_wa{tag}:
            s_waitcnt vmcnt({n+1})
            {L}_wb{tag}:
            """)
        else:
            A(f"s_waitcnt vmcnt({n})")
        del q[:idx+1]
    A(f"""
    s_mul_i32 s26, s{SMB}, 28
    s_add_u32 s26, s26, s{SNB}       ; idx
    """)
    if relay:
        CBS = 3584 * 256
        A(f"""
        s_lshl_b32 s27, s26, 4
        s_lshl_b32 s28, s25, 2
        s_add_u32 s27, s27, s28
        s_lshl_b32 s28, s27, 11
        s_lshl_b32 s27, s27, 8
        v_lshlrev_b32 v16, 4, v1         ; lane*16
        v_lshrrev_b32 v17, 4, v1
        v_mul_u32_u24 v17, {CBS // 256}, v17
        v_lshlrev_b32 v17, 8, v17        ; (lane>>4)*CBS
        v_and_b32 v18, 1, v1
        v_lshlrev_b32 v18, 4, v18
        v_add_u32 v17, v17, v18
        v_bfe_u32 v18, v1, 1, 3          ; c32
        s_lshr_b32 s29, s25, 1
        s_lshl_b32 s29, s29, 2           ; ((k>>3)&1)<<2
        """)
        for r in range(4):
            A(f"""
            s_or_b32 s30, s29, {r}
            v_xor_b32 v19, s30, v18
            v_lshlrev_b32 v19, 5, v19
            v_add_u32 v{20+r}, v17, v19
            """)
        srd_from(A, 12, 62, 63, 0, 3584 * 2048)
        srd_from(A, 16, 6, 7, W2I_OFF, W2I_SZ)
    if poison:
        srd_from(A, 36, 6, 7, E_OFF, E_SZ)
        A(f"""
        s_lshl_b32 s30, s26, 2
        s_add_u32 s30, s30, s25
        s_lshl_b32 s30, s30, 10
        v_lshlrev_b32 v24, 4, v1
        v_add_u32 v24, s30, v24
        """)
        for i in range(1, 5):
            A(f"v_add_u32 v{24+i}, {896*1024}, v{24+i-1}")
        for i in range(4):
            A(f"v_mov_b32 v{100+i}, -1")
    for b in range(KSTEPS):
        if 1 <= b < KSTEPS - 1 and b != 14:
            wait_for(f's{b+1}')
        ls = cfg.get('lst', {0: 0, 1: 1, 4: 4, 9: 5})
        if b in ls: stamp(A, cfg, ls[b])
        if b == 14:
            A(f"""
            s_waitcnt vmcnt(0)
            s_mov_b32 s31, 0
            {L}_spoll:
            v_cmp_gt_u32 vcc, 4, v9
            s_cmp_eq_u64 vcc, 0
            s_cbranch_scc1 {L}_sready
            s_add_u32 s31, s31, 1
            s_cmp_ge_u32 s31, {SPIN}
            s_cbranch_scc1 {L}_sready
            s_sleep 1
            global_load_dword v9, v8, s[64:65] sc1
            s_waitcnt vmcnt(0)
            s_branch {L}_spoll
            {L}_sready:
            buffer_load_dwordx2 v[12:13], v10, s[44:47], s33 offen sc1
            """)
            q.clear()
        A("s_barrier")
        if b + 3 < KSTEPS:
            issue(A); q.append((f's{b+3}', 12))
        if relay and b == 3:
            for r in range(4):
                for hf in range(2):
                    A(f"s_add_u32 s30, s28, {r*2048}")
                    A(f"buffer_load_dwordx4 {v(32+8*r+4*hf,4)}, v16, s[12:15], s30 offen offset:{1024*hf}")
            q.append(('w2l', 8))
        if relay and b == 6:
            for r in range(4):
                for hf in range(2):
                    A(f"s_add_u32 s30, s27, {r*256 + hf*4*3584*256}")
                    A(f"buffer_store_dwordx4 {v(32+8*r+4*hf,4)}, v{20+r}, s[16:19], s30 offen{cfg.get('wst', ' sc1')}")
            q.append(('w2s', 8))
        if poison and b == 9:
            for i in range(5):
                A(f"buffer_store_dwordx4 v[100:103], v{24+i}, s[36:39], 0 offen{cfg.get('pst', '')}")
            q.append(('poi', 5))
        if b == 12:
            A(f"""
            s_lshl_b32 s30, s{SMB}, 5
            v_and_b32 v8, 7, v1
            v_lshlrev_b32 v8, 2, v8
            v_add_u32 v8, s30, v8
            global_load_dword v9, v8, s[64:65] sc1
            s_lshl_b32 s33, s{SMB}, 11
            s_lshl_b32 s30, s25, 9
            s_add_u32 s33, s33, s30
            v_lshlrev_b32 v10, 3, v1
            s_add_u32 s30, s30, {STATL}
            v_add_u32 v11, s30, v10
            """)
            q.append(('poll', 1))
    A(f"""
    s_waitcnt vmcnt(0)
    ds_write_b64 v11, v[12:13]
    s_waitcnt lgkmcnt(0)
    s_barrier
    s_endpgm
    """)


def consumer(A, L, cfg):
    XA, WA, XB, WB = 128, 160, 176, 208
    xa0, xa1, wa = 224, 225, 226
    lane, t0, t1, t2, t3 = 230, 231, 232, 233, 234
    ONES, CS = 236, 240
    acc = lambda i, n=1: v(i, n)
    A(f"""
    v_mov_b32 v{lane}, v1
    s_and_b32 s26, s25, 1            ; wm
    s_lshr_b32 s27, s25, 1           ; wf
    v_and_b32 v{t0}, 15, v{lane}     ; i = l&15
    v_lshrrev_b32 v{t1}, 4, v{lane}  ; G
    v_lshrrev_b32 v{t2}, 1, v{t0}    ; sw
    v_xor_b32 v{t2}, v{t2}, v{t1}    ; G ^ sw
    v_lshlrev_b32 v{t2}, 4, v{t2}
    v_lshlrev_b32 v{t3}, 7, v{t0}    ; row*128
    v_add_u32 v{t2}, v{t2}, v{t3}
    s_lshl_b32 s28, s26, 14          ; wm*128*128
    v_add_u32 v{xa0}, s28, v{t2}
    v_xor_b32 v{xa1}, 64, v{xa0}
    v_lshrrev_b32 v{t2}, 2, v{t0}    ; r'
    v_and_b32 v{t3}, 1, v{t1}
    v_lshlrev_b32 v{t3}, 2, v{t3}
    v_or_b32 v{t3}, v{t3}, v{t2}     ; f(k)
    v_lshlrev_b32 v{t1}, 3, v{t1}    ; 8G
    v_add_u32 v{t1}, v{t1}, v{t2}    ; 8G + r'
    v_lshlrev_b32 v{t1}, 8, v{t1}    ; *256
    v_and_b32 v{t0}, 3, v{t0}        ; cc
    v_lshlrev_b32 v{t0}, 3, v{t0}
    v_add_u32 v{t1}, v{t1}, v{t0}
    v_add_u32 v{t1}, {XSZ}, v{t1}
    s_lshl_b32 s28, s27, 2           ; wf*4
    s_lshl_b32 s29, s26, 1
    s_add_u32 s28, s28, s29
    """)
    for tf in range(4):
        A(f"""
        s_xor_b32 s29, s28, {tf}
        v_xor_b32 v{t0}, s29, v{t3}
        v_lshlrev_b32 v{t0}, 5, v{t0}
        v_add_u32 v{wa+tf}, v{t0}, v{t1}
        """)
    t12 = cfg.get('touch', 0)
    PFD = cfg.get('pfd', 0)
    if PFD:
        srd_from(A, 44, 60, 61, 0, 1024 * WSTRIDE)
        A(f"""
        s_and_b32 s28, s{SMB}, 3
        s_lshl_b32 s28, s28, 4           ; 16 q
        s_and_b32 s29, s25, 1
        s_lshl_b32 s29, s29, 3
        s_add_u32 s28, s28, s29
        v_lshrrev_b32 v250, 3, v{lane}
        v_add_u32 v250, s28, v250
        v_mul_u32_u24 v250, {WSTRIDE}, v250
        s_lshr_b32 s29, s25, 1
        s_lshl_b32 s29, s29, 7
        v_add_u32 v250, s29, v250
        s_lshl_b32 s39, s{SNB}, 8
        s_add_u32 s38, s39, {PFD * 64 * WSTRIDE}
        s_add_u32 s39, s39, {15 * 64 * WSTRIDE}
        """)
    if t12 & 1:
        srd_from(A, 44, 60, 61, 0, 1024 * WSTRIDE)
        A(f"""
        s_and_b32 s28, s{SMB}, 3
        s_lshl_b32 s28, s28, 8
        s_lshl_b32 s29, s25, 6
        s_add_u32 s28, s28, s29
        v_add_u32 v250, s28, v{lane}          ; k
        v_mul_u32_u24 v250, {WSTRIDE}, v250
        s_lshl_b32 s28, s{SNB}, 8
        buffer_load_dword v251, v250, s[44:47], s28 offen
        buffer_load_dword v251, v250, s[44:47], s28 offen offset:128
        """)
    if t12 & 2:
        srd_from(A, 48, 62, 63, 0, 3584 * 2048)
        A(f"""
        s_mul_i32 s28, s{SMB}, 28
        s_add_u32 s28, s28, s{SNB}
        s_lshl_b32 s28, s28, 15
        s_lshl_b32 s29, s25, 13
        s_add_u32 s28, s28, s29
        v_lshlrev_b32 v250, 7, v{lane}
        buffer_load_dword v251, v250, s[48:51], s28 offen
        """)
    for i in range(128):
        A(f"v_mov_b32 v{i}, 0")
    for i in range(4): A(f"v_mov_b32 v{ONES+i}, 0x3f803f80")
    for i in range(8): A(f"v_mov_b32 v{CS+i}, 0")
    A(f"""
    s_and_b32 s28, s{SRHO}, 0xfc
    v_mov_b32 v248, s28
    v_mov_b32 v249, 1
    s_cmp_eq_u32 s25, 0
    s_cselect_b32 s37, {cfg.get('sigstep', 1)}, -1     ; wave 0 signals behind the barrier of this step
    """)

    def reads(xset, wset, xreg, h):
        r = []
        xs = [f"ds_read_b128 {v(xset+4*tm,4)}, v{xreg} offset:{2048*tm}" for tm in range(8)]
        ws = []
        for tf in range(4):
            for u in range(2):
                ws.append(f"ds_read_b64_tr_b16 {v(wset+4*tf+2*u,2)}, v{wa+tf} offset:{h*8192+u*1024}")
        for i in range(8):
            r.append(ws[i]); r.append(xs[i])
        return r

    def unit(xset, wset, rd, extra=()):
        mf = []
        for tm in range(8):
            order = range(4) if tm % 2 == 0 else range(3, -1, -1)
            for tf in order:
                d = acc(4*(tf*8+tm), 4)
                mf.append(f"v_mfma_f32_16x16x32_bf16 {d}, {v(wset+4*tf,4)}, {v(xset+4*tm,4)}, {d}")
            if tm in (3, 6):
                tf = 0 if tm == 3 else 1
                d = v(CS + 4*tf, 4)
                mf.append(f"v_mfma_f32_16x16x32_bf16 {d}, {v(wset+4*tf,4)}, {v(ONES,4)}, {d}")
        rd = list(rd); extra = list(extra)
        for i, m in enumerate(mf):
            A(m)
            if i < len(rd):
                A(rd[i])
            elif extra:
                A(extra.pop(0))
        for e in extra: A(e)

    A("s_barrier")
    stamp(A, cfg, 0); stamp(A, cfg, 2, True)
    for r in reads(XA, WA, xa0, 0): A(r)
    A(f"""
    s_mov_b32 s30, 0                 ; step
    s_mov_b32 s31, 0
    s_waitcnt lgkmcnt(0)
    """)
    A.label(f"{L}_cloop")
    A(f"""
    s_add_u32 s32, s31, {STAGE}
    s_cmp_eq_u32 s32, {STAGE*NS}
    s_cselect_b32 s32, 0, s32
    s_sub_u32 s33, s32, s31          ; delta
    s_mov_b32 s31, s32
    """)
    unit(XA, WA, reads(XB, WB, xa1, 1))
    adv = [f"v_add_u32 v{xa0}, s33, v{xa0}"] + [f"v_add_u32 v{wa+t}, s33, v{wa+t}" for t in range(4)]
    for e in adv: A(e)
    A("s_waitcnt lgkmcnt(0)")
    A("s_barrier")
    A(f"""
    s_cmp_lg_u32 s30, s37
    s_cbranch_scc1 {L}_nosig
    s_mov_b64 exec, 1
    global_atomic_add v248, v249, s[64:65] sc1
    s_mov_b64 exec, -1
    {L}_nosig:
    """)
    if PFD:
        A(f"""
        buffer_load_dword v251, v250, s[44:47], s38 offen
        s_add_u32 s38, s38, {64 * WSTRIDE}
        s_min_u32 s38, s38, s39
        """)
    unit(XB, WB, reads(XA, WA, xa0, 0), extra=[f"v_xor_b32 v{xa1}, 64, v{xa0}"])
    A(f"""
    s_add_u32 s30, s30, 1
    s_cmp_lt_u32 s30, {KSTEPS}
    s_waitcnt lgkmcnt(0)
    s_cbranch_scc1 {L}_cloop
    """)
    stamp(A, cfg, 1); stamp(A, cfg, 3, True)
    CS2, ST, C1, ONE = 160, 176, 192, 194
    A(f"""
    s_lshl_b32 s28, s25, 11
    s_add_u32 s28, s28, {CSL}
    v_lshlrev_b32 v{t0}, 5, v{lane}
    v_add_u32 v{t1}, s28, v{t0}
    v_xor_b32 v{t2}, 2048, v{t1}
    ds_write_b128 v{t1}, {v(CS,4)}
    ds_write_b128 v{t1}, {v(CS+4,4)} offset:16
    v_and_b32 v{t0}, 15, v{lane}
    v_lshrrev_b32 v{t3}, 1, v{t0}
    v_lshlrev_b32 v{t3}, 4, v{t3}
    v_and_b32 v{t0}, 1, v{t0}
    v_lshlrev_b32 v{t0}, 2, v{t0}
    v_add_u32 v{t3}, v{t3}, v{t0}
    s_lshl_b32 s28, s26, 10
    s_add_u32 s28, s28, {STATL}
    v_add_u32 v{t3}, s28, v{t3}
    """)
    srd_from(A, 12, 6, 7, H_OFF, H_SZ)
    A(f"""
    s_lshl_b32 s28, s{SMB}, 4
    s_lshl_b32 s29, s26, 3
    s_add_u32 s28, s28, s29
    s_mul_i32 s28, s28, 112
    s_lshl_b32 s29, s{SNB}, 2
    s_add_u32 s28, s28, s29
    s_lshl_b32 s29, s27, 1
    s_add_u32 s28, s28, s29
    s_lshl_b32 s34, s28, 10
    v_and_b32 v{t0}, 15, v{lane}
    v_lshrrev_b32 v{xa1}, 4, v{lane}  ; G
    v_and_b32 v{xa0}, 1, v{xa1}
    v_lshlrev_b32 v{xa0}, 1, v{xa0}
    v_lshrrev_b32 v{xa1}, 1, v{xa1}
    v_or_b32 v{xa1}, v{xa1}, v{xa0}     ; cG
    v_lshlrev_b32 v{xa1}, 8, v{xa1}
    v_lshlrev_b32 v{t0}, 4, v{t0}
    v_add_u32 v{xa0}, v{t0}, v{xa1}
    s_lshl_b32 s28, s26, 10
    v_add_u32 v{xa0}, s28, v{xa0}
    v_xor_b32 v{xa1}, 1024, v{xa0}
    s_mov_b32 s35, 0xbfb8aa3b        ; -log2(e)
    v_mov_b32 v{ONE}, 1.0
    v_mov_b32 v{ONE+1}, 1.0
    s_waitcnt lgkmcnt(0)
    s_barrier
    """)
    for i in range(8): A(f"v_mov_b32 v{CS2+i}, v{CS+i}")
    A(f"ds_read_b128 {v(CS2+8,4)}, v{t2}")
    A(f"ds_read_b128 {v(CS2+12,4)}, v{t2} offset:16")
    for tm in range(8):
        A(f"ds_read2_b32 {v(ST+2*tm,2)}, v{t3} offset0:{32*tm} offset1:{32*tm+2}")
    A("s_waitcnt lgkmcnt(0)")
    rowstep = 112 * 1024
    P = 196
    nbuf = 0
    pk = cfg.get('pk', True)
    for tm in range(8):
        mu = ST + 2*tm
        A(f"v_mul_f32 v{C1}, s35, v{mu+1}")
        for fp in range(2):
            base = (128, 196)[nbuf % 2]
            nbuf += 1
            U = base + 8
            E = base + 16
            prs = [(4*((2*fp+t)*8+tm) + 2*h, CS2 + 4*(2*fp+t) + 2*h) for t in range(2) for h in range(2)]
            if pk:
                for i, (T, c) in enumerate(prs):
                    A(f"v_pk_fma_f32 {v(U+2*i,2)}, {v(c,2)}, {v(mu,2)}, {v(T,2)} op_sel_hi:[1,0,1] neg_lo:[0,1,0] neg_hi:[0,1,0]")
                for i in range(4):
                    A(f"v_pk_mul_f32 {v(E+2*i,2)}, {v(U+2*i,2)}, {v(C1,2)} op_sel_hi:[1,0]")
                for i in range(8): A(f"v_exp_f32 v{E+i}, v{E+i}")
                for i in range(4):
                    A(f"v_pk_mul_f32 {v(U+2*i,2)}, {v(U+2*i,2)}, {v(mu,2)} op_sel:[0,1] op_sel_hi:[1,1]")
                for i in range(4):
                    A(f"v_pk_add_f32 {v(E+2*i,2)}, {v(E+2*i,2)}, {v(ONE,2)}")
                for i in range(8): A(f"v_rcp_f32 v{E+i}, v{E+i}")
                for i in range(4):
                    A(f"v_pk_mul_f32 {v(E+2*i,2)}, {v(U+2*i,2)}, {v(E+2*i,2)}")
            else:
                for i, (T, c) in enumerate(prs):
                    for h in range(2):
                        A(f"v_fma_f32 v{U+2*i+h}, -v{mu}, v{c+h}, v{T+h}")
                for i in range(8): A(f"v_mul_f32 v{E+i}, v{C1}, v{U+i}")
                for i in range(8): A(f"v_exp_f32 v{E+i}, v{E+i}")
                for i in range(8): A(f"v_mul_f32 v{U+i}, v{mu+1}, v{U+i}")
                for i in range(8): A(f"v_add_f32 v{E+i}, 1.0, v{E+i}")
                for i in range(8): A(f"v_rcp_f32 v{E+i}, v{E+i}")
                for i in range(8): A(f"v_mul_f32 v{E+i}, v{U+i}, v{E+i}")
            for i in range(4): A(f"v_cvt_pk_bf16_f32 v{base+i}, v{E+2*i}, v{E+2*i+1}")
            A(f"v_permlane16_swap_b32 v{base}, v{base+2}")
            A(f"v_permlane16_swap_b32 v{base+1}, v{base+3}")
            A(f"s_add_u32 s36, s34, {rowstep*tm}")
            A(f"buffer_store_dwordx4 {v(base,4)}, v{xa1 if fp else xa0}, s[12:15], s36 offen{cfg.get('st', '')}")
    A("s_endpgm")
```

```python
MB = 1 << 20
XN_OFF = 0
XN_SZ = 4 * MB
X1_OFF = 4 * MB
X1_SZ = 257 * 16384
WT_OFF = 9 * MB
WT_SZ = 514 * 8192
Y1_OFF = 14 * MB
Y1_SZ = 257 * 16384
H_OFF = 20 * MB
H_SZ = 8 * 56 * 32768
P_OFF = 36 * MB
P_SZ = 4 * 2048 * 2048
ARG_X, ARG_WR, ARG_WI, ARG_W1, ARG_W2, ARG_OUT, ARG_DBG, ARG_WS = 0, 8, 16, 32, 40, 48, 56, 64
S_OFF = 54 * MB
S_SZ = 4 * MB

E_OFF = 36 * MB
E_SZ = 4 * MB
W2I_OFF = 40 * MB
W2I_SZ = 3584 * 2048

import os
ALIAS = int(os.environ.get('ALIAS', '0'))
if ALIAS & 1:
    Y1_OFF = X1_OFF
if ALIAS & 2:
    E_OFF = WT_OFF
SOUT = ALIAS & 4
```
